```python
import torch

def _softmax(x, axis=-1):
    return torch.softmax(x, dim=axis)
def _gelu(x):
    return torch.nn.functional.gelu(x, approximate="tanh")
def _silu(x):
    return torch.nn.functional.silu(x)
def _sigmoid(x):
    return torch.sigmoid(x)
def _layernorm(x, axis=-1, eps=1e-5):
    m = x.mean(dim=axis, keepdim=True)
    v = x.var(dim=axis, keepdim=True, unbiased=False)
    return (x - m) / torch.sqrt(v + eps)
def _scatter_add(tgt, idx, src, axis=0):
    return tgt.clone().index_add_(axis, idx, src)
def _segment_sum(src, seg, n):
    out = torch.zeros((n,) + src.shape[1:], dtype=src.dtype)
    return out.index_add_(0, seg, src)
def _pad(x, pw):
    flat = tuple(v for pair in reversed(pw) for v in pair)
    return torch.nn.functional.pad(x, flat)

kernel_name = 'recurrent_scan__ssm_conv_s4d__dense_activation_silu__prompt'

def setup_inputs():

    _w = (lambda a: (lambda t: t.to(torch.bfloat16) if t.is_floating_point() else t)(torch.as_tensor(a)))
    def _A_setup():
        Bsz, L, D, N = 1, 2048, 512, 128
        return {
            "u": _w((lambda *s: torch.randn(*s, dtype=torch.bfloat16) * 0.05)(Bsz, L, D)),
            "log_A_real": _w((lambda *s: torch.randn(*s, dtype=torch.bfloat16) * 6.4)(D, N) * 0.5),
            "A_imag": _w((lambda *s: torch.randn(*s, dtype=torch.bfloat16) * 0.2)(D, N) * 3.14),
            "C_real": _w((lambda *s: torch.randn(*s, dtype=torch.bfloat16) * 0.2)(D, N) / N ** 0.5),
            "C_imag": _w((lambda *s: torch.randn(*s, dtype=torch.bfloat16) * 0.2)(D, N) / N ** 0.5),
            "log_dt": _w((lambda *s: torch.randn(*s, dtype=torch.bfloat16) * 0.2)(D) * 0.5 - 4.0),
            "D_skip": _w((lambda *s: torch.randn(*s, dtype=torch.bfloat16) * 0.2)(D)),
        }
    _A_in = _A_setup()

    def _B_setup():
        B, S, D, F = 1, 2048, 512, 1376
        return {
            "x": _w((lambda *s: torch.randn(*s, dtype=torch.bfloat16) * 0.05)(B, S, D)),
            "w1": _w((lambda *s: torch.randn(*s, dtype=torch.bfloat16) * 0.8)(D, F) * (D ** -0.5)),
            "w2": _w((lambda *s: torch.randn(*s, dtype=torch.bfloat16) * 0.1)(F, D) * (F ** -0.5)),
        }
    _B_in = _B_setup()

    return {
        "A_u": _A_in["u"],
        "A_log_A_real": _A_in["log_A_real"],
        "A_A_imag": _A_in["A_imag"],
        "A_C_real": _A_in["C_real"],
        "A_C_imag": _A_in["C_imag"],
        "A_log_dt": _A_in["log_dt"],
        "A_D_skip": _A_in["D_skip"],
        "B_x": _B_in["x"],
        "B_w1": _B_in["w1"],
        "B_w2": _B_in["w2"],
    }

def reference(A_u, A_log_A_real, A_A_imag, A_C_real, A_C_imag, A_log_dt, A_D_skip, B_x, B_w1, B_w2):
    def _A_ref(u, log_A_real, A_imag, C_real, C_imag, log_dt, D_skip):
        L = u.shape[1]
        dt = torch.exp(log_dt)
        A = -torch.exp(log_A_real) + 1j * A_imag
        C = (C_real + 1j * C_imag) * dt[:, None]
        pos = (lambda x, dt: x.to(dt))(torch.arange(L), log_dt.dtype)
        P = torch.exp((A * dt[:, None])[:, :, None] * pos[None, None, :])
        K = 2.0 * torch.einsum("dn,dnl->dl", C, P).real
        L2 = 2 * L
        u_t = (lambda x, *d: x.permute(*d))(u, 0, 2, 1)
        Kf = (lambda x, *a, **k: torch.fft.rfft(x.float(), *a, **k))(K, L2)
        Uf = (lambda x, *a, **k: torch.fft.rfft(x.float(), *a, **k))(u_t, L2)
        y = (lambda x, *a, **k: torch.fft.irfft(x, *a, **k).to(torch.bfloat16))(Uf * Kf[None, :, :], L2)[:, :, :L]
        y = (lambda x, *d: x.permute(*d))(y, 0, 2, 1)
        return y + u * D_skip[None, None, :]

    def _B_ref(x, w1, w2):
        h = torch.einsum("bsd,df->bsf", x, w1)
        h = _silu(h)
        out = torch.einsum("bsf,fd->bsd", h, w2)
        return out

    x = A_u
    xn = _layernorm(x, axis=-1)
    s = _A_ref(xn, A_log_A_real, A_A_imag, A_C_real, A_C_imag, A_log_dt, A_D_skip)
    g = _silu(_B_ref(xn, B_w1, B_w2))
    return x + s * g
```

```python
import re

KN = "recurrent_scan__ssm_conv_s4d__dense_activation_silu__prompt_kernel"

_REG = re.compile(r"^(-|abs\()?([vsa])(\d+)\)?$")
_RNG = re.compile(r"^(-)?([vsa])\[(\d+):(\d+)\]$")
TRANS = ("v_exp_f32", "v_log_f32", "v_rcp_f32", "v_rsq_f32", "v_sqrt_f32", "v_sin_f32", "v_cos_f32")


def regs_of(op):
    op = op.strip()
    m = _REG.match(op)
    if m:
        return {(m.group(2), int(m.group(3)))}
    m = _RNG.match(op)
    if m:
        return {(m.group(2), i) for i in range(int(m.group(3)), int(m.group(4)) + 1)}
    if op == "vcc":
        return {("s", "vcc")}
    if op == "exec":
        return {("s", "exec")}
    if op == "m0":
        return {("s", "m0")}
    return set()


class Ins:
    __slots__ = ("text", "mn", "ops", "wr", "rd", "kind", "srcc", "states", "dpp", "wide_store")

    def __init__(self, text):
        self.text = text
        body = text.split(";")[0].strip()
        parts = body.split(None, 1)
        self.mn = parts[0]
        rest = parts[1] if len(parts) > 1 else ""
        ops, depth, cur = [], 0, ""
        for ch in rest:
            if ch == "[":
                depth += 1
            if ch == "]":
                depth -= 1
            if ch == "," and depth == 0:
                ops.append(cur.strip()); cur = ""
            else:
                cur += ch
        if cur.strip():
            ops.append(cur.strip())
        mods = ""
        if ops:
            last = ops[-1].split(None, 1)
            ops[-1] = last[0]
            mods = last[1] if len(last) > 1 else ""
        self.ops = ops
        mn = self.mn
        self.wr, self.rd, self.srcc = set(), set(), set()
        self.states = 1
        self.dpp = ("quad_perm" in mods or "row_" in mods or "_dpp" in mn)
        self.wide_store = False
        R = [regs_of(o) for o in ops]
        if mn == "s_nop":
            self.kind = "nop"; self.states = int(ops[0]) + 1
        elif mn.startswith("v_mfma"):
            self.kind = "mfma"; self.wr = R[0]; self.rd = R[1] | R[2] | R[3]; self.srcc = R[3]
        elif mn.startswith("v_cmp"):
            self.kind = "valu"; self.wr = R[0]; self.rd = set().union(*R[1:])
        elif mn.startswith("v_readfirstlane") or mn.startswith("v_readlane"):
            self.kind = "readlane"; self.wr = R[0]; self.rd = set().union(*R[1:])
        elif mn.startswith("v_swap"):
            self.kind = "valu"; self.wr = R[0] | R[1]; self.rd = R[0] | R[1]
        elif mn.startswith("v_permlane"):
            self.kind = "permlane"; self.wr = R[0] | R[1]; self.rd = R[0] | R[1]
        elif mn.startswith("v_"):
            self.kind = "trans" if any(mn.startswith(t) for t in TRANS) else ("dot" if mn.startswith("v_dot") else "valu")
            self.wr = set(R[0]); self.rd = set().union(*R[1:]) if len(R) > 1 else set()
            if mn.startswith(("v_add_co", "v_sub_co", "v_addc_co")):
                self.wr |= R[1]
            if mn.startswith(("v_fmac", "v_dot2c", "v_pk_fmac")):
                self.rd |= R[0]
            if mn.startswith("v_cndmask") and len(ops) == 3:
                self.rd |= {("s", "vcc")}
            if mn.startswith("v_dot2_") :
                self.srcc = R[3]
        elif mn.startswith("ds_"):
            self.kind = "ds"
            if mn.startswith("ds_read") or "_rtn" in mn or mn.startswith("ds_bpermute"):
                self.wr = R[0]; self.rd = set().union(*R[1:])
            else:
                self.rd = set().union(*R)
        elif mn.startswith("buffer_"):
            self.kind = "vmem"
            if " lds" in (" " + mods) or (mn.startswith("buffer_load") and len(ops) == 3):
                self.rd = set().union(*R) | {("s", "m0")}
                self.kind = "dma"
            elif mn.startswith("buffer_load"):
                self.wr = R[0]; self.rd = set().union(*R[1:])
            else:
                self.rd = set().union(*R)
                self.wide_store = mn.endswith(("x3", "x4"))
        elif mn.startswith("s_"):
            self.kind = "salu"
            if mn.startswith(("s_cmp", "s_bitcmp", "s_cbranch", "s_branch", "s_waitcnt", "s_barrier", "s_sleep", "s_setprio", "s_endpgm")):
                self.rd = set().union(*R) if R else set()
            else:
                self.wr = R[0] if R else set(); self.rd = set().union(*R[1:]) if len(R) > 1 else set()
        else:
            raise ValueError("unknown instr " + text)


def need(prev, cur):
    n = 0
    pv = prev.kind in ("valu", "trans", "dot", "readlane", "permlane")
    vw = {r for r in prev.wr if r[0] in "va"}
    sw = {r for r in prev.wr if r[0] == "s"}
    if pv:
        if cur.kind == "mfma" and vw & cur.rd:
            n = max(n, 3 if prev.kind == "dot" else 2)
        if cur.dpp and vw & cur.rd:
            n = max(n, 2)
        if cur.kind == "permlane" and vw & cur.rd:
            n = max(n, 2)
        if cur.kind == "readlane" and vw & cur.rd:
            n = max(n, 1)
        if cur.kind in ("vmem", "dma") and sw & cur.rd:
            n = max(n, 5)
        if cur.kind in ("valu", "trans", "dot", "permlane", "mfma") and sw & cur.rd:
            n = max(n, 2)
        if cur.kind == "readlane" and sw & cur.rd:
            n = max(n, 4)
        if ("s", "exec") in sw and cur.kind != "salu":
            n = max(n, 5)
    if prev.kind == "trans" and cur.kind in ("valu", "dot", "permlane", "readlane", "mfma") and vw & cur.rd:
        n = max(n, 1 if cur.kind != "mfma" else 2)
    if prev.kind == "dot" and (vw & (cur.rd | cur.wr)):
        if not (cur.kind == "dot" and cur.mn == prev.mn and not (vw & (cur.rd - cur.srcc))):
            n = max(n, 3)
    if prev.kind == "mfma":
        big = "32x32" in prev.mn
        if cur.kind == "mfma":
            if vw & (cur.rd - cur.srcc):
                n = max(n, 12 if big else 8)
            if vw & cur.srcc and cur.srcc != prev.wr:
                n = max(n, 10 if big else 6)
            if vw & cur.wr and cur.wr != prev.wr:
                n = max(n, 10 if big else 6)
        elif vw & (cur.rd | cur.wr):
            n = max(n, 12 if big else 8)
        if cur.kind in ("valu", "trans", "dot", "permlane") and prev.srcc & cur.wr:
            n = max(n, 7 if big else 3)
    if prev.kind == "salu" and ("s", "m0") in prev.wr and cur.kind == "dma":
        n = max(n, 1)
    if prev.wide_store and cur.wr & {r for r in regs_of(prev.ops[0])} and cur.kind in ("valu", "trans", "dot", "permlane", "mfma"):
        n = max(n, 2)
    return n


class Asm:
    def __init__(self):
        self.items = []
        self.nlab = 0
        self.nnop = 0

    def raw(self, s):
        self.items.append(s)

    def __call__(self, s):
        for l in s.strip("\n").split("\n"):
            t = l.strip()
            if not t or t.startswith(";") or t.startswith(".") or t.endswith(":"):
                self.items.append(l)
                continue
            ins = Ins(t)
            dist, req = 0, 0
            for p in reversed(self.items):
                if isinstance(p, str):
                    continue
                if dist >= 20:
                    break
                req = max(req, need(p, ins) - dist)
                dist += p.states
            while req > 0:
                k = min(req, 16)
                self.items.append(Ins(f"s_nop {k-1}"))
                self.nnop += 1
                req -= k
            self.items.append(ins)

    def label(self, base="L"):
        self.nlab += 1
        return f"{base}_{self.nlab}"

    def text(self):
        out = []
        for it in self.items:
            out.append(it if isinstance(it, str) else "    " + it.text)
        return "\n".join(out) + "\n"


def vr(b, n=1):
    return f"v{b}" if n == 1 else f"v[{b}:{b+n-1}]"


def sr(b, n=1):
    return f"s{b}" if n == 1 else f"s[{b}:{b+n-1}]"


def kernel_desc(name, vgpr, sgpr=102, accum=None):
    if accum is None:
        accum = (vgpr + 3) // 4 * 4
    return f""".amdhsa_kernel {name}
  .amdhsa_next_free_vgpr {vgpr}
  .amdhsa_next_free_sgpr {sgpr}
  .amdhsa_accum_offset {accum}
  .amdhsa_group_segment_fixed_size 0
  .amdhsa_kernarg_size 104
  .amdhsa_user_sgpr_count 2
  .amdhsa_user_sgpr_kernarg_segment_ptr 1
  .amdhsa_system_sgpr_workgroup_id_x 1
.end_amdhsa_kernel
"""
```

```python
import sys
from asmlib import *

DIAG = "--diag" in sys.argv
OUT = [x for x in sys.argv[1:] if not x.startswith("--")][0]

EPOCH = 0
XF = 0x1000
SF = 0x5000
HF = 0x9000
XNT = 0x20000
ST = 0x220000
HB = 0x420000
STAMP = 0x1000000
WSB = 0x10000000
L_XN = 0
L_RING = 65536
L_CONV = 98304
KCS = 4160
C_KC = 0
C_TK = 4 * KCS
C_UL = C_TK + 8192
CSTR = C_UL + 4608
L_SYNC = L_CONV + 2 * CSTR
LDS_BYTES = L_SYNC + 256
W1RS = 2752
SPIN = 1 << 18

a = Asm()

sWAVE, sI1, sJ1, sI2, sJ2, sTAG = 3, 4, 5, 6, 7, 8
sG, sK, sRING, sCNT, sGB, sPEND = 10, 11, 12, 13, 14, 15
S_X, S_W1, S_W2, S_OUT, S_WS, S_DBG = 44, 48, 52, 56, 60, 64
sT0, sT1, sT2, sT3 = 42, 43, 68, 69
sKS = 70
sXCD, sSLOT, sSPIN = 81, 82, 83
STAMP0 = 84
nstamp = {"g": 0, "c": 0}


def srd(d, base, nbytes):
    a(f"s_mov_b32 s{d}, s{base}")
    a(f"s_and_b32 s{d+1}, s{base+1}, 0xffff")
    a(f"s_mov_b32 s{d+2}, {nbytes}")
    a(f"s_mov_b32 s{d+3}, 0x00020000")


def stamp(role):
    if not DIAG:
        return
    k = nstamp[role]; nstamp[role] += 1
    assert k < 16
    a("s_memrealtime s[100:101]")
    a("s_waitcnt lgkmcnt(0)")
    a(f"s_mov_b32 s{STAMP0+k}, s100")


def dump_stamps(role):
    if not DIAG:
        return
    a(f"s_lshl_b32 s{sT0}, s2, 3")
    a(f"s_add_u32 s{sT0}, s{sT0}, s{sWAVE}")
    a(f"s_lshl_b32 s{sT0}, s{sT0}, 6")
    a(f"s_add_u32 s{sT0}, s{sT0}, {STAMP}")
    a("v_mov_b32 v14, 0")
    for k in range(nstamp[role]):
        a(f"v_mov_b32 v15, s{STAMP0+k}")
        a(f"buffer_store_dword v15, v14, s[{S_WS}:{S_WS+3}], s{sT0} offen offset:{4*k}")
    a("s_waitcnt vmcnt(0)")


class VM:
    def __init__(self):
        self.q = []
    def issue(self, tag, n=1):
        self.q += [tag] * n
    def wait(self, tag):
        idx = max(i for i, t in enumerate(self.q) if t == tag)
        younger = len(self.q) - 1 - idx
        a(f"s_waitcnt vmcnt({min(younger, 63)})")
        self.q = self.q[idx + 1:]
    def drain(self):
        self.q = []


def lds_arrive(vsync, word, vone):
    a("s_mov_b64 exec, 1")
    a(f"ds_add_u32 v{vsync}, v{vone} offset:{4*word}")
    a("s_mov_b64 exec, -1")


def lds_wait(vsync, word, n, vtmp):
    lp, dn = a.label("LW"), a.label("LWD")
    a(f"s_mov_b32 s{sSPIN}, 0")
    a(f"{lp}:")
    a(f"ds_read_b32 v{vtmp}, v{vsync} offset:{4*word}")
    a(f"s_add_u32 s{sSPIN}, s{sSPIN}, 1")
    a("s_waitcnt lgkmcnt(0)")
    a(f"v_readfirstlane_b32 s{sT0}, v{vtmp}")
    a(f"s_cmp_gt_u32 s{sSPIN}, {SPIN*8}")
    a(f"s_cbranch_scc1 {dn}")
    a(f"s_cmp_lt_u32 s{sT0}, {n}")
    a(f"s_cbranch_scc1 {lp}")
    a(f"{dn}:")


def poll_flags(voff, soff, vtmp, sleep=1):
    lp, dn = a.label("PF"), a.label("PFD")
    a(f"s_mov_b32 s{sSPIN}, 0")
    a(f"{lp}:")
    a(f"buffer_load_dword v{vtmp}, v{voff}, s[{S_WS}:{S_WS+3}], {soff} offen sc1")
    a(f"s_add_u32 s{sSPIN}, s{sSPIN}, 1")
    a("s_waitcnt vmcnt(0)")
    a(f"v_cmp_ne_u32 vcc, s{sTAG}, v{vtmp}")
    a(f"s_cmp_gt_u32 s{sSPIN}, {SPIN}")
    a(f"s_cbranch_scc1 {dn}")
    a("s_cmp_eq_u64 vcc, 0")
    a(f"s_cbranch_scc1 {dn}")
    a(f"s_sleep {sleep}")
    a(f"s_branch {lp}")
    a(f"{dn}:")


def get_tag(vtmp, vzero):
    lp, dn = a.label("GT"), a.label("GTD")
    a(f"s_mov_b32 s{sSPIN}, 0")
    a(f"{lp}:")
    a(f"v_readfirstlane_b32 s{sTAG}, v{vtmp}")
    a(f"s_add_u32 s{sSPIN}, s{sSPIN}, 1")
    a(f"s_cmp_gt_u32 s{sSPIN}, {SPIN}")
    a(f"s_cbranch_scc1 {dn}")
    a(f"s_cmp_lg_u32 s{sTAG}, 0")
    a(f"s_cbranch_scc1 {dn}")
    a("s_sleep 1")
    a(f"buffer_load_dword v{vtmp}, v{vzero}, s[{S_DBG}:{S_DBG+3}], 0 offen sc1")
    a("s_waitcnt vmcnt(0)")
    a(f"s_branch {lp}")
    a(f"{dn}:")


def publish(soff, vtmp, vzero):
    a(f"v_mov_b32 v{vtmp}, s{sTAG}")
    a("s_mov_b64 exec, 1")
    a(f"buffer_store_dword v{vtmp}, v{vzero}, s[{S_WS}:{S_WS+3}], {soff} offen sc1")
    a("s_mov_b64 exec, -1")


def silu_block(src, tmp, n, dst=None, scale_in=None):
    dst = src if dst is None else dst
    for i in range(n):
        a(f"v_mul_f32 v{tmp+i}, s{sT3}, v{src+i}")
    for i in range(n):
        a(f"v_exp_f32 v{tmp+i}, v{tmp+i}")
    for i in range(n):
        a(f"v_add_f32 v{tmp+i}, 1.0, v{tmp+i}")
    for i in range(n):
        a(f"v_rcp_f32 v{tmp+i}, v{tmp+i}")
    for i in range(n):
        a(f"v_mul_f32 v{dst+i}, v{src+i}, v{tmp+i}")


a.raw(open("recurrent_scan__ssm_conv_s4d__dense_activation_silu__prompt.s.ref").read().split("; Override")[0].rstrip())
a.raw(f"; @launch grid=(256,1,1) block=(512,1,1) lds={LDS_BYTES}")
a.raw('.amdgcn_target "amdgcn-amd-amdhsa--gfx950"')
a.raw(".text")
a.raw(f".globl {KN}\n.p2align 8\n.type {KN},@function\n{KN}:")
a("s_cmp_ge_u32 s2, 256")
a("s_cbranch_scc1 L_end")
if DIAG:
    stamp("g")
    nstamp["c"] = 1
a("s_load_dwordx16 s[16:31], s[0:1], 0")
a("s_load_dwordx8 s[32:39], s[0:1], 64")
a("s_load_dwordx2 s[40:41], s[0:1], 96")
a("v_lshrrev_b32 v1, 6, v0")
a("v_and_b32 v0, 63, v0")
a(f"v_readfirstlane_b32 s{sWAVE}, v1")
a("v_lshlrev_b32 v1, 4, v0")
a(f"v_mov_b32 v2, {L_SYNC}")
a("v_mov_b32 v14, 0")
a("v_lshlrev_b32 v15, 2, v0")
a(f"v_add_u32 v15, {L_SYNC}, v15")
a(f"s_cmp_lg_u32 s{sWAVE}, 0")
a("s_cbranch_scc1 L_nozero")
a("ds_write_b32 v15, v14")
a("L_nozero:")
a(f"s_and_b32 s{sXCD}, s2, 7")
a(f"s_lshr_b32 s{sSLOT}, s2, 3")
a("s_waitcnt lgkmcnt(0)")
a("s_barrier")
srd(S_WS, 40, WSB)
srd(S_DBG, 38, 256)
a(f"s_cmp_ge_u32 s{sWAVE}, 4")
a("s_cbranch_scc1 L_conv")

vL16, vSYNC = 1, 2
vX, vD0, vD1, vA, vT0, vT1, vW2, vB0, vB1, vFL, vP = 3, 4, 5, 6, 7, 8, 9, 10, 11, 12, 13
ACC1, F0, F1, TMP, XR = 16, 48, 72, 96, 128
FB = [F0, F1]

a("s_setprio 1")
srd(S_X, 16, 2048 * 512 * 2)
srd(S_W1, 32, 512 * 1376 * 2)
a(f"s_lshr_b32 s{sT0}, s{sXCD}, 1")
a(f"s_lshl_b32 s{sT0}, s{sT0}, 3")
a(f"s_and_b32 s{sI1}, s{sSLOT}, 7")
a(f"s_add_u32 s{sI1}, s{sI1}, s{sT0}")
a(f"s_and_b32 s{sT0}, s{sXCD}, 1")
a(f"s_lshl_b32 s{sT0}, s{sT0}, 2")
a(f"s_lshr_b32 s{sJ1}, s{sSLOT}, 3")
a(f"s_add_u32 s{sJ1}, s{sJ1}, s{sT0}")
a("v_lshrrev_b32 v14, 4, v0")
a("v_sub_u32 v14, 0, v14")
a("v_xor_b32 v14, v14, v0")
a("v_and_b32 v14, 3, v14")
a("v_lshlrev_b32 v14, 4, v14")
a("v_lshrrev_b32 v15, 2, v0")
a(f"v_lshl_add_u32 v{vX}, v15, 10, v14")
a(f"s_lshl_b32 s{sT0}, s{sI1}, 16")
a(f"s_lshl_b32 s{sT1}, s{sWAVE}, 14")
a(f"s_add_u32 s{sT0}, s{sT0}, s{sT1}")
for k in range(4):
    a(f"s_add_u32 s{sT1}, s{sJ1}, {k}")
    a(f"s_and_b32 s{sT1}, s{sT1}, 3")
    a(f"s_lshl_b32 s{sKS+4+k}, s{sT1}, 12")
    a(f"s_lshl_b32 s{sT1}, s{sT1}, 8")
    a(f"s_add_u32 s{sKS+k}, s{sT0}, s{sT1}")
    for n4 in range(4):
        n = 4 * k + n4
        a(f"buffer_load_dwordx4 {vr(XR+4*n,4)}, v{vX}, s[{S_X}:{S_X+3}], s{sKS+k} offen offset:{64*n4}")
a("v_lshrrev_b32 v14, 4, v0")
a("v_and_b32 v14, 2, v14")
a("v_xor_b32 v14, v14, v0")
a("v_and_b32 v14, 3, v14")
a("v_lshlrev_b32 v14, 4, v14")
a(f"v_mul_u32_u24 v{vD0}, {W1RS}, v15")
a(f"v_add_u32 v{vD0}, v{vD0}, v14")
a(f"v_add_u32 v{vD1}, {16*W1RS-1024}, v{vD0}")
a(f"s_mul_i32 s{sT0}, s{sJ1}, 43")
a(f"s_add_u32 s{sT1}, s{sT0}, 43")
a(f"s_lshr_b32 s{sT0}, s{sT0}, 3")
a(f"s_lshr_b32 s{sT1}, s{sT1}, 3")
a(f"s_add_u32 s{sT0}, s{sT0}, s{sWAVE}")
a(f"s_lshl_b32 s{sG}, s{sT0}, 6")
a(f"s_add_u32 s{sT0}, s{sT0}, 4")
a(f"s_cmp_lt_u32 s{sT0}, s{sT1}")
a(f"s_cselect_b32 s{sGB}, s{sT0}, 0")
a(f"s_and_b32 s{sT0}, s{sSLOT}, 7")
a(f"s_mul_i32 s{sK}, s{sT0}, {2*32*W1RS}")
a(f"s_lshl_b32 s{sT2}, s{sT0}, 11")
a(f"s_lshl_b32 s{sRING}, s{sWAVE}, 13")
a(f"s_add_u32 s{sRING}, s{sRING}, {L_RING}")


def w1_refill(slot):
    a(f"s_add_u32 m0, s{sRING}, {slot*2048}")
    a(f"s_add_u32 s{sT1}, s{sG}, s{sK}")
    a(f"buffer_load_dwordx4 v{vD0}, s[{S_W1}:{S_W1+3}], s{sT1} offen lds")
    a(f"buffer_load_dwordx4 v{vD1}, s[{S_W1}:{S_W1+3}], s{sT1} offen offset:1024 lds")
    a(f"s_add_u32 s{sK}, s{sK}, {32*W1RS}")
    a(f"s_cmp_eq_u32 s{sK}, {512*W1RS}")
    a(f"s_cselect_b32 s{sK}, 0, s{sK}")


for sl in range(4):
    w1_refill(sl)
srd(S_W2, 34, 512 * 1376 * 2)
srd(S_OUT, 36, 2048 * 512 * 2)
a(f"s_lshl_b32 s{sI2}, s{sXCD}, 2")
a(f"s_and_b32 s{sT0}, s{sSLOT}, 3")
a(f"s_add_u32 s{sI2}, s{sI2}, s{sT0}")
a(f"s_lshr_b32 s{sJ2}, s{sSLOT}, 2")
a("v_and_b32 v14, 15, v0")
a("v_lshrrev_b32 v15, 2, v14")
a("v_sub_u32 v15, 0, v15")
a(f"v_lshrrev_b32 v{vP}, 4, v0")
a(f"v_xor_b32 v15, v15, v{vP}")
a("v_and_b32 v15, 3, v15")
a("v_lshl_add_u32 v15, v14, 2, v15")
a(f"v_lshlrev_b32 v{vA}, 4, v15")
a(f"v_add_u32 v{vA}, s{sT2}, v{vA}")
a("v_lshrrev_b32 v14, 2, v14")
a(f"v_lshl_add_u32 v15, v{vP}, 3, v14")
a("v_lshlrev_b32 v15, 6, v15")
a(f"v_and_b32 v{vT0}, 1, v{vP}")
a(f"v_lshl_add_u32 v15, v{vT0}, 5, v15")
a(f"v_and_b32 v{vT0}, 3, v0")
a(f"v_lshl_add_u32 v15, v{vT0}, 3, v15")
a(f"v_add_u32 v{vT0}, s{sRING}, v15")
a(f"v_xor_b32 v{vT1}, 32, v{vT0}")
a(f"v_lshl_add_u32 v15, v{vP}, 2, v14")
a("v_lshlrev_b32 v15, 7, v15")
a("v_lshrrev_b32 v14, 1, v14")
a("v_lshl_add_u32 v15, v14, 6, v15")
a("v_and_b32 v14, 3, v0")
a("v_lshl_add_u32 v15, v14, 4, v15")
a(f"v_add_u32 v{vB0}, s{sRING}, v15")
a(f"v_xor_b32 v{vB1}, 64, v{vB0}")
a("v_lshrrev_b32 v14, 2, v0")
a("v_and_b32 v14, 4, v14")
a("v_xor_b32 v14, v14, v0")
a("v_and_b32 v14, 7, v14")
a("v_lshlrev_b32 v14, 4, v14")
a("v_lshrrev_b32 v15, 3, v0")
a(f"v_lshl_add_u32 v{vW2}, v15, 10, v14")
for i in range(32):
    a(f"v_mov_b32 v{ACC1+i}, 0")
SUM, SQ, ONES = TMP, TMP + 2, TMP + 4
a(f"v_mov_b32 v{ONES}, 0x3f803f80")
for i in range(4):
    a(f"v_mov_b32 v{SUM+i}, 0")
for n in range(16):
    a(f"s_waitcnt vmcnt({8 + 15 - n})")
    for d in range(4):
        r = XR + 4 * n + d
        a(f"v_dot2_f32_bf16 v{SUM+(d&1)}, v{r}, v{ONES}, v{SUM+(d&1)}")
        a(f"v_dot2_f32_bf16 v{SQ+(d&1)}, v{r}, v{r}, v{SQ+(d&1)}")
stamp("g")
a(f"v_add_f32 v{SUM}, v{SUM}, v{SUM+1}")
a(f"v_add_f32 v{SQ}, v{SQ}, v{SQ+1}")
for qp in ("[1,0,3,2]", "[2,3,0,1]"):
    a(f"v_add_f32_dpp v{SUM}, v{SUM}, v{SUM} quad_perm:{qp} row_mask:0xf bank_mask:0xf")
    a(f"v_add_f32_dpp v{SQ}, v{SQ}, v{SQ} quad_perm:{qp} row_mask:0xf bank_mask:0xf")
MEAN, VAR, RS, NMR = TMP + 5, TMP + 6, TMP + 7, TMP + 8
a(f"v_mul_f32 v{MEAN}, 0x3b000000, v{SUM}")
a(f"v_mul_f32 v{VAR}, 0x3b000000, v{SQ}")
a(f"v_fma_f32 v{VAR}, -v{MEAN}, v{MEAN}, v{VAR}")
a(f"v_max_f32 v{VAR}, 0, v{VAR}")
a(f"v_cvt_pk_bf16_f32 v{MEAN}, v{MEAN}, v{VAR}")
a(f"v_and_b32 v{VAR}, 0xffff0000, v{MEAN}")
a(f"v_lshlrev_b32 v{MEAN}, 16, v{MEAN}")
a(f"v_add_f32 v{VAR}, 0x3727c5ac, v{VAR}")
a(f"v_cvt_pk_bf16_f32 v{VAR}, v{VAR}, v{VAR}")
a(f"v_lshlrev_b32 v{VAR}, 16, v{VAR}")
a(f"v_sqrt_f32 v{VAR}, v{VAR}")
a(f"v_cvt_pk_bf16_f32 v{VAR}, v{VAR}, v{VAR}")
a(f"v_lshlrev_b32 v{VAR}, 16, v{VAR}")
a(f"v_rcp_f32 v{RS}, v{VAR}")
a(f"v_mul_f32 v{NMR}, v{MEAN}, v{RS}")
a(f"s_lshl_b32 s{sT0}, s{sWAVE}, 14")
a(f"v_add_u32 v{vP}, s{sT0}, v{vL16}")
for k in range(4):
    a(f"v_add_u32 v{vFL}, s{sKS+4+k}, v{vP}")
    for n4 in range(4):
        n = 4 * k + n4
        for d in range(4):
            r = XR + 4 * n + d
            t = TMP + 12 + 2 * d
            a(f"v_lshlrev_b32 v{t}, 16, v{r}")
            a(f"v_and_b32 v{t+1}, 0xffff0000, v{r}")
        for d in range(4):
            t = TMP + 12 + 2 * d
            a(f"v_fma_f32 v{t}, v{t}, v{RS}, -v{NMR}")
            a(f"v_fma_f32 v{t+1}, v{t+1}, v{RS}, -v{NMR}")
        for d in range(4):
            t = TMP + 12 + 2 * d
            a(f"v_cvt_pk_bf16_f32 v{XR+4*n+d}, v{t}, v{t+1}")
        a(f"ds_write_b128 v{vFL}, {vr(XR+4*n,4)} offset:{1024*n4}")
a("v_mov_b32 v14, 1")
lds_arrive(vSYNC, 0, 14)
a("v_mov_b32 v15, 0")
a(f"buffer_load_dword v{TMP+31}, v15, s[{S_DBG}:{S_DBG+3}], 0 offen sc1")
a(f"s_lshl_b32 s{sT0}, s{sJ1}, 1")
a(f"s_lshr_b32 s{sT1}, s{sWAVE}, 1")
a(f"s_add_u32 s{sT0}, s{sT0}, s{sT1}")
a(f"s_lshl_b32 s{sT0}, s{sT0}, 10")
a(f"s_and_b32 s{sT1}, s{sWAVE}, 1")
a(f"s_lshl_b32 s{sT1}, s{sT1}, 1")
tq, tm, tb, tx = TMP + 12, TMP + 13, TMP + 14, TMP + 15
a(f"v_lshrrev_b32 v{tq}, 5, v0")
a(f"v_add_u32 v{tq}, s{sT1}, v{tq}")
a(f"v_bfe_u32 v{tb}, v0, 1, 1")
a(f"v_lshlrev_b32 v{tb}, 14, v{tb}")
a(f"v_bfe_u32 v{tx}, v0, 4, 1")
a(f"v_lshl_add_u32 v{tb}, v{tx}, 3, v{tb}")
a(f"v_add_u32 v{tb}, s{sT0}, v{tb}")
a(f"v_and_b32 v{tm}, 1, v0")
a(f"v_lshlrev_b32 v{tm}, 3, v{tm}")
a(f"v_bfe_u32 v{tx}, v0, 2, 2")
a(f"v_add_u32 v{tm}, v{tm}, v{tx}")
for hh in range(2):
    if hh:
        a(f"v_add_u32 v{tm}, 4, v{tm}")
    a(f"v_lshrrev_b32 v{tx}, 2, v{tm}")
    a(f"v_sub_u32 v{tx}, 0, v{tx}")
    a(f"v_xor_b32 v{tx}, v{tx}, v{tq}")
    a(f"v_and_b32 v{tx}, 3, v{tx}")
    a(f"v_lshl_add_u32 v{tx}, v{tm}, 2, v{tx}")
    a(f"v_lshl_add_u32 v{TMP+16+hh}, v{tx}, 4, v{tb}")
a(f"v_lshrrev_b32 v{tx}, 4, v0")
a(f"v_lshlrev_b32 v{tx}, 14, v{tx}")
a(f"v_and_b32 v{tm}, 15, v0")
a(f"v_lshl_add_u32 v{TMP+18}, v{tm}, 4, v{tx}")
a(f"s_lshl_b32 s{sT0}, s{sJ1}, 2")
a(f"s_add_u32 s{sT0}, s{sT0}, s{sWAVE}")
a(f"s_lshl_b32 s{sT1}, s{sT0}, 16")
a(f"s_lshl_b32 s{sT2}, s{sI1}, 9")
a(f"s_add_u32 s{sT1}, s{sT1}, s{sT2}")
a(f"s_add_u32 s{sT3}, s{sT1}, {XNT}")
a(f"s_lshl_b32 s{sT0}, s{sT0}, 5")
a(f"s_add_u32 s{sT0}, s{sT0}, s{sI1}")
a(f"s_lshl_b32 s{sT0}, s{sT0}, 4")
a(f"s_add_u32 s{sPEND}, s{sT0}, {XF}")
stamp("g")
lds_wait(vSYNC, 0, 4, 14)
stamp("g")
for inst in range(2):
    for hh in range(2):
        a(f"ds_read_b64_tr_b16 {vr(TMP+20+4*inst+2*hh,2)}, v{TMP+16+hh} offset:{32768*inst}")


def g1_reads(b, slot):
    f = FB[b]
    for ct in range(2):
        for hh in range(2):
            a(f"ds_read_b64_tr_b16 {vr(f+4*ct+2*hh,2)}, v{vT1 if ct else vT0} offset:{slot*2048+256*hh}")
    for rt in range(4):
        a(f"ds_read_b128 {vr(f+8+4*rt,4)}, v{vA} offset:{16384*rt}")
    a(f"v_add_u32 v{vA}, 1024, v{vA}")
    a(f"v_and_b32 v{vA}, 0x3fff, v{vA}")


a("s_waitcnt vmcnt(7)")
g1_reads(0, 0)
a("s_waitcnt lgkmcnt(8)")
for inst in range(2):
    a(f"buffer_store_dwordx4 {vr(TMP+20+4*inst,4)}, v{TMP+18}, s[{S_WS}:{S_WS+3}], s{sT3} offen offset:{256*inst} sc1")
a(f"s_and_b32 s{sT0}, s{sSLOT}, 3")
a(f"s_lshl_b32 s{sT0}, s{sT0}, 1")
a(f"s_add_u32 s{sT0}, s{sT0}, s{sJ2}")
for n in range(8):
    a(f"s_add_u32 s{sT1}, s{sT0}, {n}")
    a(f"s_and_b32 s{sT1}, s{sT1}, 7")
    a(f"s_mul_i32 s{sT1}, s{sT1}, 43")
    a(f"s_lshr_b32 s{sT1}, s{sT1}, 3")
    a(f"s_add_u32 s{sKS+n}, s{sT1}, s{sWAVE}")
for m in range(2):
    a(f"s_add_u32 s{sT1}, s{sT0}, s{sWAVE}")
    a(f"s_add_u32 s{sT1}, s{sT1}, {4*m}")
    a(f"s_and_b32 s{sT1}, s{sT1}, 7")
    a(f"s_mul_i32 s{sT1}, s{sT1}, 43")
    a(f"s_lshr_b32 s{sT1}, s{sT1}, 3")
    a(f"s_add_u32 s{sKS+8+m}, s{sT1}, 4")
a(f"s_lshl_b32 s{sT1}, s{sWAVE}, 4")
a(f"s_add_u32 s{sT1}, s{sT1}, 15")
a(f"s_min_u32 s{sT1}, s{sT1}, 42")
a(f"s_cmp_eq_u32 s{sWAVE}, 3")
a(f"s_cselect_b32 s{sKS+10}, 0x10000, s{sT1}")


def w2_dma(n, half, part=None):
    us = range(4) if part is None else range(2 * part, 2 * part + 2)
    a(f"s_add_u32 m0, s{sRING}, {half*4096}")
    a(f"s_lshl_b32 s{sT1}, s{sKS+n}, 15")
    a(f"s_lshl_b32 s{sT2}, s{sJ2}, 7")
    a(f"s_add_u32 s{sT1}, s{sT1}, s{sT2}")
    for u in us:
        if u:
            a(f"s_add_u32 s{sT2}, s{sT1}, {7168*u}")
        so = sT2 if u else sT1
        a(f"buffer_load_dwordx4 v{vW2}, s[{S_W2}:{S_W2+3}], s{so} offen offset:{1024*u} lds")


def g1_step(n4, mode):
    b = n4 & 1
    f = FB[b]
    last = (mode == "w2" and n4 == 3)
    a("s_waitcnt lgkmcnt(0)")
    if not last:
        a("s_waitcnt vmcnt(4)")
        g1_reads(b ^ 1, (n4 + 1) & 3)
    k = 0
    for ct in range(2):
        for rt in range(4):
            ac = ACC1 + (ct * 4 + rt) * 4
            a(f"v_mfma_f32_16x16x32_bf16 {vr(ac,4)}, {vr(f+4*ct,4)}, {vr(f+8+4*rt,4)}, {vr(ac,4)}")
            k += 1
            if k == 2:
                if mode == "w1":
                    w1_refill(n4)
                else:
                    w2_dma(n4 >> 1, n4 >> 1, n4 & 1)


a("L_group:")
a(f"s_mov_b32 s{sCNT}, 0")
a("L_g1loop:")
a(f"s_cmp_eq_u32 s{sCNT}, 3")
a(f"s_lshl_b32 s{sT0}, s{sGB}, 6")
a(f"s_cmp_eq_u32 s{sCNT}, 3")
a(f"s_cselect_b32 s{sT3}, s{sG}, s{sT3}")
a(f"s_cselect_b32 s{sG}, s{sT0}, s{sG}")
for n4 in range(4):
    g1_step(n4, "w1")
a(f"s_cmp_lg_u32 s{sCNT}, 1")
a("s_cbranch_scc1 L_nopend")
a("s_waitcnt vmcnt(8)")
a(f"s_cmp_lg_u32 s{sPEND}, {0}")
a("v_mov_b32 v15, 0")
get_tag(TMP + 31, 15)
publish(f"s{sPEND}", 14, 15)
a("L_nopend:")
a(f"s_add_u32 s{sCNT}, s{sCNT}, 1")
a(f"s_cmp_lt_u32 s{sCNT}, 3")
a("s_cbranch_scc1 L_g1loop")
a(f"s_cmp_eq_u32 s{sCNT}, 4")
a("s_cbranch_scc1 L_epi")
a(f"s_cmp_lg_u32 s{sGB}, 0")
a("s_cbranch_scc1 L_g1loop")
a(f"s_mov_b32 s{sT3}, s{sG}")
for n4 in range(4):
    g1_step(n4, "w2")
a("L_epi:")
a(f"s_lshr_b32 s{sT0}, s{sT3}, 6")
a(f"s_mul_i32 s{sT1}, s{sI1}, 43")
a(f"s_add_u32 s{sT1}, s{sT1}, s{sT0}")
a(f"s_lshl_b32 s{sT1}, s{sT1}, 12")
a(f"s_add_u32 s9, s{sT1}, {HB}")
a(f"s_lshl_b32 s{sT1}, s{sI1}, 6")
a(f"s_add_u32 s{sT1}, s{sT1}, s{sT0}")
a(f"s_lshl_b32 s{sT1}, s{sT1}, 4")
a(f"s_add_u32 s{sPEND}, s{sT1}, {HF}")
a(f"s_mov_b32 s{sT3}, 0xbfb8aa3b")
for rt in range(4):
    for ct in range(2):
        silu_block(ACC1 + (ct * 4 + rt) * 4, TMP + 4 * ct, 4, dst=TMP + 8 + 4 * ct)
    pk = TMP + 16 + 4 * (rt & 1)
    for ct in range(2):
        for hf in range(2):
            a(f"v_cvt_pk_bf16_f32 v{pk+2*ct+hf}, v{TMP+8+4*ct+2*hf}, v{TMP+8+4*ct+2*hf+1}")
    a(f"buffer_store_dwordx4 {vr(pk,4)}, v{vL16}, s[{S_WS}:{S_WS+3}], s9 offen offset:{1024*rt} sc1")
a(f"s_cmp_eq_u32 s{sCNT}, 4")
a("s_cbranch_scc0 L_gemm2")
for i in range(32):
    a(f"v_mov_b32 v{ACC1+i}, 0")
a(f"s_mov_b32 s{sGB}, 0")
a("s_branch L_group")

a("L_gemm2:")
stamp("g")
a("v_mov_b32 v14, 1")
lds_arrive(vSYNC, 1, 14)
ACC2, HFR, WR = 16, 80, 128
vH = 3
vm = VM()
vm.issue("D0", 4); vm.issue("D1", 4); vm.issue("S", 4)
for rp in range(4):
    a(f"s_add_u32 s{sT0}, s{sWAVE}, {rp}")
    a(f"s_and_b32 s{sT0}, s{sT0}, 3")
    a(f"s_lshl_b32 s{sT0}, s{sT0}, 10")
    a(f"v_add_u32 v{vH+rp}, s{sT0}, v{vL16}")
a(f"s_and_b32 s{sT0}, s{sSLOT}, 3")
a(f"s_lshl_b32 s{sT0}, s{sT0}, 1")
a(f"s_add_u32 s{sT0}, s{sT0}, s{sJ2}")
a(f"v_add_u32 v14, s{sT0}, v0")
a("v_and_b32 v14, 7, v14")
a("v_mul_u32_u24 v14, 43, v14")
a("v_lshrrev_b32 v14, 3, v14")
a(f"v_add_u32 v14, s{sWAVE}, v14")
a(f"v_lshlrev_b32 v{vFL}, 4, v14")
a(f"s_lshl_b32 s{sG}, s{sI2}, 10")
a(f"s_add_u32 s{sG}, s{sG}, {HF}")
a(f"s_mul_i32 s{sK}, s{sI2}, {43*4096}")
a(f"s_add_u32 s{sK}, s{sK}, {HB}")


def w2_reads(n_set, half):
    w = WR + 16 * n_set
    for ct in range(4):
        for hh in range(2):
            a(f"ds_read_b64_tr_b16 {vr(w+4*ct+2*hh,2)}, v{vB1 if ct>>1 else vB0} offset:{half*4096+8*(ct&1)+2048*hh}")


def h_loads(n, hs):
    a(f"s_lshl_b32 s{sT1}, s{sKS+n}, 12")
    a(f"s_add_u32 s{sT1}, s{sT1}, s{sK}")
    for rp in range(4):
        a(f"buffer_load_dwordx4 {vr(HFR+16*hs+4*rp,4)}, v{vH+rp}, s[{S_WS}:{S_WS+3}], s{sT1} offen sc1")
    vm.issue(f"H{n}", 4)


for n in range(8):
    vm.wait(f"D{n}")
    if n == 2:
        a("v_mov_b32 v15, 0")
        publish(f"s{sPEND}", 14, 15)
        vm.issue("F")
    w2_reads(n, n & 1)
    a("s_waitcnt lgkmcnt(0)")
    w2_dma(n + 2, n & 1)
    vm.issue(f"D{n+2}", 4)
stamp("g")
poll_flags(vFL, f"s{sG}", vP)
vm.drain()
stamp("g")


def g2_mfma(n, ws, hs, first):
    for rp in range(4):
        for ct in range(4):
            ac = ACC2 + (ct * 4 + rp) * 4
            c = "0" if first else vr(ac, 4)
            a(f"v_mfma_f32_16x16x32_bf16 {vr(ac,4)}, {vr(WR+16*ws+4*ct,4)}, {vr(HFR+16*hs+4*rp,4)}, {c}")


for n in range(3):
    h_loads(n, n)
for n in range(8):
    vm.wait(f"H{n}")
    g2_mfma(n, n, n % 3, n == 0)
    if n + 3 < 8:
        h_loads(n + 3, n % 3)
    if n in (0, 1):
        w2_reads(n, n & 1)
        if n == 0:
            a("s_waitcnt lgkmcnt(0)")
            w2_dma(10, 0)
            vm.issue("D10", 4)
    if n == 4:
        vm.wait("D10") if "D10" in vm.q else None
        w2_reads(2, 0)
a(f"s_lshl_b32 s{sT0}, s{sKS+8}, 4")
a(f"s_lshl_b32 s{sT1}, s{sKS+9}, 4")
a(f"s_lshl_b32 s{sT2}, s{sKS+10}, 4")
a(f"s_cmp_eq_u32 s{sWAVE}, 3")
a(f"s_cselect_b32 s{sT2}, s{sT0}, s{sT2}")
a(f"v_mov_b32 v{vFL}, s{sT0}")
a(f"v_writelane_b32 v{vFL}, s{sT1}, 1")
a(f"v_writelane_b32 v{vFL}, s{sT2}, 2")
stamp("g")
poll_flags(vFL, f"s{sG}", vP)
vm.drain()
for n in range(8, 11):
    h_loads(n, n - 8)
XT, SR = WR + 48, WR + 56
vXO, vSO = WR + 64, WR + 65
a("v_and_b32 v14, 15, v0")
a("v_lshrrev_b32 v15, 4, v0")
a("v_lshlrev_b32 v15, 4, v15")
a(f"v_lshl_add_u32 v{vXO}, v14, 10, v15")
a(f"s_lshl_b32 s9, s{sI2}, 16")
a(f"s_lshl_b32 s{sT1}, s{sWAVE}, 14")
a(f"s_add_u32 s9, s9, s{sT1}")
a(f"s_lshl_b32 s{sT1}, s{sJ2}, 7")
a(f"s_add_u32 s9, s9, s{sT1}")
for hf in range(2):
    a(f"buffer_load_dwordx4 {vr(XT+4*hf,4)}, v{vXO}, s[{S_X}:{S_X+3}], s9 offen offset:{64*hf}")
vm.issue("X", 2)
a("s_waitcnt lgkmcnt(0)")
for n in range(8, 11):
    vm.wait(f"H{n}")
    g2_mfma(n, n - 8, n - 8, False)
a(f"s_lshl_b32 s{sT0}, s{sJ2}, 1")
a(f"s_lshr_b32 s{sT1}, s{sI2}, 4")
a(f"s_add_u32 s{sT0}, s{sT0}, s{sT1}")
a(f"s_lshl_b32 s{sT0}, s{sT0}, 10")
a(f"s_add_u32 s{sG}, s{sT0}, {SF}")
stamp("g")
poll_flags(vL16, f"s{sG}", vP)
vm.drain()
a("v_lshrrev_b32 v14, 1, v0")
a("v_and_b32 v15, 1, v0")
a("v_lshlrev_b32 v15, 9, v15")
a(f"v_lshl_add_u32 v{vSO}, v14, 12, v15")
a(f"s_lshl_b32 s{sT0}, s{sI2}, 2")
a(f"s_add_u32 s{sT0}, s{sT0}, s{sWAVE}")
a(f"s_lshr_b32 s{sT1}, s{sT0}, 5")
a(f"s_lshl_b32 s{sT1}, s{sT1}, 10")
a(f"s_bfe_u32 s{sT2}, s{sT0}, 0x10004")
a(f"s_lshl_b32 s{sT2}, s{sT2}, 8")
a(f"s_add_u32 s{sT1}, s{sT1}, s{sT2}")
a(f"s_and_b32 s{sT0}, s{sT0}, 15")
a(f"s_lshl_b32 s{sT0}, s{sT0}, 4")
a(f"s_add_u32 s{sT1}, s{sT1}, s{sT0}")
a(f"s_lshl_b32 s{sT0}, s{sJ2}, 18")
a(f"s_add_u32 s{sT1}, s{sT1}, s{sT0}")
a(f"s_add_u32 s{sT1}, s{sT1}, {ST}")
a(f"s_add_u32 s{sT2}, s{sT1}, {32*4096}")
a(f"buffer_load_dwordx4 {vr(SR,4)}, v{vSO}, s[{S_WS}:{S_WS+3}], s{sT1} offen sc1")
a(f"buffer_load_dwordx4 {vr(SR+4,4)}, v{vSO}, s[{S_WS}:{S_WS+3}], s{sT2} offen sc1")
lds_wait(vSYNC, 1, 4, 14)
for rp in range(1, 4):
    a(f"s_add_u32 s{sT0}, s{sWAVE}, {rp}")
    a(f"s_and_b32 s{sT0}, s{sT0}, 3")
    a(f"s_mul_i32 s{sT0}, s{sT0}, 12288")
    a(f"v_add_u32 v14, s{sT0}, v{vL16}")
    for ct in range(4):
        a(f"ds_write_b128 v14, {vr(ACC2+(ct*4+rp)*4,4)} offset:{(rp-1)*4096+ct*1024}")
a("v_mov_b32 v14, 1")
lds_arrive(vSYNC, 2, 14)
a(f"v_add_u32 v15, s{sRING}, v{vL16}")
a("s_waitcnt vmcnt(0)")
a(f"ds_write_b128 v15, {vr(SR,4)}")
a(f"ds_write_b128 v15, {vr(SR+4,4)} offset:1024")
a("v_lshrrev_b32 v14, 4, v0")
a("v_lshlrev_b32 v14, 8, v14")
a("v_and_b32 v15, 15, v0")
a("v_lshl_add_u32 v14, v15, 3, v14")
a(f"v_add_u32 v14, s{sRING}, v14")
for ct in range(4):
    a(f"ds_read_b64_tr_b16 {vr(SR+2*ct,2)}, v14 offset:{128*(ct&1)+1024*(ct>>1)}")
a(f"s_mul_i32 s{sT1}, s{sWAVE}, 12288")
a(f"v_add_u32 v15, s{sT1}, v{vL16}")
lds_wait(vSYNC, 2, 4, 14)
PR = HFR
for sidx in range(3):
    for ct in range(4):
        a(f"ds_read_b128 {vr(PR+16*sidx+4*ct,4)}, v15 offset:{sidx*4096+ct*1024}")
a(f"s_mov_b32 s{sT3}, 0xbfb8aa3b")
O = WR
for sidx in range(3):
    a(f"s_waitcnt lgkmcnt({8-4*sidx})")
    for ct in range(4):
        for r in range(4):
            src = (ACC2 + ct * 16 + r) if sidx == 0 else (O + 4 * ct + r)
            a(f"v_add_f32 v{O+4*ct+r}, v{src}, v{PR+16*sidx+4*ct+r}")
silu_block(O, O + 16, 16)
for ct in range(4):
    for hf in range(2):
        sdw = SR + 2 * ct + hf
        xdw = XT + 2 * ct + hf
        t = O + 16 + 4 * (2 * (ct & 1) + hf)
        a(f"v_lshlrev_b32 v{t}, 16, v{sdw}")
        a(f"v_and_b32 v{t+1}, 0xffff0000, v{sdw}")
        a(f"v_lshlrev_b32 v{t+2}, 16, v{xdw}")
        a(f"v_and_b32 v{t+3}, 0xffff0000, v{xdw}")
        a(f"v_fma_f32 v{t}, v{t}, v{O+4*ct+2*hf}, v{t+2}")
        a(f"v_fma_f32 v{t+1}, v{t+1}, v{O+4*ct+2*hf+1}, v{t+3}")
        a(f"v_cvt_pk_bf16_f32 v{xdw}, v{t}, v{t+1}")
for hf in range(2):
    a(f"buffer_store_dwordx4 {vr(XT+4*hf,4)}, v{vXO}, s[{S_OUT}:{S_OUT+3}], s9 offen offset:{64*hf}")
stamp("g")
dump_stamps("g")
a("s_endpgm")

a("L_conv:")
sCH, sP, sCB, sDT, sDS = 4, 5, 6, 7, 9
srd(44, 18, 512 * 128 * 2)
srd(48, 20, 512 * 128 * 2)
srd(52, 22, 512 * 128 * 2)
srd(56, 24, 512 * 128 * 2)
a(f"s_lshl_b32 s{sT0}, s{sXCD}, 5")
a(f"s_add_u32 s{sT0}, s{sT0}, s{sSLOT}")
a(f"s_lshl_b32 s{sT1}, s{sT0}, 2")
a(f"s_load_dword s{sDT}, s[26:27], s{sT1}")
a(f"s_load_dword s{sDS}, s[28:29], s{sT1}")
a(f"s_bfe_u32 s{sT2}, s{sWAVE}, 0x10001")
a(f"s_lshl_b32 s{sCH}, s{sT0}, 1")
a(f"s_add_u32 s{sCH}, s{sCH}, s{sT2}")
a(f"s_and_b32 s{sP}, s{sWAVE}, 1")
a(f"s_mul_i32 s{sCB}, s{sT2}, {CSTR}")
a(f"s_add_u32 s{sCB}, s{sCB}, {L_CONV}")
a(f"s_lshl_b32 s{sT0}, s{sCH}, 8")
a(f"s_lshl_b32 s{sT1}, s{sP}, 7")
a(f"s_add_u32 s{sT0}, s{sT0}, s{sT1}")
a("v_lshlrev_b32 v3, 1, v0")
for k in range(4):
    a(f"buffer_load_ushort v{4+k}, v3, s[{44+4*k}:{47+4*k}], s{sT0} offen")
a("v_mov_b32 v15, 0")
a("s_cmp_lg_u32 s2, 0")
a("s_cbranch_scc1 L_noepoch")
a(f"s_cmp_lg_u32 s{sWAVE}, 4")
a("s_cbranch_scc1 L_noepoch")
a(f"buffer_load_dword v14, v15, s[{S_WS}:{S_WS+3}], 0 offen sc1")
a("s_waitcnt vmcnt(0)")
a("v_add_u32 v14, 0x9e3779b8, v14")
a("v_or_b32 v14, 1, v14")
a("s_mov_b64 exec, 1")
a(f"buffer_store_dword v14, v15, s[{S_DBG}:{S_DBG+3}], 0 offen sc1")
a(f"buffer_store_dword v14, v15, s[{S_WS}:{S_WS+3}], 0 offen sc1")
a("s_mov_b64 exec, -1")
a("L_noepoch:")
GA = 200
MK = 220
vKA, vUA, vTKa, vTKb, vTK2, vTK0, vKW, vST = 224, 225, 226, 227, 228, 229, 230, 231
a(f"s_lshl_b32 s{sT0}, s{sP}, 6")
a(f"v_add_u32 v8, s{sT0}, v0")
a("v_lshlrev_b32 v9, 4, v8")
a("v_sub_u32 v9, 0x7ff, v9")
a(f"s_add_u32 s{sT1}, s{sCB}, {C_TK}")
a(f"s_movk_i32 s{sT2}, 0x100")
for s in range(19):
    if s:
        a(f"v_subrev_u32 v10, {s}, v9")
    else:
        a("v_mov_b32 v10, v9")
    a("v_max_i32 v10, 0, v10")
    a("v_cvt_f32_u32 v11, v10")
    a("v_cvt_pk_bf16_f32 v11, v11, v11")
    a("v_and_b32 v11, 0xffff, v11")
    a("v_subrev_u32 v11, 0x4280, v11")
    a(f"v_cmp_gt_u32 vcc, s{sT2}, v10")
    a("v_cndmask_b32 v11, v11, v10, vcc")
    a(f"v_lshl_add_u32 v{GA+s}, v11, 3, s{sT1}")
a(f"v_lshlrev_b32 v{vKW}, 5, v8")
a(f"v_add_u32 v{vKW}, s{sCB}, v{vKW}")
a("v_and_b32 v8, 15, v0")
a("v_lshrrev_b32 v9, 4, v0")
a("v_lshlrev_b32 v10, 3, v9")
a("v_sub_u32 v10, v8, v10")
a("v_add_u32 v10, 16, v10")
a(f"s_mul_i32 s{sT0}, s{sP}, 100")
a(f"v_add_u32 v10, s{sT0}, v10")
a("v_mov_b32 v12, 0xffff")
a("v_mov_b32 v13, 0xffff0000")
for d in range(4):
    a(f"v_cmp_le_i32 vcc, {2*d}, v10")
    a(f"v_cndmask_b32 v{MK+d}, 0, v12, vcc")
    a(f"v_cmp_le_i32 vcc, {2*d+1}, v10")
    a("v_cndmask_b32 v11, 0, v13, vcc")
    a(f"v_or_b32 v{MK+d}, v{MK+d}, v11")
a("v_and_b32 v10, 3, v8")
a(f"v_mul_u32_u24 v10, {KCS}, v10")
a("v_lshrrev_b32 v11, 2, v8")
a("v_lshlrev_b32 v11, 3, v11")
a("v_sub_u32 v10, v10, v11")
a("v_lshl_add_u32 v10, v9, 4, v10")
a(f"s_lshl_b32 s{sT0}, s{sP}, 8")
a(f"s_sub_u32 s{sT0}, s{sCB}, s{sT0}")
a(f"s_add_u32 s{sT1}, s{sT0}, 24")
a(f"v_add_u32 v{vKA}, s{sT1}, v10")
a("v_lshlrev_b32 v10, 5, v8")
a("v_lshl_add_u32 v10, v9, 4, v10")
a(f"s_add_u32 s{sT1}, s{sT0}, {C_UL}")
a(f"v_add_u32 v{vUA}, s{sT1}, v10")
a(f"s_lshl_b32 s{sT0}, s{sP}, 2")
a(f"s_add_u32 s{sT0}, s{sT0}, s{sCB}")
a(f"s_add_u32 s{sT0}, s{sT0}, {C_TK}")
a("v_lshrrev_b32 v10, 1, v9")
a("v_lshlrev_b32 v10, 7, v10")
a("v_and_b32 v11, 1, v9")
a("v_lshl_add_u32 v10, v11, 2, v10")
a("v_lshl_add_u32 v10, v8, 3, v10")
a(f"v_lshl_add_u32 v{vTK0}, v10, 3, s{sT0}")
a("v_lshlrev_b32 v10, 6, v9")
a("v_lshlrev_b32 v11, 1, v8")
a("v_add_u32 v10, v10, v11")
a("v_cmp_gt_u32 vcc, 2, v9")
a("v_cndmask_b32 v11, 0, v11, vcc")
a("v_add_u32 v10, v10, v11")
a("v_add_u32 v10, 256, v10")
a(f"v_lshl_add_u32 v{vTKa}, v10, 3, s{sT0}")
a("v_mov_b32 v11, 256")
a("v_cndmask_b32 v11, v11, 16, vcc")
a(f"v_add_u32 v{vTKb}, v{vTKa}, v11")
a("v_lshl_add_u32 v10, v9, 6, v8")
a("v_add_u32 v10, 512, v10")
a(f"v_lshl_add_u32 v{vTK2}, v10, 3, s{sT0}")
a(f"s_add_u32 s{sT0}, s{sCB}, {C_UL}")
a(f"v_add_u32 v10, s{sT0}, v1")
for i in range(4):
    a(f"v_mov_b32 v{16+i}, 0")
a("v_cmp_gt_u32 vcc, 30, v0")
a("s_and_saveexec_b64 s[70:71], vcc")
a("ds_write_b128 v10, v[16:19]")
a("s_mov_b64 exec, -1")
a(f"s_lshl_b32 s{sT0}, s{sP}, 13")
a(f"s_add_u32 s{sT0}, s{sT0}, s{sCB}")
vSW, vSR = 232, 233
a(f"v_lshlrev_b32 v{vSW}, 5, v0")
a(f"v_add_u32 v{vSW}, s{sT0}, v{vSW}")
a(f"v_lshlrev_b32 v{vSR}, 3, v0")
a(f"v_add_u32 v{vSR}, s{sT0}, v{vSR}")
a("s_waitcnt lgkmcnt(0)")
a(f"s_bfe_u32 s{sT2}, s{sWAVE}, 0x10001")
a(f"s_lshl_b32 s{sT2}, s{sT2}, 4")
a(f"s_lshr_b32 s{sDT}, s{sDT}, s{sT2}")
a(f"s_lshl_b32 s{sDT}, s{sDT}, 16")
a(f"s_lshr_b32 s{sDS}, s{sDS}, s{sT2}")
a(f"s_lshl_b32 s{sDS}, s{sDS}, 16")
a(f"s_mov_b32 s{sT3}, 0x3fb8aa3b")
a(f"v_mov_b32 v8, s{sDT}")
a(f"v_mul_f32 v8, s{sT3}, v8")
a("v_exp_f32 v8, v8")
a("v_cvt_pk_bf16_f32 v8, v8, v8")
a("v_lshlrev_b32 v8, 16, v8")
a("s_waitcnt vmcnt(0)")
stamp("c")
for k in range(4):
    a(f"v_lshlrev_b32 v{4+k}, 16, v{4+k}")
a(f"v_mul_f32 v4, s{sT3}, v4")
a("v_exp_f32 v4, v4")
a("v_cvt_pk_bf16_f32 v4, v4, v4")
a("v_lshlrev_b32 v4, 16, v4")
a("v_mul_f32 v4, v4, v8")
a("v_mul_f32 v5, v5, v8")
a(f"v_mul_f32 v4, s{sT3}, v4")
a("v_mul_f32 v5, 0.15915494, v5")
Y = 20
a("v_add_f32 v8, v8, v8")
a(f"v_mul_f32 v{Y}, v6, v8")
a(f"v_mul_f32 v{Y+1}, v7, v8")
Z1, Z8, Z128 = 24, 22, 40
for (dst, mul) in ((Z1, None), (Z8, "0x41000000"), (Z128, "0x43000000")):
    if mul is None:
        a("v_sub_f32 v10, 0, v4")
        a("v_fract_f32 v11, v5")
    else:
        a(f"v_mul_f32 v10, {mul}, v4")
        a("v_sub_f32 v10, 0, v10")
        a(f"v_mul_f32 v11, {mul}, v5")
        a("v_fract_f32 v11, v11")
    a("v_exp_f32 v10, v10")
    a("v_cos_f32 v12, v11")
    a("v_sin_f32 v13, v11")
    a(f"v_mul_f32 v{dst}, v10, v12")
    a(f"v_mul_f32 v{dst+1}, v10, v13")
ctmp = [42, 44, 46, 48]
cti = [0]


def cmul(d, x, y):
    t = ctmp[cti[0] % 4]; cti[0] += 1
    a(f"v_pk_mul_f32 {vr(t,2)}, {vr(x,2)}, {vr(y,2)} op_sel:[0,0] op_sel_hi:[0,1]")
    a(f"v_pk_fma_f32 {vr(d,2)}, {vr(x,2)}, {vr(y,2)}, {vr(t,2)} op_sel:[1,1,0] op_sel_hi:[1,0,1] neg_lo:[0,1,0]")


V = 64
PK = 96
def Wp(e): return Z1 + 2 * (e - 1)


def pack_write(img, neg_im, nrows=16):
    ng = "-" if neg_im else ""
    for i in range(nrows // 2):
        a(f"v_cvt_pk_bf16_f32 v{PK+i}, v{V+4*i}, v{V+4*i+2}")
        a(f"v_cvt_pk_bf16_f32 v{PK+8+i}, {ng}v{V+4*i+1}, {ng}v{V+4*i+3}")
    for part in range(2):
        for hf in range((nrows + 7) // 8):
            a(f"ds_write_b128 v{vSW}, {vr(PK+8*part+4*hf,4)} offset:{img*4096+2048*part+16*hf}")


def frag_reads(dst, img):
    for ks in range(4):
        for hh in range(2):
            a(f"ds_read_b64_tr_b16 {vr(dst+4*ks+2*hh,2)}, v{vSR} offset:{img*4096+1024*ks+512*hh}")


LOF, HIF, KD = 112, 128, 160
a(f"v_mov_b32 v{V}, 1.0")
a(f"v_mov_b32 v{V+1}, 0")
a(f"v_mov_b32 v{V+2}, v{Z8}")
a(f"v_mov_b32 v{V+3}, v{Z8+1}")
cmul(V + 4, Z8, Z8)
cmul(Wp(2), Z1, Z1)
for j in range(3, 16):
    cmul(V + 2 * j, V + 2 * (j - 2), V + 4)
    if j <= 7:
        cmul(Wp(j), Wp(j - 2), Wp(2))
pack_write(0, True)
Yn = 50
cmul(Yn, Y, Z128)
for i, yy in enumerate((Y, Yn)):
    a(f"v_mov_b32 v{V+16*i}, v{yy}")
    a(f"v_mov_b32 v{V+16*i+1}, v{yy+1}")
    for e in range(1, 8):
        cmul(V + 16 * i + 2 * e, yy, Wp(e))
frag_reads(LOF, 0)
pack_write(1, False)
cmul(V + 0, Yn, Z128)
cmul(V + 8, V + 0, Z128)
cmul(V + 16, V + 8, Z128)
for e in range(1, 4):
    cmul(V + 2 * e, V + 0, Wp(2 * e))
cmul(V + 20, V + 16, Z128)
for e in range(1, 4):
    cmul(V + 8 + 2 * e, V + 8, Wp(2 * e))
cmul(V + 24, V + 20, Z128)
cmul(V + 18, V + 16, Wp(4))
cmul(V + 28, V + 24, Z128)
cmul(V + 22, V + 20, Wp(4))
cmul(Yn, V + 28, Z128)
cmul(V + 26, V + 24, Wp(4))
cmul(V + 30, V + 28, Wp(4))
frag_reads(HIF, 1)
a("s_waitcnt lgkmcnt(8)")
pack_write(0, False)
a("s_waitcnt lgkmcnt(4)")
for ks in range(4):
    a(f"v_mfma_f32_16x16x32_bf16 {vr(KD,4)}, {vr(HIF+4*ks,4)}, {vr(LOF+4*ks,4)}, {'0' if ks == 0 else vr(KD,4)}")
a(f"v_mov_b32 v{V}, v{Yn}")
a(f"v_mov_b32 v{V+1}, v{Yn+1}")
cmul(Y, Z128, Z128)
cmul(V + 2, V, Z128)
for i in range(2, 10):
    cmul(V + 2 * i, V + 2 * (i - 2), Y)
frag_reads(HIF + 16, 0)
pack_write(1, False, 10 + 6)
a("s_waitcnt lgkmcnt(4)")
for ks in range(4):
    a(f"v_mfma_f32_16x16x32_bf16 {vr(KD+4,4)}, {vr(HIF+16+4*ks,4)}, {vr(LOF+4*ks,4)}, {'0' if ks == 0 else vr(KD+4,4)}")
frag_reads(HIF, 1)
for rho in range(4):
    a(f"ds_write_b32 v{vTK0}, v{KD+rho} offset:{8*rho}")
a("s_waitcnt lgkmcnt(4)")
for ks in range(4):
    a(f"v_mfma_f32_16x16x32_bf16 {vr(KD+8,4)}, {vr(HIF+4*ks,4)}, {vr(LOF+4*ks,4)}, {'0' if ks == 0 else vr(KD+8,4)}")
for rho in range(4):
    a(f"ds_write_b32 v{vTKb if rho >> 1 else vTKa}, v{KD+4+rho} offset:{8*(rho&1)}")
for rho in range(4):
    a(f"ds_write_b32 v{vTK2}, v{KD+8+rho} offset:{128*rho}")
a(f"s_bfe_u32 s{sT2}, s{sWAVE}, 0x10001")
a(f"s_lshl_b32 s{sT2}, s{sT2}, 4")
a(f"v_add_u32 v2, s{sT2}, v2")
a("v_mov_b32 v14, 1")
lds_arrive(2, 4, 14)
a("v_mov_b32 v15, 0")
a(f"buffer_load_dword v16, v15, s[{S_DBG}:{S_DBG+3}], 0 offen sc1")
stamp("c")
lds_wait(2, 4, 2, 13)
GV = 64
for s in range(19):
    a(f"ds_read_b64 {vr(GV+2*s,2)}, v{GA+s}")
for s in range(19):
    if s in (0, 8, 14):
        a(f"s_waitcnt lgkmcnt({ {0: 11, 8: 5, 14: 0}[s] })")
    a(f"v_add_f32 v{GV+2*s}, v{GV+2*s}, v{GV+2*s+1}")
KP = 112
for kap in range(4):
    for d in range(8):
        s0 = 3 - kap + 2 * d
        a(f"v_cvt_pk_bf16_f32 v{KP+8*kap+d}, v{GV+2*s0}, v{GV+2*(s0+1)}")
    for hq in range(2):
        a(f"ds_write_b128 v{vKW}, {vr(KP+8*kap+4*hq,4)} offset:{kap*KCS+16*hq}")
stamp("c")
a("s_waitcnt vmcnt(0)")
get_tag(16, 15)
a(f"s_lshr_b32 s{sT0}, s{sCH}, 4")
a(f"s_lshl_b32 s{sT0}, s{sT0}, 9")
a(f"s_add_u32 s{sG}, s{sT0}, {XF}")
a("v_and_b32 v14, 31, v0")
a("v_lshlrev_b32 v14, 4, v14")
poll_flags(14, f"s{sG}", 13)
stamp("c")
a(f"s_lshr_b32 s{sT0}, s{sCH}, 2")
a(f"s_lshl_b32 s{sT0}, s{sT0}, 14")
a(f"s_and_b32 s{sT1}, s{sCH}, 3")
a(f"s_lshl_b32 s{sT1}, s{sT1}, 4")
a(f"s_add_u32 s{sT0}, s{sT0}, s{sT1}")
a(f"s_lshl_b32 s{sT1}, s{sP}, 13")
a(f"s_add_u32 s{sT0}, s{sT0}, s{sT1}")
a(f"s_add_u32 s{sT0}, s{sT0}, {XNT}")
a(f"s_add_u32 s{sT1}, s{sT0}, 4096")
a("v_lshlrev_b32 v14, 6, v0")
a(f"buffer_load_dwordx4 v[16:19], v14, s[{S_WS}:{S_WS+3}], s{sT0} offen sc1")
a(f"buffer_load_dwordx4 v[20:23], v14, s[{S_WS}:{S_WS+3}], s{sT1} offen sc1")
a(f"s_lshl_b32 s{sT0}, s{sP}, 11")
a(f"s_add_u32 s{sT0}, s{sT0}, s{sCB}")
a(f"s_add_u32 s{sT0}, s{sT0}, {C_UL+480}")
a(f"v_add_u32 v14, s{sT0}, v1")
a("s_waitcnt vmcnt(0)")
a("ds_write_b128 v14, v[16:19]")
a("ds_write_b128 v14, v[20:23] offset:1024")
a("v_mov_b32 v14, 1")
lds_arrive(2, 5, 14)
lds_wait(2, 5, 2, 13)
stamp("c")
CA = 16
FR = [48, 112]


def conv_reads(rho, b):
    f = FR[b]
    for s in range(8):
        for hh in range(2):
            a(f"ds_read_b64 {vr(f+4*s+2*hh,2)}, v{vKA} offset:{64*(63-8*s-rho)+8*hh}")
        a(f"ds_read_b128 {vr(f+32+4*s,4)}, v{vUA} offset:{512*s+64*(7-rho)}")


conv_reads(0, 0)
for rho in range(4):
    f = FR[rho & 1]
    a("s_waitcnt lgkmcnt(0)")
    if rho == 0:
        for d in range(4):
            a(f"v_and_b32 v{f+d}, v{f+d}, v{MK+d}")
    if rho < 3:
        conv_reads(rho + 1, (rho + 1) & 1)
    seen = set()
    for s in range(8):
        for w in range(8 - s):
            t = s + w
            c = "0" if (rho == 0 and t not in seen) else vr(CA + 4 * t, 4)
            seen.add(t)
            a(f"v_mfma_f32_16x16x32_bf16 {vr(CA+4*t,4)}, {vr(f+4*s,4)}, {vr(f+32+4*w,4)}, {c}")
stamp("c")
a(f"s_add_u32 s{sT0}, s{sCB}, {C_TK}")
a(f"s_lshl_b32 s{sT1}, s{sP}, 12")
a(f"s_add_u32 s{sT2}, s{sT0}, s{sT1}")
a(f"v_add_u32 v12, s{sT2}, v1")
a(f"s_xor_b32 s{sT1}, s{sT1}, 4096")
a(f"s_add_u32 s{sT2}, s{sT0}, s{sT1}")
a(f"v_add_u32 v11, s{sT2}, v1")
a(f"s_cmp_eq_u32 s{sP}, 0")
a("s_cbranch_scc0 L_xp1")
for i in range(4):
    a(f"ds_write_b128 v12, {vr(CA+16+4*i,4)} offset:{1024*i}")
a("s_branch L_xdone")
a("L_xp1:")
a("s_nop 7")
for i in range(4):
    a(f"ds_write_b128 v12, {vr(CA+4*i,4)} offset:{1024*i}")
a("s_nop 1")
for i in range(16):
    a(f"v_mov_b32 v{CA+i}, v{CA+16+i}")
a("L_xdone:")
a("v_mov_b32 v14, 1")
lds_arrive(2, 6, 14)
a("v_and_b32 v8, 15, v0")
a("v_lshrrev_b32 v9, 4, v0")
a("v_lshlrev_b32 v10, 5, v8")
a("v_lshl_add_u32 v10, v9, 3, v10")
a(f"s_lshl_b32 s{sT0}, s{sP}, 11")
a(f"s_add_u32 s{sT0}, s{sT0}, s{sCB}")
a(f"s_add_u32 s{sT0}, s{sT0}, {C_UL+480}")
a(f"v_add_u32 v10, s{sT0}, v10")
for i in range(4):
    a(f"ds_read_b64 {vr(64+2*i,2)}, v10 offset:{512*i}")
lds_wait(2, 6, 2, 13)
for i in range(4):
    a(f"ds_read_b128 {vr(48+4*i,4)}, v11 offset:{1024*i}")
for i in range(4):
    for hf in range(2):
        a(f"v_lshlrev_b32 v{72+4*i+2*hf}, 16, v{64+2*i+hf}")
        a(f"v_and_b32 v{72+4*i+2*hf+1}, 0xffff0000, v{64+2*i+hf}")
for i in range(16):
    a(f"v_fma_f32 v{CA+i}, v{72+i}, s{sDS}, v{CA+i}")
a("s_waitcnt lgkmcnt(0)")
for i in range(16):
    a(f"v_add_f32 v{CA+i}, v{CA+i}, v{48+i}")
for i in range(4):
    for hf in range(2):
        a(f"v_cvt_pk_bf16_f32 v{64+2*i+hf}, v{CA+4*i+2*hf}, v{CA+4*i+2*hf+1}")
for pr in range(2):
    for hf in range(2):
        a(f"v_permlane16_swap_b32 v{64+4*pr+hf}, v{64+4*pr+2+hf}")
a(f"s_lshl_b32 s{sT0}, s{sCH}, 12")
a(f"s_lshl_b32 s{sT1}, s{sP}, 11")
a(f"s_add_u32 s{sT0}, s{sT0}, s{sT1}")
a(f"s_add_u32 s{sT0}, s{sT0}, {ST}")
for pr in range(2):
    a(f"buffer_store_dwordx4 {vr(64+4*pr,4)}, v1, s[{S_WS}:{S_WS+3}], s{sT0} offen offset:{1024*pr} sc1")
a(f"s_lshl_b32 s{sT0}, s{sXCD}, 1")
a(f"s_add_u32 s{sT0}, s{sT0}, s{sP}")
a(f"s_lshl_b32 s{sT0}, s{sT0}, 10")
a(f"s_and_b32 s{sT1}, s{sCH}, 63")
a(f"s_lshl_b32 s{sT1}, s{sT1}, 4")
a(f"s_add_u32 s{sT0}, s{sT0}, s{sT1}")
a(f"s_add_u32 s{sT0}, s{sT0}, {SF}")
a("s_waitcnt vmcnt(0)")
publish(f"s{sT0}", 14, 15)
stamp("c")
dump_stamps("c")
a("L_end:")
a("s_endpgm")
a.raw('.section .rodata,"a"\n.p2align 6')
a.raw(kernel_desc(KN, 256, 102, 256))
open(OUT, "w").write(a.text())
print("nops inserted:", a.nnop, "instrs:", sum(1 for i in a.items if not isinstance(i, str)), "lds", LDS_BYTES)
```

```python
import sys
from asmlib import *

DIAG = "--diag" in sys.argv
NOCONV = "--noconv" in sys.argv
NODMA = "--nodma" in sys.argv
NOMFMA = "--nomfma" in sys.argv
NOLDS = "--nolds" in sys.argv
OUT = [x for x in sys.argv[1:] if not x.startswith("--")][0]

EPOCH = 0
XF = 0x1000
SF = 0x5000
HF = 0x9000
XNT = 0x20000
ST = 0x220000
HB = 0x420000
STAMP = 0x1000000
WSB = 0x10000000
L_XN = 0
L_RING = 65536
L_CONV = 98304
KCS = 4160
C_KC = 0
C_TK = 4 * KCS
C_UL = C_TK + 8192
CSTR = C_UL + 4608
L_SYNC = L_CONV + 2 * CSTR
LDS_BYTES = L_SYNC + 256
W1RS = 2752
SPIN = 1 << 18

a = Asm()

sWAVE, sI1, sJ1, sI2, sJ2, sTAG = 3, 4, 5, 6, 7, 8
sG, sK, sRING, sCNT, sGB, sPEND = 10, 11, 12, 13, 14, 15
S_X, S_W1, S_W2, S_OUT, S_WS, S_DBG = 44, 48, 52, 56, 60, 64
sT0, sT1, sT2, sT3 = 42, 43, 68, 69
sKS = 70
sXCD, sSLOT, sSPIN = 81, 82, 83
STAMP0 = 84
nstamp = {"g": 0, "c": 0}


def srd(d, base, nbytes):
    a(f"s_mov_b32 s{d}, s{base}")
    a(f"s_and_b32 s{d+1}, s{base+1}, 0xffff")
    a(f"s_mov_b32 s{d+2}, {nbytes}")
    a(f"s_mov_b32 s{d+3}, 0x00020000")


def stamp(role):
    if not DIAG:
        return
    k = nstamp[role]; nstamp[role] += 1
    assert k < 16
    a("s_memrealtime s[100:101]")
    a("s_waitcnt lgkmcnt(0)")
    a(f"s_mov_b32 s{STAMP0+k}, s100")


def dump_stamps(role):
    if not DIAG:
        return
    a(f"s_lshl_b32 s{sT0}, s2, 3")
    a(f"s_add_u32 s{sT0}, s{sT0}, s{sWAVE}")
    a(f"s_lshl_b32 s{sT0}, s{sT0}, 6")
    a(f"s_add_u32 s{sT0}, s{sT0}, {STAMP}")
    a("v_mov_b32 v14, 0")
    for k in range(nstamp[role]):
        a(f"v_mov_b32 v15, s{STAMP0+k}")
        a(f"buffer_store_dword v15, v14, s[{S_WS}:{S_WS+3}], s{sT0} offen offset:{4*k}")
    a("s_waitcnt vmcnt(0)")


class VM:
    def __init__(self):
        self.q = []
    def issue(self, tag, n=1):
        self.q += [tag] * n
    def wait(self, tag):
        idx = max(i for i, t in enumerate(self.q) if t == tag)
        younger = len(self.q) - 1 - idx
        a(f"s_waitcnt vmcnt({min(younger, 63)})")
        self.q = self.q[idx + 1:]
    def drain(self):
        self.q = []


def lds_arrive(vsync, word, vone):
    a("s_mov_b64 exec, 1")
    a(f"ds_add_u32 v{vsync}, v{vone} offset:{4*word}")
    a("s_mov_b64 exec, -1")


def lds_wait(vsync, word, n, vtmp):
    lp, dn = a.label("LW"), a.label("LWD")
    a(f"s_mov_b32 s{sSPIN}, 0")
    a(f"{lp}:")
    a(f"ds_read_b32 v{vtmp}, v{vsync} offset:{4*word}")
    a(f"s_add_u32 s{sSPIN}, s{sSPIN}, 1")
    a("s_waitcnt lgkmcnt(0)")
    a(f"v_readfirstlane_b32 s{sT0}, v{vtmp}")
    a(f"s_cmp_gt_u32 s{sSPIN}, {SPIN*8}")
    a(f"s_cbranch_scc1 {dn}")
    a(f"s_cmp_lt_u32 s{sT0}, {n}")
    a(f"s_cbranch_scc1 {lp}")
    a(f"{dn}:")


def poll_flags(voff, soff, vtmp, sleep=1):
    lp, dn = a.label("PF"), a.label("PFD")
    a(f"s_mov_b32 s{sSPIN}, 0")
    a(f"{lp}:")
    a(f"buffer_load_dword v{vtmp}, v{voff}, s[{S_WS}:{S_WS+3}], {soff} offen sc1")
    a(f"s_add_u32 s{sSPIN}, s{sSPIN}, 1")
    a("s_waitcnt vmcnt(0)")
    a(f"v_cmp_ne_u32 vcc, s{sTAG}, v{vtmp}")
    a(f"s_cmp_gt_u32 s{sSPIN}, {SPIN}")
    a(f"s_cbranch_scc1 {dn}")
    a("s_cmp_eq_u64 vcc, 0")
    a(f"s_cbranch_scc1 {dn}")
    a(f"s_sleep {sleep}")
    a(f"s_branch {lp}")
    a(f"{dn}:")


def get_tag(vtmp, vzero):
    lp, dn = a.label("GT"), a.label("GTD")
    a(f"s_mov_b32 s{sSPIN}, 0")
    a(f"{lp}:")
    a(f"v_readfirstlane_b32 s{sTAG}, v{vtmp}")
    a(f"s_add_u32 s{sSPIN}, s{sSPIN}, 1")
    a(f"s_cmp_gt_u32 s{sSPIN}, {SPIN}")
    a(f"s_cbranch_scc1 {dn}")
    a(f"s_cmp_lg_u32 s{sTAG}, 0")
    a(f"s_cbranch_scc1 {dn}")
    a("s_sleep 1")
    a(f"buffer_load_dword v{vtmp}, v{vzero}, s[{S_DBG}:{S_DBG+3}], 0 offen sc1")
    a("s_waitcnt vmcnt(0)")
    a(f"s_branch {lp}")
    a(f"{dn}:")


def publish(soff, vtmp, vzero):
    a(f"v_mov_b32 v{vtmp}, s{sTAG}")
    a("s_mov_b64 exec, 1")
    a(f"buffer_store_dword v{vtmp}, v{vzero}, s[{S_WS}:{S_WS+3}], {soff} offen sc1")
    a("s_mov_b64 exec, -1")


def silu_block(src, tmp, n, dst=None, scale_in=None):
    dst = src if dst is None else dst
    for i in range(n):
        a(f"v_mul_f32 v{tmp+i}, s{sT3}, v{src+i}")
    for i in range(n):
        a(f"v_exp_f32 v{tmp+i}, v{tmp+i}")
    for i in range(n):
        a(f"v_add_f32 v{tmp+i}, 1.0, v{tmp+i}")
    for i in range(n):
        a(f"v_rcp_f32 v{tmp+i}, v{tmp+i}")
    for i in range(n):
        a(f"v_mul_f32 v{dst+i}, v{src+i}, v{tmp+i}")


a.raw(open("recurrent_scan__ssm_conv_s4d__dense_activation_silu__prompt.s.ref").read().split("; Override")[0].rstrip())
a.raw(f"; @launch grid=(256,1,1) block=(512,1,1) lds={LDS_BYTES}")
a.raw('.amdgcn_target "amdgcn-amd-amdhsa--gfx950"')
a.raw(".text")
a.raw(f".globl {KN}\n.p2align 8\n.type {KN},@function\n{KN}:")
a("s_cmp_ge_u32 s2, 256")
a("s_cbranch_scc1 L_end")
if DIAG:
    stamp("g")
    nstamp["c"] = 1
a("s_load_dwordx16 s[16:31], s[0:1], 0")
a("s_load_dwordx8 s[32:39], s[0:1], 64")
a("s_load_dwordx2 s[40:41], s[0:1], 96")
a("v_lshrrev_b32 v1, 6, v0")
a("v_and_b32 v0, 63, v0")
a(f"v_readfirstlane_b32 s{sWAVE}, v1")
a("v_lshlrev_b32 v1, 4, v0")
a(f"v_mov_b32 v2, {L_SYNC}")
a("v_mov_b32 v14, 0")
a("v_lshlrev_b32 v15, 2, v0")
a(f"v_add_u32 v15, {L_SYNC}, v15")
a(f"s_cmp_lg_u32 s{sWAVE}, 0")
a("s_cbranch_scc1 L_nozero")
a("ds_write_b32 v15, v14")
a("L_nozero:")
a(f"s_and_b32 s{sXCD}, s2, 7")
a(f"s_lshr_b32 s{sSLOT}, s2, 3")
a("s_waitcnt lgkmcnt(0)")
a("s_barrier")
srd(S_WS, 40, WSB)
srd(S_DBG, 38, 256)
a(f"s_cmp_ge_u32 s{sWAVE}, 4")
a("s_cbranch_scc1 L_conv")

vL16, vSYNC = 1, 2
vX, vD0, vD1, vA, vT0, vT1, vW2, vB0, vB1, vFL, vP = 3, 4, 5, 6, 7, 8, 9, 10, 11, 12, 13
ACC1, F0, F1, TMP, XR = 16, 48, 72, 96, 128
FB = [F0, F1]

a("s_setprio 1")
srd(S_X, 16, 2048 * 512 * 2)
srd(S_W1, 32, 512 * 1376 * 2)
a(f"s_lshr_b32 s{sT0}, s{sXCD}, 1")
a(f"s_lshl_b32 s{sT0}, s{sT0}, 3")
a(f"s_and_b32 s{sI1}, s{sSLOT}, 7")
a(f"s_add_u32 s{sI1}, s{sI1}, s{sT0}")
a(f"s_and_b32 s{sT0}, s{sXCD}, 1")
a(f"s_lshl_b32 s{sT0}, s{sT0}, 2")
a(f"s_lshr_b32 s{sJ1}, s{sSLOT}, 3")
a(f"s_add_u32 s{sJ1}, s{sJ1}, s{sT0}")
a("v_lshrrev_b32 v14, 4, v0")
a("v_sub_u32 v14, 0, v14")
a("v_xor_b32 v14, v14, v0")
a("v_and_b32 v14, 3, v14")
a("v_lshlrev_b32 v14, 4, v14")
a("v_lshrrev_b32 v15, 2, v0")
a(f"v_lshl_add_u32 v{vX}, v15, 10, v14")
a(f"s_lshl_b32 s{sT0}, s{sI1}, 16")
a(f"s_lshl_b32 s{sT1}, s{sWAVE}, 14")
a(f"s_add_u32 s{sT0}, s{sT0}, s{sT1}")
for k in range(4):
    a(f"s_add_u32 s{sT1}, s{sJ1}, {k}")
    a(f"s_and_b32 s{sT1}, s{sT1}, 3")
    a(f"s_lshl_b32 s{sKS+4+k}, s{sT1}, 12")
    a(f"s_lshl_b32 s{sT1}, s{sT1}, 8")
    a(f"s_add_u32 s{sKS+k}, s{sT0}, s{sT1}")
    for n4 in range(4):
        n = 4 * k + n4
        a(f"buffer_load_dwordx4 {vr(XR+4*n,4)}, v{vX}, s[{S_X}:{S_X+3}], s{sKS+k} offen offset:{64*n4}")
a("v_lshrrev_b32 v14, 4, v0")
a("v_and_b32 v14, 2, v14")
a("v_xor_b32 v14, v14, v0")
a("v_and_b32 v14, 3, v14")
a("v_lshlrev_b32 v14, 4, v14")
a(f"v_mul_u32_u24 v{vD0}, {W1RS}, v15")
a(f"v_add_u32 v{vD0}, v{vD0}, v14")
a(f"v_add_u32 v{vD1}, {16*W1RS-1024}, v{vD0}")
a(f"s_mul_i32 s{sT0}, s{sJ1}, 43")
a(f"s_add_u32 s{sT1}, s{sT0}, 43")
a(f"s_lshr_b32 s{sT0}, s{sT0}, 3")
a(f"s_lshr_b32 s{sT1}, s{sT1}, 3")
a(f"s_add_u32 s{sT0}, s{sT0}, s{sWAVE}")
a(f"s_lshl_b32 s{sG}, s{sT0}, 6")
a(f"s_add_u32 s{sT0}, s{sT0}, 4")
a(f"s_cmp_lt_u32 s{sT0}, s{sT1}")
a(f"s_cselect_b32 s{sGB}, s{sT0}, 0")
a(f"s_and_b32 s{sT0}, s{sSLOT}, 7")
a(f"s_mul_i32 s{sK}, s{sT0}, {2*32*W1RS}")
a(f"s_lshl_b32 s{sT2}, s{sT0}, 11")
a(f"s_lshl_b32 s{sRING}, s{sWAVE}, 13")
a(f"s_add_u32 s{sRING}, s{sRING}, {L_RING}")


def w1_refill(slot):
    a(f"s_add_u32 m0, s{sRING}, {slot*2048}")
    a(f"s_add_u32 s{sT1}, s{sG}, s{sK}")
    a(f"buffer_load_dwordx4 v{vD0}, s[{S_W1}:{S_W1+3}], s{sT1} offen lds")
    a(f"buffer_load_dwordx4 v{vD1}, s[{S_W1}:{S_W1+3}], s{sT1} offen offset:1024 lds")
    a(f"s_add_u32 s{sK}, s{sK}, {32*W1RS}")
    a(f"s_cmp_eq_u32 s{sK}, {512*W1RS}")
    a(f"s_cselect_b32 s{sK}, 0, s{sK}")


for sl in range(4):
    w1_refill(sl)
srd(S_W2, 34, 512 * 1376 * 2)
srd(S_OUT, 36, 2048 * 512 * 2)
a(f"s_lshl_b32 s{sI2}, s{sXCD}, 2")
a(f"s_and_b32 s{sT0}, s{sSLOT}, 3")
a(f"s_add_u32 s{sI2}, s{sI2}, s{sT0}")
a(f"s_lshr_b32 s{sJ2}, s{sSLOT}, 2")
a("v_and_b32 v14, 15, v0")
a("v_lshrrev_b32 v15, 2, v14")
a("v_sub_u32 v15, 0, v15")
a(f"v_lshrrev_b32 v{vP}, 4, v0")
a(f"v_xor_b32 v15, v15, v{vP}")
a("v_and_b32 v15, 3, v15")
a("v_lshl_add_u32 v15, v14, 2, v15")
a(f"v_lshlrev_b32 v{vA}, 4, v15")
a(f"v_add_u32 v{vA}, s{sT2}, v{vA}")
a("v_lshrrev_b32 v14, 2, v14")
a(f"v_lshl_add_u32 v15, v{vP}, 3, v14")
a("v_lshlrev_b32 v15, 6, v15")
a(f"v_and_b32 v{vT0}, 1, v{vP}")
a(f"v_lshl_add_u32 v15, v{vT0}, 5, v15")
a(f"v_and_b32 v{vT0}, 3, v0")
a(f"v_lshl_add_u32 v15, v{vT0}, 3, v15")
a(f"v_add_u32 v{vT0}, s{sRING}, v15")
a(f"v_xor_b32 v{vT1}, 32, v{vT0}")
a(f"v_lshl_add_u32 v15, v{vP}, 2, v14")
a("v_lshlrev_b32 v15, 7, v15")
a("v_lshrrev_b32 v14, 1, v14")
a("v_lshl_add_u32 v15, v14, 6, v15")
a("v_and_b32 v14, 3, v0")
a("v_lshl_add_u32 v15, v14, 4, v15")
a(f"v_add_u32 v{vB0}, s{sRING}, v15")
a(f"v_xor_b32 v{vB1}, 64, v{vB0}")
a("v_lshrrev_b32 v14, 2, v0")
a("v_and_b32 v14, 4, v14")
a("v_xor_b32 v14, v14, v0")
a("v_and_b32 v14, 7, v14")
a("v_lshlrev_b32 v14, 4, v14")
a("v_lshrrev_b32 v15, 3, v0")
a(f"v_lshl_add_u32 v{vW2}, v15, 10, v14")
for i in range(32):
    a(f"v_mov_b32 v{ACC1+i}, 0")
SUM, SQ, ONES = TMP, TMP + 2, TMP + 4
a(f"v_mov_b32 v{ONES}, 0x3f803f80")
for i in range(4):
    a(f"v_mov_b32 v{SUM+i}, 0")
for n in range(16):
    a(f"s_waitcnt vmcnt({8 + 15 - n})")
    for d in range(4):
        r = XR + 4 * n + d
        a(f"v_dot2_f32_bf16 v{SUM+(d&1)}, v{r}, v{ONES}, v{SUM+(d&1)}")
        a(f"v_dot2_f32_bf16 v{SQ+(d&1)}, v{r}, v{r}, v{SQ+(d&1)}")
stamp("g")
a(f"v_add_f32 v{SUM}, v{SUM}, v{SUM+1}")
a(f"v_add_f32 v{SQ}, v{SQ}, v{SQ+1}")
for qp in ("[1,0,3,2]", "[2,3,0,1]"):
    a(f"v_add_f32_dpp v{SUM}, v{SUM}, v{SUM} quad_perm:{qp} row_mask:0xf bank_mask:0xf")
    a(f"v_add_f32_dpp v{SQ}, v{SQ}, v{SQ} quad_perm:{qp} row_mask:0xf bank_mask:0xf")
MEAN, VAR, RS, NMR = TMP + 5, TMP + 6, TMP + 7, TMP + 8
a(f"v_mul_f32 v{MEAN}, 0x3b000000, v{SUM}")
a(f"v_mul_f32 v{VAR}, 0x3b000000, v{SQ}")
a(f"v_fma_f32 v{VAR}, -v{MEAN}, v{MEAN}, v{VAR}")
a(f"v_max_f32 v{VAR}, 0, v{VAR}")
a(f"v_cvt_pk_bf16_f32 v{MEAN}, v{MEAN}, v{VAR}")
a(f"v_and_b32 v{VAR}, 0xffff0000, v{MEAN}")
a(f"v_lshlrev_b32 v{MEAN}, 16, v{MEAN}")
a(f"v_add_f32 v{VAR}, 0x3727c5ac, v{VAR}")
a(f"v_cvt_pk_bf16_f32 v{VAR}, v{VAR}, v{VAR}")
a(f"v_lshlrev_b32 v{VAR}, 16, v{VAR}")
a(f"v_sqrt_f32 v{VAR}, v{VAR}")
a(f"v_cvt_pk_bf16_f32 v{VAR}, v{VAR}, v{VAR}")
a(f"v_lshlrev_b32 v{VAR}, 16, v{VAR}")
a(f"v_rcp_f32 v{RS}, v{VAR}")
a(f"v_mul_f32 v{NMR}, v{MEAN}, v{RS}")
a(f"s_lshl_b32 s{sT0}, s{sWAVE}, 14")
a(f"v_add_u32 v{vP}, s{sT0}, v{vL16}")
for k in range(4):
    a(f"v_add_u32 v{vFL}, s{sKS+4+k}, v{vP}")
    for n4 in range(4):
        n = 4 * k + n4
        for d in range(4):
            r = XR + 4 * n + d
            t = TMP + 12 + 2 * d
            a(f"v_lshlrev_b32 v{t}, 16, v{r}")
            a(f"v_and_b32 v{t+1}, 0xffff0000, v{r}")
        for d in range(4):
            t = TMP + 12 + 2 * d
            a(f"v_fma_f32 v{t}, v{t}, v{RS}, -v{NMR}")
            a(f"v_fma_f32 v{t+1}, v{t+1}, v{RS}, -v{NMR}")
        for d in range(4):
            t = TMP + 12 + 2 * d
            a(f"v_cvt_pk_bf16_f32 v{XR+4*n+d}, v{t}, v{t+1}")
        a(f"ds_write_b128 v{vFL}, {vr(XR+4*n,4)} offset:{1024*n4}")
a("v_mov_b32 v14, 1")
lds_arrive(vSYNC, 0, 14)
a("v_mov_b32 v15, 0")
a(f"buffer_load_dword v{TMP+31}, v15, s[{S_DBG}:{S_DBG+3}], 0 offen sc1")
a(f"s_lshl_b32 s{sT0}, s{sJ1}, 1")
a(f"s_lshr_b32 s{sT1}, s{sWAVE}, 1")
a(f"s_add_u32 s{sT0}, s{sT0}, s{sT1}")
a(f"s_lshl_b32 s{sT0}, s{sT0}, 10")
a(f"s_and_b32 s{sT1}, s{sWAVE}, 1")
a(f"s_lshl_b32 s{sT1}, s{sT1}, 1")
tq, tm, tb, tx = TMP + 12, TMP + 13, TMP + 14, TMP + 15
a(f"v_lshrrev_b32 v{tq}, 5, v0")
a(f"v_add_u32 v{tq}, s{sT1}, v{tq}")
a(f"v_bfe_u32 v{tb}, v0, 1, 1")
a(f"v_lshlrev_b32 v{tb}, 14, v{tb}")
a(f"v_bfe_u32 v{tx}, v0, 4, 1")
a(f"v_lshl_add_u32 v{tb}, v{tx}, 3, v{tb}")
a(f"v_add_u32 v{tb}, s{sT0}, v{tb}")
a(f"v_and_b32 v{tm}, 1, v0")
a(f"v_lshlrev_b32 v{tm}, 3, v{tm}")
a(f"v_bfe_u32 v{tx}, v0, 2, 2")
a(f"v_add_u32 v{tm}, v{tm}, v{tx}")
for hh in range(2):
    if hh:
        a(f"v_add_u32 v{tm}, 4, v{tm}")
    a(f"v_lshrrev_b32 v{tx}, 2, v{tm}")
    a(f"v_sub_u32 v{tx}, 0, v{tx}")
    a(f"v_xor_b32 v{tx}, v{tx}, v{tq}")
    a(f"v_and_b32 v{tx}, 3, v{tx}")
    a(f"v_lshl_add_u32 v{tx}, v{tm}, 2, v{tx}")
    a(f"v_lshl_add_u32 v{TMP+16+hh}, v{tx}, 4, v{tb}")
a(f"v_lshrrev_b32 v{tx}, 4, v0")
a(f"v_lshlrev_b32 v{tx}, 14, v{tx}")
a(f"v_and_b32 v{tm}, 15, v0")
a(f"v_lshl_add_u32 v{TMP+18}, v{tm}, 4, v{tx}")
a(f"s_lshl_b32 s{sT0}, s{sJ1}, 2")
a(f"s_add_u32 s{sT0}, s{sT0}, s{sWAVE}")
a(f"s_lshl_b32 s{sT1}, s{sT0}, 16")
a(f"s_lshl_b32 s{sT2}, s{sI1}, 9")
a(f"s_add_u32 s{sT1}, s{sT1}, s{sT2}")
a(f"s_add_u32 s{sT3}, s{sT1}, {XNT}")
a(f"s_lshl_b32 s{sT0}, s{sT0}, 5")
a(f"s_add_u32 s{sT0}, s{sT0}, s{sI1}")
a(f"s_lshl_b32 s{sT0}, s{sT0}, 4")
a(f"s_add_u32 s{sPEND}, s{sT0}, {XF}")
stamp("g")
lds_wait(vSYNC, 0, 4, 14)
stamp("g")
for inst in range(2):
    for hh in range(2):
        a(f"ds_read_b64_tr_b16 {vr(TMP+20+4*inst+2*hh,2)}, v{TMP+16+hh} offset:{32768*inst}")


def g1_reads(b, slot):
    f = FB[b]
    for ct in range(2):
        for hh in range(2):
            a(f"ds_read_b64_tr_b16 {vr(f+4*ct+2*hh,2)}, v{vT1 if ct else vT0} offset:{slot*2048+256*hh}")
    for rt in range(4):
        a(f"ds_read_b128 {vr(f+8+4*rt,4)}, v{vA} offset:{16384*rt}")
    a(f"v_add_u32 v{vA}, 1024, v{vA}")
    a(f"v_and_b32 v{vA}, 0x3fff, v{vA}")


a("s_waitcnt vmcnt(7)")
g1_reads(0, 0)
a("s_waitcnt lgkmcnt(8)")
for inst in range(2):
    a(f"buffer_store_dwordx4 {vr(TMP+20+4*inst,4)}, v{TMP+18}, s[{S_WS}:{S_WS+3}], s{sT3} offen offset:{256*inst} sc1")
a(f"s_and_b32 s{sT0}, s{sSLOT}, 3")
a(f"s_lshl_b32 s{sT0}, s{sT0}, 1")
a(f"s_add_u32 s{sT0}, s{sT0}, s{sJ2}")
for n in range(8):
    a(f"s_add_u32 s{sT1}, s{sT0}, {n}")
    a(f"s_and_b32 s{sT1}, s{sT1}, 7")
    a(f"s_mul_i32 s{sT1}, s{sT1}, 43")
    a(f"s_lshr_b32 s{sT1}, s{sT1}, 3")
    a(f"s_add_u32 s{sKS+n}, s{sT1}, s{sWAVE}")
for m in range(2):
    a(f"s_add_u32 s{sT1}, s{sT0}, s{sWAVE}")
    a(f"s_add_u32 s{sT1}, s{sT1}, {4*m}")
    a(f"s_and_b32 s{sT1}, s{sT1}, 7")
    a(f"s_mul_i32 s{sT1}, s{sT1}, 43")
    a(f"s_lshr_b32 s{sT1}, s{sT1}, 3")
    a(f"s_add_u32 s{sKS+8+m}, s{sT1}, 4")
a(f"s_lshl_b32 s{sT1}, s{sWAVE}, 4")
a(f"s_add_u32 s{sT1}, s{sT1}, 15")
a(f"s_min_u32 s{sT1}, s{sT1}, 42")
a(f"s_cmp_eq_u32 s{sWAVE}, 3")
a(f"s_cselect_b32 s{sKS+10}, 0x10000, s{sT1}")


def w2_dma(n, half, part=None):
    us = range(4) if part is None else range(2 * part, 2 * part + 2)
    a(f"s_add_u32 m0, s{sRING}, {half*4096}")
    a(f"s_lshl_b32 s{sT1}, s{sKS+n}, 15")
    a(f"s_lshl_b32 s{sT2}, s{sJ2}, 7")
    a(f"s_add_u32 s{sT1}, s{sT1}, s{sT2}")
    for u in us:
        if u:
            a(f"s_add_u32 s{sT2}, s{sT1}, {7168*u}")
        so = sT2 if u else sT1
        a(f"buffer_load_dwordx4 v{vW2}, s[{S_W2}:{S_W2+3}], s{so} offen offset:{1024*u} lds")


def g1_step(n4, mode):
    b = n4 & 1
    f = FB[b]
    last = (mode == "w2" and n4 == 3)
    a("s_waitcnt lgkmcnt(0)")
    if not last:
        a("s_waitcnt vmcnt(4)")
        if not (NOLDS and mode == "w1"):
            g1_reads(b ^ 1, (n4 + 1) & 3)
    k = 0
    for ct in range(2):
        for rt in range(4):
            ac = ACC1 + (ct * 4 + rt) * 4
            if not (NOMFMA and mode == "w1"):
                a(f"v_mfma_f32_16x16x32_bf16 {vr(ac,4)}, {vr(f+4*ct,4)}, {vr(f+8+4*rt,4)}, {vr(ac,4)}")
            k += 1
            if k == 2:
                if mode == "w1":
                    if not NODMA:
                        w1_refill(n4)
                else:
                    w2_dma(n4 >> 1, n4 >> 1, n4 & 1)


a("L_group:")
a(f"s_mov_b32 s{sCNT}, 0")
a("L_g1loop:")
a(f"s_cmp_eq_u32 s{sCNT}, 3")
a(f"s_lshl_b32 s{sT0}, s{sGB}, 6")
a(f"s_cmp_eq_u32 s{sCNT}, 3")
a(f"s_cselect_b32 s{sT3}, s{sG}, s{sT3}")
a(f"s_cselect_b32 s{sG}, s{sT0}, s{sG}")
for n4 in range(4):
    g1_step(n4, "w1")
if DIAG:
    k0 = nstamp["g"]; nstamp["g"] += 3
    a("s_memrealtime s[100:101]")
    a("s_waitcnt lgkmcnt(0)")
    for i in range(3):
        a(f"s_cmp_eq_u32 s{sCNT}, {i}")
        a(f"s_cselect_b32 s{STAMP0+k0+i}, s100, s{STAMP0+k0+i}")
a(f"s_cmp_lg_u32 s{sCNT}, 1")
a("s_cbranch_scc1 L_nopend")
a("s_waitcnt vmcnt(8)")
a(f"s_cmp_lg_u32 s{sPEND}, {0}")
a("v_mov_b32 v15, 0")
get_tag(TMP + 31, 15)
publish(f"s{sPEND}", 14, 15)
a("L_nopend:")
a(f"s_add_u32 s{sCNT}, s{sCNT}, 1")
a(f"s_cmp_lt_u32 s{sCNT}, 3")
a("s_cbranch_scc1 L_g1loop")
a(f"s_cmp_eq_u32 s{sCNT}, 4")
a("s_cbranch_scc1 L_epi")
a(f"s_cmp_lg_u32 s{sGB}, 0")
a("s_cbranch_scc1 L_g1loop")
a(f"s_mov_b32 s{sT3}, s{sG}")
for n4 in range(4):
    g1_step(n4, "w2")
a("L_epi:")
stamp("g")
a(f"s_lshr_b32 s{sT0}, s{sT3}, 6")
a(f"s_mul_i32 s{sT1}, s{sI1}, 43")
a(f"s_add_u32 s{sT1}, s{sT1}, s{sT0}")
a(f"s_lshl_b32 s{sT1}, s{sT1}, 12")
a(f"s_add_u32 s9, s{sT1}, {HB}")
a(f"s_lshl_b32 s{sT1}, s{sI1}, 6")
a(f"s_add_u32 s{sT1}, s{sT1}, s{sT0}")
a(f"s_lshl_b32 s{sT1}, s{sT1}, 4")
a(f"s_add_u32 s{sPEND}, s{sT1}, {HF}")
a(f"s_mov_b32 s{sT3}, 0xbfb8aa3b")
for rt in range(4):
    for ct in range(2):
        silu_block(ACC1 + (ct * 4 + rt) * 4, TMP + 4 * ct, 4, dst=TMP + 8 + 4 * ct)
    pk = TMP + 16 + 4 * (rt & 1)
    for ct in range(2):
        for hf in range(2):
            a(f"v_cvt_pk_bf16_f32 v{pk+2*ct+hf}, v{TMP+8+4*ct+2*hf}, v{TMP+8+4*ct+2*hf+1}")
    a(f"buffer_store_dwordx4 {vr(pk,4)}, v{vL16}, s[{S_WS}:{S_WS+3}], s9 offen offset:{1024*rt} sc1")
a(f"s_cmp_eq_u32 s{sCNT}, 4")
a("s_cbranch_scc0 L_gemm2")
for i in range(32):
    a(f"v_mov_b32 v{ACC1+i}, 0")
a(f"s_mov_b32 s{sGB}, 0")
a("s_branch L_group")

a("L_gemm2:")
stamp("g")
a("v_mov_b32 v14, 1")
lds_arrive(vSYNC, 1, 14)
ACC2, HFR, WR = 16, 80, 128
vH = 3
vm = VM()
vm.issue("D0", 4); vm.issue("D1", 4); vm.issue("S", 4)
for rp in range(4):
    a(f"s_add_u32 s{sT0}, s{sWAVE}, {rp}")
    a(f"s_and_b32 s{sT0}, s{sT0}, 3")
    a(f"s_lshl_b32 s{sT0}, s{sT0}, 10")
    a(f"v_add_u32 v{vH+rp}, s{sT0}, v{vL16}")
a(f"s_and_b32 s{sT0}, s{sSLOT}, 3")
a(f"s_lshl_b32 s{sT0}, s{sT0}, 1")
a(f"s_add_u32 s{sT0}, s{sT0}, s{sJ2}")
a(f"v_add_u32 v14, s{sT0}, v0")
a("v_and_b32 v14, 7, v14")
a("v_mul_u32_u24 v14, 43, v14")
a("v_lshrrev_b32 v14, 3, v14")
a(f"v_add_u32 v14, s{sWAVE}, v14")
a(f"v_lshlrev_b32 v{vFL}, 4, v14")
a(f"s_lshl_b32 s{sG}, s{sI2}, 10")
a(f"s_add_u32 s{sG}, s{sG}, {HF}")
a(f"s_mul_i32 s{sK}, s{sI2}, {43*4096}")
a(f"s_add_u32 s{sK}, s{sK}, {HB}")


def w2_reads(n_set, half):
    w = WR + 16 * n_set
    for ct in range(4):
        for hh in range(2):
            a(f"ds_read_b64_tr_b16 {vr(w+4*ct+2*hh,2)}, v{vB1 if ct>>1 else vB0} offset:{half*4096+8*(ct&1)+2048*hh}")


def h_loads(n, hs):
    a(f"s_lshl_b32 s{sT1}, s{sKS+n}, 12")
    a(f"s_add_u32 s{sT1}, s{sT1}, s{sK}")
    for rp in range(4):
        a(f"buffer_load_dwordx4 {vr(HFR+16*hs+4*rp,4)}, v{vH+rp}, s[{S_WS}:{S_WS+3}], s{sT1} offen sc1")
    vm.issue(f"H{n}", 4)


for n in range(8):
    vm.wait(f"D{n}")
    if n == 2:
        a("v_mov_b32 v15, 0")
        publish(f"s{sPEND}", 14, 15)
        vm.issue("F")
    w2_reads(n, n & 1)
    a("s_waitcnt lgkmcnt(0)")
    w2_dma(n + 2, n & 1)
    vm.issue(f"D{n+2}", 4)
stamp("g")
poll_flags(vFL, f"s{sG}", vP)
vm.drain()
stamp("g")


def g2_mfma(n, ws, hs, first):
    for rp in range(4):
        for ct in range(4):
            ac = ACC2 + (ct * 4 + rp) * 4
            c = "0" if first else vr(ac, 4)
            a(f"v_mfma_f32_16x16x32_bf16 {vr(ac,4)}, {vr(WR+16*ws+4*ct,4)}, {vr(HFR+16*hs+4*rp,4)}, {c}")


for n in range(3):
    h_loads(n, n)
for n in range(8):
    vm.wait(f"H{n}")
    g2_mfma(n, n, n % 3, n == 0)
    if n + 3 < 8:
        h_loads(n + 3, n % 3)
    if n in (0, 1):
        w2_reads(n, n & 1)
        if n == 0:
            a("s_waitcnt lgkmcnt(0)")
            w2_dma(10, 0)
            vm.issue("D10", 4)
    if n == 4:
        vm.wait("D10") if "D10" in vm.q else None
        w2_reads(2, 0)
a(f"s_lshl_b32 s{sT0}, s{sKS+8}, 4")
a(f"s_lshl_b32 s{sT1}, s{sKS+9}, 4")
a(f"s_lshl_b32 s{sT2}, s{sKS+10}, 4")
a(f"s_cmp_eq_u32 s{sWAVE}, 3")
a(f"s_cselect_b32 s{sT2}, s{sT0}, s{sT2}")
a(f"v_mov_b32 v{vFL}, s{sT0}")
a(f"v_writelane_b32 v{vFL}, s{sT1}, 1")
a(f"v_writelane_b32 v{vFL}, s{sT2}, 2")
stamp("g")
poll_flags(vFL, f"s{sG}", vP)
vm.drain()
for n in range(8, 11):
    h_loads(n, n - 8)
XT, SR = WR + 48, WR + 56
vXO, vSO = WR + 64, WR + 65
a("v_and_b32 v14, 15, v0")
a("v_lshrrev_b32 v15, 4, v0")
a("v_lshlrev_b32 v15, 4, v15")
a(f"v_lshl_add_u32 v{vXO}, v14, 10, v15")
a(f"s_lshl_b32 s9, s{sI2}, 16")
a(f"s_lshl_b32 s{sT1}, s{sWAVE}, 14")
a(f"s_add_u32 s9, s9, s{sT1}")
a(f"s_lshl_b32 s{sT1}, s{sJ2}, 7")
a(f"s_add_u32 s9, s9, s{sT1}")
for hf in range(2):
    a(f"buffer_load_dwordx4 {vr(XT+4*hf,4)}, v{vXO}, s[{S_X}:{S_X+3}], s9 offen offset:{64*hf}")
vm.issue("X", 2)
a("s_waitcnt lgkmcnt(0)")
for n in range(8, 11):
    vm.wait(f"H{n}")
    g2_mfma(n, n - 8, n - 8, False)
a(f"s_lshl_b32 s{sT0}, s{sJ2}, 1")
a(f"s_lshr_b32 s{sT1}, s{sI2}, 4")
a(f"s_add_u32 s{sT0}, s{sT0}, s{sT1}")
a(f"s_lshl_b32 s{sT0}, s{sT0}, 10")
a(f"s_add_u32 s{sG}, s{sT0}, {SF}")
stamp("g")
if not NOCONV:
    poll_flags(vL16, f"s{sG}", vP)
else:
    a("s_waitcnt vmcnt(0)")
vm.drain()
a("v_lshrrev_b32 v14, 1, v0")
a("v_and_b32 v15, 1, v0")
a("v_lshlrev_b32 v15, 9, v15")
a(f"v_lshl_add_u32 v{vSO}, v14, 12, v15")
a(f"s_lshl_b32 s{sT0}, s{sI2}, 2")
a(f"s_add_u32 s{sT0}, s{sT0}, s{sWAVE}")
a(f"s_lshr_b32 s{sT1}, s{sT0}, 5")
a(f"s_lshl_b32 s{sT1}, s{sT1}, 10")
a(f"s_bfe_u32 s{sT2}, s{sT0}, 0x10004")
a(f"s_lshl_b32 s{sT2}, s{sT2}, 8")
a(f"s_add_u32 s{sT1}, s{sT1}, s{sT2}")
a(f"s_and_b32 s{sT0}, s{sT0}, 15")
a(f"s_lshl_b32 s{sT0}, s{sT0}, 4")
a(f"s_add_u32 s{sT1}, s{sT1}, s{sT0}")
a(f"s_lshl_b32 s{sT0}, s{sJ2}, 18")
a(f"s_add_u32 s{sT1}, s{sT1}, s{sT0}")
a(f"s_add_u32 s{sT1}, s{sT1}, {ST}")
a(f"s_add_u32 s{sT2}, s{sT1}, {32*4096}")
a(f"buffer_load_dwordx4 {vr(SR,4)}, v{vSO}, s[{S_WS}:{S_WS+3}], s{sT1} offen sc1")
a(f"buffer_load_dwordx4 {vr(SR+4,4)}, v{vSO}, s[{S_WS}:{S_WS+3}], s{sT2} offen sc1")
lds_wait(vSYNC, 1, 4, 14)
for rp in range(1, 4):
    a(f"s_add_u32 s{sT0}, s{sWAVE}, {rp}")
    a(f"s_and_b32 s{sT0}, s{sT0}, 3")
    a(f"s_mul_i32 s{sT0}, s{sT0}, 12288")
    a(f"v_add_u32 v14, s{sT0}, v{vL16}")
    for ct in range(4):
        a(f"ds_write_b128 v14, {vr(ACC2+(ct*4+rp)*4,4)} offset:{(rp-1)*4096+ct*1024}")
a("v_mov_b32 v14, 1")
lds_arrive(vSYNC, 2, 14)
a(f"v_add_u32 v15, s{sRING}, v{vL16}")
a("s_waitcnt vmcnt(0)")
a(f"ds_write_b128 v15, {vr(SR,4)}")
a(f"ds_write_b128 v15, {vr(SR+4,4)} offset:1024")
a("v_lshrrev_b32 v14, 4, v0")
a("v_lshlrev_b32 v14, 8, v14")
a("v_and_b32 v15, 15, v0")
a("v_lshl_add_u32 v14, v15, 3, v14")
a(f"v_add_u32 v14, s{sRING}, v14")
for ct in range(4):
    a(f"ds_read_b64_tr_b16 {vr(SR+2*ct,2)}, v14 offset:{128*(ct&1)+1024*(ct>>1)}")
a(f"s_mul_i32 s{sT1}, s{sWAVE}, 12288")
a(f"v_add_u32 v15, s{sT1}, v{vL16}")
lds_wait(vSYNC, 2, 4, 14)
PR = HFR
for sidx in range(3):
    for ct in range(4):
        a(f"ds_read_b128 {vr(PR+16*sidx+4*ct,4)}, v15 offset:{sidx*4096+ct*1024}")
a(f"s_mov_b32 s{sT3}, 0xbfb8aa3b")
O = WR
for sidx in range(3):
    a(f"s_waitcnt lgkmcnt({8-4*sidx})")
    for ct in range(4):
        for r in range(4):
            src = (ACC2 + ct * 16 + r) if sidx == 0 else (O + 4 * ct + r)
            a(f"v_add_f32 v{O+4*ct+r}, v{src}, v{PR+16*sidx+4*ct+r}")
silu_block(O, O + 16, 16)
for ct in range(4):
    for hf in range(2):
        sdw = SR + 2 * ct + hf
        xdw = XT + 2 * ct + hf
        t = O + 16 + 4 * (2 * (ct & 1) + hf)
        a(f"v_lshlrev_b32 v{t}, 16, v{sdw}")
        a(f"v_and_b32 v{t+1}, 0xffff0000, v{sdw}")
        a(f"v_lshlrev_b32 v{t+2}, 16, v{xdw}")
        a(f"v_and_b32 v{t+3}, 0xffff0000, v{xdw}")
        a(f"v_fma_f32 v{t}, v{t}, v{O+4*ct+2*hf}, v{t+2}")
        a(f"v_fma_f32 v{t+1}, v{t+1}, v{O+4*ct+2*hf+1}, v{t+3}")
        a(f"v_cvt_pk_bf16_f32 v{xdw}, v{t}, v{t+1}")
for hf in range(2):
    a(f"buffer_store_dwordx4 {vr(XT+4*hf,4)}, v{vXO}, s[{S_OUT}:{S_OUT+3}], s9 offen offset:{64*hf}")
stamp("g")
dump_stamps("g")
a("s_endpgm")

a("L_conv:")
sCH, sP, sCB, sDT, sDS = 4, 5, 6, 7, 9
srd(44, 18, 512 * 128 * 2)
srd(48, 20, 512 * 128 * 2)
srd(52, 22, 512 * 128 * 2)
srd(56, 24, 512 * 128 * 2)
a(f"s_lshl_b32 s{sT0}, s{sXCD}, 5")
a(f"s_add_u32 s{sT0}, s{sT0}, s{sSLOT}")
a(f"s_lshl_b32 s{sT1}, s{sT0}, 2")
a(f"s_load_dword s{sDT}, s[26:27], s{sT1}")
a(f"s_load_dword s{sDS}, s[28:29], s{sT1}")
a(f"s_bfe_u32 s{sT2}, s{sWAVE}, 0x10001")
a(f"s_lshl_b32 s{sCH}, s{sT0}, 1")
a(f"s_add_u32 s{sCH}, s{sCH}, s{sT2}")
a(f"s_and_b32 s{sP}, s{sWAVE}, 1")
a(f"s_mul_i32 s{sCB}, s{sT2}, {CSTR}")
a(f"s_add_u32 s{sCB}, s{sCB}, {L_CONV}")
a(f"s_lshl_b32 s{sT0}, s{sCH}, 8")
a(f"s_lshl_b32 s{sT1}, s{sP}, 7")
a(f"s_add_u32 s{sT0}, s{sT0}, s{sT1}")
a("v_lshlrev_b32 v3, 1, v0")
for k in range(4):
    a(f"buffer_load_ushort v{4+k}, v3, s[{44+4*k}:{47+4*k}], s{sT0} offen")
a("v_mov_b32 v15, 0")
a("s_cmp_lg_u32 s2, 0")
a("s_cbranch_scc1 L_noepoch")
a(f"s_cmp_lg_u32 s{sWAVE}, 4")
a("s_cbranch_scc1 L_noepoch")
a(f"buffer_load_dword v14, v15, s[{S_WS}:{S_WS+3}], 0 offen sc1")
a("s_waitcnt vmcnt(0)")
a("v_add_u32 v14, 0x9e3779b8, v14")
a("v_or_b32 v14, 1, v14")
a("s_mov_b64 exec, 1")
a(f"buffer_store_dword v14, v15, s[{S_DBG}:{S_DBG+3}], 0 offen sc1")
a(f"buffer_store_dword v14, v15, s[{S_WS}:{S_WS+3}], 0 offen sc1")
a("s_mov_b64 exec, -1")
a("L_noepoch:")
if NOCONV:
    a("s_endpgm")
GA = 200
MK = 220
vKA, vUA, vTKa, vTKb, vTK2, vTK0, vKW, vST = 224, 225, 226, 227, 228, 229, 230, 231
a(f"s_lshl_b32 s{sT0}, s{sP}, 6")
a(f"v_add_u32 v8, s{sT0}, v0")
a("v_lshlrev_b32 v9, 4, v8")
a("v_sub_u32 v9, 0x7ff, v9")
a(f"s_add_u32 s{sT1}, s{sCB}, {C_TK}")
a(f"s_movk_i32 s{sT2}, 0x100")
for s in range(19):
    if s:
        a(f"v_subrev_u32 v10, {s}, v9")
    else:
        a("v_mov_b32 v10, v9")
    a("v_max_i32 v10, 0, v10")
    a("v_cvt_f32_u32 v11, v10")
    a("v_cvt_pk_bf16_f32 v11, v11, v11")
    a("v_and_b32 v11, 0xffff, v11")
    a("v_subrev_u32 v11, 0x4280, v11")
    a(f"v_cmp_gt_u32 vcc, s{sT2}, v10")
    a("v_cndmask_b32 v11, v11, v10, vcc")
    a(f"v_lshl_add_u32 v{GA+s}, v11, 3, s{sT1}")
a(f"v_lshlrev_b32 v{vKW}, 5, v8")
a(f"v_add_u32 v{vKW}, s{sCB}, v{vKW}")
a("v_and_b32 v8, 15, v0")
a("v_lshrrev_b32 v9, 4, v0")
a("v_lshlrev_b32 v10, 3, v9")
a("v_sub_u32 v10, v8, v10")
a("v_add_u32 v10, 16, v10")
a(f"s_mul_i32 s{sT0}, s{sP}, 100")
a(f"v_add_u32 v10, s{sT0}, v10")
a("v_mov_b32 v12, 0xffff")
a("v_mov_b32 v13, 0xffff0000")
for d in range(4):
    a(f"v_cmp_le_i32 vcc, {2*d}, v10")
    a(f"v_cndmask_b32 v{MK+d}, 0, v12, vcc")
    a(f"v_cmp_le_i32 vcc, {2*d+1}, v10")
    a("v_cndmask_b32 v11, 0, v13, vcc")
    a(f"v_or_b32 v{MK+d}, v{MK+d}, v11")
a("v_and_b32 v10, 3, v8")
a(f"v_mul_u32_u24 v10, {KCS}, v10")
a("v_lshrrev_b32 v11, 2, v8")
a("v_lshlrev_b32 v11, 3, v11")
a("v_sub_u32 v10, v10, v11")
a("v_lshl_add_u32 v10, v9, 4, v10")
a(f"s_lshl_b32 s{sT0}, s{sP}, 8")
a(f"s_sub_u32 s{sT0}, s{sCB}, s{sT0}")
a(f"s_add_u32 s{sT1}, s{sT0}, 24")
a(f"v_add_u32 v{vKA}, s{sT1}, v10")
a("v_lshlrev_b32 v10, 5, v8")
a("v_lshl_add_u32 v10, v9, 4, v10")
a(f"s_add_u32 s{sT1}, s{sT0}, {C_UL}")
a(f"v_add_u32 v{vUA}, s{sT1}, v10")
a(f"s_lshl_b32 s{sT0}, s{sP}, 2")
a(f"s_add_u32 s{sT0}, s{sT0}, s{sCB}")
a(f"s_add_u32 s{sT0}, s{sT0}, {C_TK}")
a("v_lshrrev_b32 v10, 1, v9")
a("v_lshlrev_b32 v10, 7, v10")
a("v_and_b32 v11, 1, v9")
a("v_lshl_add_u32 v10, v11, 2, v10")
a("v_lshl_add_u32 v10, v8, 3, v10")
a(f"v_lshl_add_u32 v{vTK0}, v10, 3, s{sT0}")
a("v_lshlrev_b32 v10, 6, v9")
a("v_lshlrev_b32 v11, 1, v8")
a("v_add_u32 v10, v10, v11")
a("v_cmp_gt_u32 vcc, 2, v9")
a("v_cndmask_b32 v11, 0, v11, vcc")
a("v_add_u32 v10, v10, v11")
a("v_add_u32 v10, 256, v10")
a(f"v_lshl_add_u32 v{vTKa}, v10, 3, s{sT0}")
a("v_mov_b32 v11, 256")
a("v_cndmask_b32 v11, v11, 16, vcc")
a(f"v_add_u32 v{vTKb}, v{vTKa}, v11")
a("v_lshl_add_u32 v10, v9, 6, v8")
a("v_add_u32 v10, 512, v10")
a(f"v_lshl_add_u32 v{vTK2}, v10, 3, s{sT0}")
a(f"s_add_u32 s{sT0}, s{sCB}, {C_UL}")
a(f"v_add_u32 v10, s{sT0}, v1")
for i in range(4):
    a(f"v_mov_b32 v{16+i}, 0")
a("v_cmp_gt_u32 vcc, 30, v0")
a("s_and_saveexec_b64 s[70:71], vcc")
a("ds_write_b128 v10, v[16:19]")
a("s_mov_b64 exec, -1")
a(f"s_lshl_b32 s{sT0}, s{sP}, 13")
a(f"s_add_u32 s{sT0}, s{sT0}, s{sCB}")
vSW, vSR = 232, 233
a(f"v_lshlrev_b32 v{vSW}, 5, v0")
a(f"v_add_u32 v{vSW}, s{sT0}, v{vSW}")
a(f"v_lshlrev_b32 v{vSR}, 3, v0")
a(f"v_add_u32 v{vSR}, s{sT0}, v{vSR}")
a("s_waitcnt lgkmcnt(0)")
a(f"s_bfe_u32 s{sT2}, s{sWAVE}, 0x10001")
a(f"s_lshl_b32 s{sT2}, s{sT2}, 4")
a(f"s_lshr_b32 s{sDT}, s{sDT}, s{sT2}")
a(f"s_lshl_b32 s{sDT}, s{sDT}, 16")
a(f"s_lshr_b32 s{sDS}, s{sDS}, s{sT2}")
a(f"s_lshl_b32 s{sDS}, s{sDS}, 16")
a(f"s_mov_b32 s{sT3}, 0x3fb8aa3b")
a(f"v_mov_b32 v8, s{sDT}")
a(f"v_mul_f32 v8, s{sT3}, v8")
a("v_exp_f32 v8, v8")
a("v_cvt_pk_bf16_f32 v8, v8, v8")
a("v_lshlrev_b32 v8, 16, v8")
a("s_waitcnt vmcnt(0)")
stamp("c")
for k in range(4):
    a(f"v_lshlrev_b32 v{4+k}, 16, v{4+k}")
a(f"v_mul_f32 v4, s{sT3}, v4")
a("v_exp_f32 v4, v4")
a("v_cvt_pk_bf16_f32 v4, v4, v4")
a("v_lshlrev_b32 v4, 16, v4")
a("v_mul_f32 v4, v4, v8")
a("v_mul_f32 v5, v5, v8")
a(f"v_mul_f32 v4, s{sT3}, v4")
a("v_mul_f32 v5, 0.15915494, v5")
Y = 20
a("v_add_f32 v8, v8, v8")
a(f"v_mul_f32 v{Y}, v6, v8")
a(f"v_mul_f32 v{Y+1}, v7, v8")
Z1, Z8, Z128 = 24, 22, 40
for (dst, mul) in ((Z1, None), (Z8, "0x41000000"), (Z128, "0x43000000")):
    if mul is None:
        a("v_sub_f32 v10, 0, v4")
        a("v_fract_f32 v11, v5")
    else:
        a(f"v_mul_f32 v10, {mul}, v4")
        a("v_sub_f32 v10, 0, v10")
        a(f"v_mul_f32 v11, {mul}, v5")
        a("v_fract_f32 v11, v11")
    a("v_exp_f32 v10, v10")
    a("v_cos_f32 v12, v11")
    a("v_sin_f32 v13, v11")
    a(f"v_mul_f32 v{dst}, v10, v12")
    a(f"v_mul_f32 v{dst+1}, v10, v13")
ctmp = [42, 44, 46, 48]
cti = [0]


def cmul(d, x, y):
    t = ctmp[cti[0] % 4]; cti[0] += 1
    a(f"v_pk_mul_f32 {vr(t,2)}, {vr(x,2)}, {vr(y,2)} op_sel:[0,0] op_sel_hi:[0,1]")
    a(f"v_pk_fma_f32 {vr(d,2)}, {vr(x,2)}, {vr(y,2)}, {vr(t,2)} op_sel:[1,1,0] op_sel_hi:[1,0,1] neg_lo:[0,1,0]")


V = 64
PK = 96
def Wp(e): return Z1 + 2 * (e - 1)


def pack_write(img, neg_im, nrows=16):
    ng = "-" if neg_im else ""
    for i in range(nrows // 2):
        a(f"v_cvt_pk_bf16_f32 v{PK+i}, v{V+4*i}, v{V+4*i+2}")
        a(f"v_cvt_pk_bf16_f32 v{PK+8+i}, {ng}v{V+4*i+1}, {ng}v{V+4*i+3}")
    for part in range(2):
        for hf in range((nrows + 7) // 8):
            a(f"ds_write_b128 v{vSW}, {vr(PK+8*part+4*hf,4)} offset:{img*4096+2048*part+16*hf}")


def frag_reads(dst, img):
    for ks in range(4):
        for hh in range(2):
            a(f"ds_read_b64_tr_b16 {vr(dst+4*ks+2*hh,2)}, v{vSR} offset:{img*4096+1024*ks+512*hh}")


LOF, HIF, KD = 112, 128, 160
a(f"v_mov_b32 v{V}, 1.0")
a(f"v_mov_b32 v{V+1}, 0")
a(f"v_mov_b32 v{V+2}, v{Z8}")
a(f"v_mov_b32 v{V+3}, v{Z8+1}")
cmul(V + 4, Z8, Z8)
cmul(Wp(2), Z1, Z1)
for j in range(3, 16):
    cmul(V + 2 * j, V + 2 * (j - 2), V + 4)
    if j <= 7:
        cmul(Wp(j), Wp(j - 2), Wp(2))
pack_write(0, True)
Yn = 50
cmul(Yn, Y, Z128)
for i, yy in enumerate((Y, Yn)):
    a(f"v_mov_b32 v{V+16*i}, v{yy}")
    a(f"v_mov_b32 v{V+16*i+1}, v{yy+1}")
    for e in range(1, 8):
        cmul(V + 16 * i + 2 * e, yy, Wp(e))
frag_reads(LOF, 0)
pack_write(1, False)
cmul(V + 0, Yn, Z128)
cmul(V + 8, V + 0, Z128)
cmul(V + 16, V + 8, Z128)
for e in range(1, 4):
    cmul(V + 2 * e, V + 0, Wp(2 * e))
cmul(V + 20, V + 16, Z128)
for e in range(1, 4):
    cmul(V + 8 + 2 * e, V + 8, Wp(2 * e))
cmul(V + 24, V + 20, Z128)
cmul(V + 18, V + 16, Wp(4))
cmul(V + 28, V + 24, Z128)
cmul(V + 22, V + 20, Wp(4))
cmul(Yn, V + 28, Z128)
cmul(V + 26, V + 24, Wp(4))
cmul(V + 30, V + 28, Wp(4))
frag_reads(HIF, 1)
a("s_waitcnt lgkmcnt(8)")
pack_write(0, False)
a("s_waitcnt lgkmcnt(4)")
for ks in range(4):
    a(f"v_mfma_f32_16x16x32_bf16 {vr(KD,4)}, {vr(HIF+4*ks,4)}, {vr(LOF+4*ks,4)}, {'0' if ks == 0 else vr(KD,4)}")
a(f"v_mov_b32 v{V}, v{Yn}")
a(f"v_mov_b32 v{V+1}, v{Yn+1}")
cmul(Y, Z128, Z128)
cmul(V + 2, V, Z128)
for i in range(2, 10):
    cmul(V + 2 * i, V + 2 * (i - 2), Y)
frag_reads(HIF + 16, 0)
pack_write(1, False, 10 + 6)
a("s_waitcnt lgkmcnt(4)")
for ks in range(4):
    a(f"v_mfma_f32_16x16x32_bf16 {vr(KD+4,4)}, {vr(HIF+16+4*ks,4)}, {vr(LOF+4*ks,4)}, {'0' if ks == 0 else vr(KD+4,4)}")
frag_reads(HIF, 1)
for rho in range(4):
    a(f"ds_write_b32 v{vTK0}, v{KD+rho} offset:{8*rho}")
a("s_waitcnt lgkmcnt(4)")
for ks in range(4):
    a(f"v_mfma_f32_16x16x32_bf16 {vr(KD+8,4)}, {vr(HIF+4*ks,4)}, {vr(LOF+4*ks,4)}, {'0' if ks == 0 else vr(KD+8,4)}")
for rho in range(4):
    a(f"ds_write_b32 v{vTKb if rho >> 1 else vTKa}, v{KD+4+rho} offset:{8*(rho&1)}")
for rho in range(4):
    a(f"ds_write_b32 v{vTK2}, v{KD+8+rho} offset:{128*rho}")
a(f"s_bfe_u32 s{sT2}, s{sWAVE}, 0x10001")
a(f"s_lshl_b32 s{sT2}, s{sT2}, 4")
a(f"v_add_u32 v2, s{sT2}, v2")
a("v_mov_b32 v14, 1")
lds_arrive(2, 4, 14)
a("v_mov_b32 v15, 0")
a(f"buffer_load_dword v16, v15, s[{S_DBG}:{S_DBG+3}], 0 offen sc1")
stamp("c")
lds_wait(2, 4, 2, 13)
GV = 64
for s in range(19):
    a(f"ds_read_b64 {vr(GV+2*s,2)}, v{GA+s}")
for s in range(19):
    if s in (0, 8, 14):
        a(f"s_waitcnt lgkmcnt({ {0: 11, 8: 5, 14: 0}[s] })")
    a(f"v_add_f32 v{GV+2*s}, v{GV+2*s}, v{GV+2*s+1}")
KP = 112
for kap in range(4):
    for d in range(8):
        s0 = 3 - kap + 2 * d
        a(f"v_cvt_pk_bf16_f32 v{KP+8*kap+d}, v{GV+2*s0}, v{GV+2*(s0+1)}")
    for hq in range(2):
        a(f"ds_write_b128 v{vKW}, {vr(KP+8*kap+4*hq,4)} offset:{kap*KCS+16*hq}")
stamp("c")
a("s_waitcnt vmcnt(0)")
get_tag(16, 15)
a(f"s_lshr_b32 s{sT0}, s{sCH}, 4")
a(f"s_lshl_b32 s{sT0}, s{sT0}, 9")
a(f"s_add_u32 s{sG}, s{sT0}, {XF}")
a("v_and_b32 v14, 31, v0")
a("v_lshlrev_b32 v14, 4, v14")
poll_flags(14, f"s{sG}", 13)
stamp("c")
a(f"s_lshr_b32 s{sT0}, s{sCH}, 2")
a(f"s_lshl_b32 s{sT0}, s{sT0}, 14")
a(f"s_and_b32 s{sT1}, s{sCH}, 3")
a(f"s_lshl_b32 s{sT1}, s{sT1}, 4")
a(f"s_add_u32 s{sT0}, s{sT0}, s{sT1}")
a(f"s_lshl_b32 s{sT1}, s{sP}, 13")
a(f"s_add_u32 s{sT0}, s{sT0}, s{sT1}")
a(f"s_add_u32 s{sT0}, s{sT0}, {XNT}")
a(f"s_add_u32 s{sT1}, s{sT0}, 4096")
a("v_lshlrev_b32 v14, 6, v0")
a(f"buffer_load_dwordx4 v[16:19], v14, s[{S_WS}:{S_WS+3}], s{sT0} offen sc1")
a(f"buffer_load_dwordx4 v[20:23], v14, s[{S_WS}:{S_WS+3}], s{sT1} offen sc1")
a(f"s_lshl_b32 s{sT0}, s{sP}, 11")
a(f"s_add_u32 s{sT0}, s{sT0}, s{sCB}")
a(f"s_add_u32 s{sT0}, s{sT0}, {C_UL+480}")
a(f"v_add_u32 v14, s{sT0}, v1")
a("s_waitcnt vmcnt(0)")
a("ds_write_b128 v14, v[16:19]")
a("ds_write_b128 v14, v[20:23] offset:1024")
a("v_mov_b32 v14, 1")
lds_arrive(2, 5, 14)
lds_wait(2, 5, 2, 13)
stamp("c")
CA = 16
FR = [48, 112]


def conv_reads(rho, b):
    f = FR[b]
    for s in range(8):
        for hh in range(2):
            a(f"ds_read_b64 {vr(f+4*s+2*hh,2)}, v{vKA} offset:{64*(63-8*s-rho)+8*hh}")
        a(f"ds_read_b128 {vr(f+32+4*s,4)}, v{vUA} offset:{512*s+64*(7-rho)}")


conv_reads(0, 0)
for rho in range(4):
    f = FR[rho & 1]
    a("s_waitcnt lgkmcnt(0)")
    if rho == 0:
        for d in range(4):
            a(f"v_and_b32 v{f+d}, v{f+d}, v{MK+d}")
    if rho < 3:
        conv_reads(rho + 1, (rho + 1) & 1)
    seen = set()
    for s in range(8):
        for w in range(8 - s):
            t = s + w
            c = "0" if (rho == 0 and t not in seen) else vr(CA + 4 * t, 4)
            seen.add(t)
            a(f"v_mfma_f32_16x16x32_bf16 {vr(CA+4*t,4)}, {vr(f+4*s,4)}, {vr(f+32+4*w,4)}, {c}")
stamp("c")
a(f"s_add_u32 s{sT0}, s{sCB}, {C_TK}")
a(f"s_lshl_b32 s{sT1}, s{sP}, 12")
a(f"s_add_u32 s{sT2}, s{sT0}, s{sT1}")
a(f"v_add_u32 v12, s{sT2}, v1")
a(f"s_xor_b32 s{sT1}, s{sT1}, 4096")
a(f"s_add_u32 s{sT2}, s{sT0}, s{sT1}")
a(f"v_add_u32 v11, s{sT2}, v1")
a(f"s_cmp_eq_u32 s{sP}, 0")
a("s_cbranch_scc0 L_xp1")
for i in range(4):
    a(f"ds_write_b128 v12, {vr(CA+16+4*i,4)} offset:{1024*i}")
a("s_branch L_xdone")
a("L_xp1:")
a("s_nop 7")
for i in range(4):
    a(f"ds_write_b128 v12, {vr(CA+4*i,4)} offset:{1024*i}")
a("s_nop 1")
for i in range(16):
    a(f"v_mov_b32 v{CA+i}, v{CA+16+i}")
a("L_xdone:")
a("v_mov_b32 v14, 1")
lds_arrive(2, 6, 14)
a("v_and_b32 v8, 15, v0")
a("v_lshrrev_b32 v9, 4, v0")
a("v_lshlrev_b32 v10, 5, v8")
a("v_lshl_add_u32 v10, v9, 3, v10")
a(f"s_lshl_b32 s{sT0}, s{sP}, 11")
a(f"s_add_u32 s{sT0}, s{sT0}, s{sCB}")
a(f"s_add_u32 s{sT0}, s{sT0}, {C_UL+480}")
a(f"v_add_u32 v10, s{sT0}, v10")
for i in range(4):
    a(f"ds_read_b64 {vr(64+2*i,2)}, v10 offset:{512*i}")
lds_wait(2, 6, 2, 13)
for i in range(4):
    a(f"ds_read_b128 {vr(48+4*i,4)}, v11 offset:{1024*i}")
for i in range(4):
    for hf in range(2):
        a(f"v_lshlrev_b32 v{72+4*i+2*hf}, 16, v{64+2*i+hf}")
        a(f"v_and_b32 v{72+4*i+2*hf+1}, 0xffff0000, v{64+2*i+hf}")
for i in range(16):
    a(f"v_fma_f32 v{CA+i}, v{72+i}, s{sDS}, v{CA+i}")
a("s_waitcnt lgkmcnt(0)")
for i in range(16):
    a(f"v_add_f32 v{CA+i}, v{CA+i}, v{48+i}")
for i in range(4):
    for hf in range(2):
        a(f"v_cvt_pk_bf16_f32 v{64+2*i+hf}, v{CA+4*i+2*hf}, v{CA+4*i+2*hf+1}")
for pr in range(2):
    for hf in range(2):
        a(f"v_permlane16_swap_b32 v{64+4*pr+hf}, v{64+4*pr+2+hf}")
a(f"s_lshl_b32 s{sT0}, s{sCH}, 12")
a(f"s_lshl_b32 s{sT1}, s{sP}, 11")
a(f"s_add_u32 s{sT0}, s{sT0}, s{sT1}")
a(f"s_add_u32 s{sT0}, s{sT0}, {ST}")
for pr in range(2):
    a(f"buffer_store_dwordx4 {vr(64+4*pr,4)}, v1, s[{S_WS}:{S_WS+3}], s{sT0} offen offset:{1024*pr} sc1")
a(f"s_lshl_b32 s{sT0}, s{sXCD}, 1")
a(f"s_add_u32 s{sT0}, s{sT0}, s{sP}")
a(f"s_lshl_b32 s{sT0}, s{sT0}, 10")
a(f"s_and_b32 s{sT1}, s{sCH}, 63")
a(f"s_lshl_b32 s{sT1}, s{sT1}, 4")
a(f"s_add_u32 s{sT0}, s{sT0}, s{sT1}")
a(f"s_add_u32 s{sT0}, s{sT0}, {SF}")
a("s_waitcnt vmcnt(0)")
publish(f"s{sT0}", 14, 15)
stamp("c")
dump_stamps("c")
a("L_end:")
a("s_endpgm")
a.raw('.section .rodata,"a"\n.p2align 6')
a.raw(kernel_desc(KN, 256, 102, 256))
open(OUT, "w").write(a.text())
print("nops inserted:", a.nnop, "instrs:", sum(1 for i in a.items if not isinstance(i, str)), "lds", LDS_BYTES)
```

```python
import sys
from asmlib import *

DIAG = "--diag" in sys.argv
NOCONV = "--noconv" in sys.argv
CYC = "--cyc" in sys.argv
MAP48 = "--map48" in sys.argv
OUT = [x for x in sys.argv[1:] if not x.startswith("--")][0]


def opt(name, default):
    for x in sys.argv:
        if x.startswith(f"--{name}="):
            return int(x.split("=")[1])
    return default


PCONV, PSTAT, PG1, PEPI, PCM = opt("pconv", 0), opt("pstat", 2), opt("pg1", 1), opt("pepi", 3), opt("pcm", 2)

XF, SF, HF = 0x1000, 0x5000, 0x9000
XNT, ST, HB = 0x20000, 0x220000, 0x420000
STAMP, WSB, OOB = 0x1000000, 0x10000000, 0x40000000
L_RING, RINGB = 65536, 9216
L_CONV = L_RING + 4 * RINGB
KCS = 4160
C_TK = 4 * KCS
C_UL = C_TK + 8192
CSTR = C_UL + 4608
L_SYNC = L_CONV + 2 * CSTR
L_STAT = L_SYNC + 256
LDS_BYTES = L_STAT + 512
W1RS = 2752
SPIN = 1 << 18

a = Asm()
sWAVE, sI1, sJ1, sI2, sJ2, sTAG = 3, 4, 5, 6, 7, 8
sG, sK, sRING, sGH, sPEND, sQ = 10, 11, 12, 13, 14, 15
S_X, S_W1, S_W2, S_OUT, S_WS, S_DBG = 44, 48, 52, 56, 60, 64
sT0, sT1, sT2, sT3 = 42, 43, 68, 69
sKS = 70
sXCD, sSLOT, sSPIN = 81, 82, 83
sHF, sHH = 0, 1
STAMP0 = 84
nstamp = {"g": 0, "c": 0}


def srd_l(d, base, nbytes):
    return [f"s_mov_b32 s{d}, s{base}", f"s_and_b32 s{d+1}, s{base+1}, 0xffff",
            f"s_mov_b32 s{d+2}, {nbytes}", f"s_mov_b32 s{d+3}, 0x00020000"]


def emit(L):
    for t in L:
        a(t)


def srd(d, base, nbytes):
    emit(srd_l(d, base, nbytes))


def stamp(role):
    if not DIAG:
        return
    k = nstamp[role]; nstamp[role] += 1
    assert k < 16
    a("s_memtime s[100:101]" if CYC else "s_memrealtime s[100:101]")
    a("s_waitcnt lgkmcnt(0)")
    a(f"s_mov_b32 s{STAMP0+k}, s100")


def dump_stamps(role):
    if not DIAG:
        return
    a(f"s_lshl_b32 s{sT0}, s2, 3")
    a(f"s_add_u32 s{sT0}, s{sT0}, s{sWAVE}")
    a(f"s_lshl_b32 s{sT0}, s{sT0}, 6")
    a(f"s_add_u32 s{sT0}, s{sT0}, {STAMP}")
    a("v_mov_b32 v14, 0")
    for k in range(nstamp[role]):
        a(f"v_mov_b32 v15, s{STAMP0+k}")
        a(f"buffer_store_dword v15, v14, s[{S_WS}:{S_WS+3}], s{sT0} offen offset:{4*k}")
    a("s_waitcnt vmcnt(0)")


class VM:
    def __init__(self):
        self.q = []
    def issue(self, tag, n=1):
        self.q += [tag] * n
    def wait(self, tag):
        if tag not in self.q:
            return
        idx = max(i for i, t in enumerate(self.q) if t == tag)
        a(f"s_waitcnt vmcnt({min(len(self.q) - 1 - idx, 63)})")
        self.q = self.q[idx + 1:]
    def drain(self):
        self.q = []


def lds_arrive(vsync, word, vone):
    a("s_mov_b64 exec, 1")
    a(f"ds_add_u32 v{vsync}, v{vone} offset:{4*word}")
    a("s_mov_b64 exec, -1")


def lds_wait(vsync, word, n, vtmp):
    lp, dn = a.label("LW"), a.label("LWD")
    a(f"s_mov_b32 s{sSPIN}, 0")
    a(f"{lp}:")
    a(f"ds_read_b32 v{vtmp}, v{vsync} offset:{4*word}")
    a(f"s_add_u32 s{sSPIN}, s{sSPIN}, 1")
    a("s_waitcnt lgkmcnt(0)")
    a(f"v_readfirstlane_b32 s{sT0}, v{vtmp}")
    a(f"s_cmp_gt_u32 s{sSPIN}, {SPIN*8}")
    a(f"s_cbranch_scc1 {dn}")
    a(f"s_cmp_ge_u32 s{sT0}, {n}")
    a(f"s_cbranch_scc1 {dn}")
    a(f"s_sleep {opt('lsleep', 1)}")
    a(f"s_branch {lp}")
    a(f"{dn}:")


def poll_flags(voff, soff, vtmp, sleep=1):
    lp, dn = a.label("PF"), a.label("PFD")
    a(f"s_mov_b32 s{sSPIN}, 0")
    a(f"{lp}:")
    a(f"buffer_load_dword v{vtmp}, v{voff}, s[{S_WS}:{S_WS+3}], {soff} offen sc1")
    a(f"s_add_u32 s{sSPIN}, s{sSPIN}, 1")
    a("s_waitcnt vmcnt(0)")
    a(f"v_cmp_ne_u32 vcc, s{sTAG}, v{vtmp}")
    a(f"s_cmp_gt_u32 s{sSPIN}, {SPIN}")
    a(f"s_cbranch_scc1 {dn}")
    a("s_cmp_eq_u64 vcc, 0")
    a(f"s_cbranch_scc1 {dn}")
    a(f"s_sleep {sleep}")
    a(f"s_branch {lp}")
    a(f"{dn}:")


def get_tag(vtmp, vzero):
    lp, dn = a.label("GT"), a.label("GTD")
    a(f"s_mov_b32 s{sSPIN}, 0")
    a(f"{lp}:")
    a(f"v_readfirstlane_b32 s{sTAG}, v{vtmp}")
    a(f"s_add_u32 s{sSPIN}, s{sSPIN}, 1")
    a(f"s_cmp_gt_u32 s{sSPIN}, {SPIN}")
    a(f"s_cbranch_scc1 {dn}")
    a(f"s_cmp_lg_u32 s{sTAG}, 0")
    a(f"s_cbranch_scc1 {dn}")
    a("s_sleep 1")
    a(f"buffer_load_dword v{vtmp}, v{vzero}, s[{S_DBG}:{S_DBG+3}], 0 offen sc1")
    a("s_waitcnt vmcnt(0)")
    a(f"s_branch {lp}")
    a(f"{dn}:")


def publish(soff, vtmp, vzero):
    a(f"v_mov_b32 v{vtmp}, s{sTAG}")
    a("s_mov_b64 exec, 1")
    a(f"buffer_store_dword v{vtmp}, v{vzero}, s[{S_WS}:{S_WS+3}], {soff} offen sc1")
    a("s_mov_b64 exec, -1")


def merge(main, fill, first=0, every=1):
    fill = list(fill)
    for i, m in enumerate(main):
        a(m)
        if i >= first and (i - first) % every == 0 and fill:
            a(fill.pop(0))
    for f in fill:
        a(f)


def silu_pk(src, tmp, n, sneg):
    for i in range(0, n, 2):
        a(f"v_pk_mul_f32 {vr(tmp+i,2)}, {vr(src+i,2)}, s[{sneg}:{sneg+1}]")
    for i in range(n):
        a(f"v_exp_f32 v{tmp+i}, v{tmp+i}")
    for i in range(0, n, 2):
        a(f"v_pk_add_f32 {vr(tmp+i,2)}, {vr(tmp+i,2)}, 1.0 op_sel_hi:[1,0]")
    for i in range(n):
        a(f"v_rcp_f32 v{tmp+i}, v{tmp+i}")
    for i in range(0, n, 2):
        a(f"v_pk_mul_f32 {vr(src+i,2)}, {vr(src+i,2)}, {vr(tmp+i,2)}")


a.raw(open("recurrent_scan__ssm_conv_s4d__dense_activation_silu__prompt.s.ref").read().split("; Override")[0].rstrip())
a.raw(f"; @launch grid=(256,1,1) block=(512,1,1) lds={LDS_BYTES}")
a.raw('.amdgcn_target "amdgcn-amd-amdhsa--gfx950"')
a.raw(".text")
a.raw(f".globl {KN}\n.p2align 8\n.type {KN},@function\n{KN}:")
a("s_cmp_ge_u32 s2, 256")
a("s_cbranch_scc1 L_end")
a("s_load_dwordx16 s[16:31], s[0:1], 0")
a("s_load_dwordx8 s[32:39], s[0:1], 64")
a("s_load_dwordx2 s[40:41], s[0:1], 96")
if DIAG:
    a("s_memtime s[100:101]" if CYC else "s_memrealtime s[100:101]")
    nstamp["g"] = nstamp["c"] = 1
a("s_getpc_b64 s[64:65]")
a("L_pc:")
a("s_and_b32 s65, s65, 0xffff")
a("s_mov_b32 s66, L_code_end-L_pc")
a("s_mov_b32 s67, 0x00020000")
a("v_lshlrev_b32 v1, 7, v0")
a("buffer_load_dword v254, v1, s[64:67], 0 offen")
a("v_lshrrev_b32 v1, 6, v0")
a("v_and_b32 v0, 63, v0")
a(f"v_readfirstlane_b32 s{sWAVE}, v1")
a("v_lshlrev_b32 v1, 4, v0")
a(f"s_and_b32 s{sXCD}, s2, 7")
a(f"s_lshr_b32 s{sSLOT}, s2, 3")
if MAP48:
    a(f"s_lshl_b32 s{sT0}, s{sXCD}, 2")
    a(f"s_and_b32 s{sI1}, s{sSLOT}, 3")
    a(f"s_add_u32 s{sI1}, s{sI1}, s{sT0}")
    a(f"s_lshr_b32 s{sJ1}, s{sSLOT}, 2")
else:
    a(f"s_lshr_b32 s{sT0}, s{sXCD}, 1")
    a(f"s_lshl_b32 s{sT0}, s{sT0}, 3")
    a(f"s_and_b32 s{sI1}, s{sSLOT}, 7")
    a(f"s_add_u32 s{sI1}, s{sI1}, s{sT0}")
    a(f"s_and_b32 s{sT0}, s{sXCD}, 1")
    a(f"s_lshl_b32 s{sT0}, s{sT0}, 2")
    a(f"s_lshr_b32 s{sJ1}, s{sSLOT}, 3")
    a(f"s_add_u32 s{sJ1}, s{sJ1}, s{sT0}")
a(f"v_mov_b32 v2, {L_SYNC}")
a(f"s_cmp_ge_u32 s{sWAVE}, 4")
a("s_cbranch_scc1 L_conv")

vL16, vSYNC = 1, 2
vX, vD0, vD1, vD2, vA0, vT0, vT1, vT2, vW2, vB0, vB1 = 3, 4, 5, 6, 7, 8, 9, 10, 11, 12, 13
ACC1, CS, F0, F1, TMP, WR = 16, 64, 76, 104, 132, 160
FB = [F0, F1]
ONES, vA, vFA, vFB = TMP, TMP + 4, TMP + 5, TMP + 6
vTG = TMP + 27
vm = VM()
vm.issue("PF")
a("v_lshrrev_b32 v14, 4, v0")
a("v_and_b32 v14, 2, v14")
a("v_xor_b32 v14, v14, v0")
a("v_and_b32 v14, 3, v14")
a("v_lshrrev_b32 v15, 2, v0")
a(f"v_mul_u32_u24 v{vD0}, {W1RS}, v15")
a(f"v_lshl_add_u32 v{vD0}, v14, 4, v{vD0}")
a(f"v_add_u32 v{vD1}, {16*W1RS-1024}, v{vD0}")
a("v_bfe_u32 v14, v0, 1, 2")
a("v_lshrrev_b32 v15, 5, v0")
a("v_lshl_add_u32 v14, v15, 2, v14")
a("v_bfe_u32 v15, v0, 3, 2")
a("v_lshl_add_u32 v14, v15, 3, v14")
a(f"v_mul_u32_u24 v14, {W1RS}, v14")
a("v_and_b32 v15, 1, v0")
a(f"v_lshl_add_u32 v{vD2}, v15, 4, v14")
a(f"s_mul_i32 s{sT0}, s{sJ1}, 43")
a(f"s_add_u32 s{sT1}, s{sT0}, 35")
a(f"s_lshr_b32 s{sT0}, s{sT0}, 3")
a(f"s_lshr_b32 s{sT1}, s{sT1}, 3")
a(f"s_sub_u32 s{sT1}, s{sT1}, s{sT0}")
a(f"s_lshl_b32 s{sT2}, s{sWAVE}, 3")
a(f"s_lshr_b32 s{sT2}, 0x05030200, s{sT2}")
a(f"s_and_b32 s{sT2}, s{sT2}, 7")
a(f"s_min_u32 s{sT2}, s{sT2}, s{sT1}")
a(f"s_add_u32 s{sHF}, s{sT0}, s{sT2}")
a(f"s_lshl_b32 s{sG}, s{sHF}, 6")
a(f"s_lshr_b32 s{sT2}, s{sWAVE}, 1")
a(f"s_mul_i32 s{sT2}, s{sT2}, 3")
a(f"s_add_u32 s{sT2}, s{sT2}, 1")
a(f"s_add_u32 s{sHH}, s{sT0}, s{sT2}")
a(f"s_cmp_lt_u32 s{sT2}, s{sT1}")
a(f"s_cselect_b32 s9, 0, {OOB}")
a(f"s_lshl_b32 s{sGH}, s{sHH}, 1")
a(f"s_and_b32 s{sT2}, s{sWAVE}, 1")
a(f"s_add_u32 s{sGH}, s{sGH}, s{sT2}")
a(f"s_lshl_b32 s{sGH}, s{sGH}, 5")
a(f"s_add_u32 s{sGH}, s{sGH}, s9")
if MAP48:
    a(f"s_and_b32 s{sT0}, s{sSLOT}, 3")
    a(f"s_lshl_b32 s{sT0}, s{sT0}, 1")
else:
    a(f"s_and_b32 s{sT0}, s{sSLOT}, 7")
a(f"s_mul_i32 s{sK}, s{sT0}, {2*32*W1RS}")
sKX = sI2
a(f"s_lshl_b32 s{sKX}, s{sT0}, 7")
a(f"s_mul_i32 s{sRING}, s{sWAVE}, {RINGB}")
a(f"s_add_u32 s{sRING}, s{sRING}, {L_RING}")


def w1_refill(slot, tag):
    vm.issue(tag, 3)
    return [
        f"s_add_u32 m0, s{sRING}, {slot*3072}\ns_add_u32 s{sT1}, s{sG}, s{sK}\n"
        f"buffer_load_dwordx4 v{vD0}, s[{S_W1}:{S_W1+3}], s{sT1} offen lds",
        f"s_add_u32 s{sT2}, s{sGH}, s{sK}\n"
        f"buffer_load_dwordx4 v{vD1}, s[{S_W1}:{S_W1+3}], s{sT1} offen offset:1024 lds",
        f"s_add_u32 m0, s{sRING}, {slot*3072+2048}\ns_add_u32 s{sK}, s{sK}, {32*W1RS}\n"
        f"buffer_load_dwordx4 v{vD2}, s[{S_W1}:{S_W1+3}], s{sT2} offen lds\n"
        f"s_cmp_eq_u32 s{sK}, {512*W1RS}\ns_cselect_b32 s{sK}, 0, s{sK}",
    ]


a("v_and_b32 v14, 15, v0")
a(f"v_lshrrev_b32 v{vFA}, 4, v0")
a(f"v_xor_b32 v15, v14, v{vFA}")
a("v_and_b32 v15, 3, v15")
a("v_lshlrev_b32 v15, 4, v15")
a("v_lshl_add_u32 v15, v14, 10, v15")
a("v_lshrrev_b32 v14, 2, v14")
a(f"v_lshl_add_u32 v{vA0}, v14, 6, v15")
a(f"v_lshl_add_u32 v15, v{vFA}, 3, v14")
a("v_lshlrev_b32 v15, 6, v15")
a(f"v_and_b32 v{vT0}, 1, v{vFA}")
a(f"v_lshl_add_u32 v15, v{vT0}, 5, v15")
a(f"v_and_b32 v{vT0}, 3, v0")
a(f"v_lshl_add_u32 v15, v{vT0}, 3, v15")
a(f"v_add_u32 v{vT0}, s{sRING}, v15")
a(f"v_xor_b32 v{vT1}, 32, v{vT0}")
a(f"v_lshlrev_b32 v{vT2}, 3, v0")
a(f"v_add_u32 v{vT2}, s{sRING}, v{vT2}")
for i in range(4):
    a(f"v_mov_b32 v{ONES+i}, 0x3f803f80")
sXR, sXB = 72, 73
a(f"s_lshl_b32 s{sQ}, s{sWAVE}, 14")
a(f"s_lshl_b32 s{sXB}, s{sI1}, 16")
a(f"s_lshl_b32 s{sXR}, s{sJ1}, 12")
a("s_mov_b32 s46, 2097152")
a("s_mov_b32 s47, 0x00020000")
a(f"s_mov_b32 s50, {512*1376*2}")
a("s_mov_b32 s51, 0x00020000")
a("s_waitcnt lgkmcnt(0)")
if DIAG:
    a(f"s_mov_b32 s{STAMP0}, s100")
a("s_barrier")
a("s_mov_b32 s44, s16")
a("s_and_b32 s45, s17, 0xffff")
a("s_mov_b32 s48, s32")
a("s_and_b32 s49, s33, 0xffff")
W1FIRST = opt("w1first", 0)
def x_group(k):
    a(f"s_and_b32 s{sT1}, s{sXR}, 0x3000")
    a(f"s_lshr_b32 s{sT3}, s{sT1}, 6")
    a(f"s_add_u32 m0, s{sT1}, s{sQ}")
    a(f"v_xor_b32 v{vX}, s{sT3}, v{vL16}")
    a(f"s_add_u32 s{sT1}, m0, s{sXB}")
    for r in range(4):
        if r:
            a(f"v_xor_b32 v{TMP+8+r}, {16*r}, v{vX}")
        a(f"buffer_load_dwordx4 v{TMP+8+r if r else vX}, s[{S_X}:{S_X+3}], s{sT1} offen offset:{1024*r} lds")
    if k < 3:
        a(f"s_add_u32 s{sXR}, s{sXR}, 0x1000")
    vm.issue("X", 4)
if W1FIRST == 1:
    for k in range(4):
        x_group(k)
        if k < 3:
            emit(w1_refill(k, f"W{k}"))
elif W1FIRST == 3:
    for sl in range(2):
        emit(w1_refill(sl, f"W{sl}"))
    for k in range(4):
        x_group(k)
    emit(w1_refill(2, "W2"))
elif W1FIRST == 4:
    x_group(0)
    for sl in range(2):
        emit(w1_refill(sl, f"W{sl}"))
    for k in range(1, 4):
        x_group(k)
    emit(w1_refill(2, "W2"))
elif W1FIRST == 2:
    for sl in range(3):
        emit(w1_refill(sl, f"W{sl}"))
    for k in range(4):
        x_group(k)
else:
    for k in range(4):
        x_group(k)
    for sl in range(3):
        emit(w1_refill(sl, f"W{sl}"))
stamp("g")
a("s_setprio 3")
a("v_mov_b32 v14, 1")
a(f"s_lshl_b32 s{sT0}, s{sWAVE}, 2")
a(f"v_add_u32 v15, s{sT0}, v{vSYNC}")
vm.wait("X")
a("s_mov_b64 exec, 1")
a(f"ds_add_u32 v{vSYNC}, v14")
a("ds_add_u32 v15, v14 offset:80")
a("s_mov_b64 exec, -1")
stamp("g")

u0, u1, u2 = 34, 35, 36
late = []
late += srd_l(S_WS, 40, WSB) + srd_l(S_DBG, 38, 256) + srd_l(S_W2, 34, 512 * 1376 * 2) + srd_l(S_OUT, 36, 2048 * 512 * 2)
late += [f"v_mov_b32 v{vFB}, 0",
         f"buffer_load_dword v{vTG}, v{vFB}, s[{S_DBG}:{S_DBG+3}], 0 offen sc1",
         f"s_lshr_b32 s{sJ2}, s{sSLOT}, 2",
         f"s_mul_i32 s{u0}, s{sI1}, 43", f"s_add_u32 s{sHF}, s{sHF}, s{u0}", f"s_lshl_b32 s{sHF}, s{sHF}, 12",
         f"s_add_u32 s{sHF}, s{sHF}, {HB}", f"s_add_u32 s{sHH}, s{sHH}, s{u0}", f"s_lshl_b32 s{sHH}, s{sHH}, 12",
         f"s_add_u32 s{sHH}, s{sHH}, s9", f"s_and_b32 s{u1}, s{sWAVE}, 1", f"s_lshl_b32 s{u1}, s{u1}, 3",
         f"s_add_u32 s{u1}, s{u1}, {HB}", f"s_add_u32 s{sHH}, s{sHH}, s{u1}",
         f"s_lshl_b32 s{u0}, s{sI1}, 3", f"s_add_u32 s{u0}, s{u0}, s{sJ1}", f"s_lshl_b32 s{u0}, s{u0}, 2",
         f"s_add_u32 s{u0}, s{u0}, s{sWAVE}", f"s_lshl_b32 s{u0}, s{u0}, 4", f"s_add_u32 s{sPEND}, s{u0}, {HF}",
         f"v_bfe_u32 v{vFB}, v0, 2, 2", f"v_lshl_add_u32 v{vB0}, v{vFA}, 2, v{vFB}", f"v_lshlrev_b32 v{vB0}, 7, v{vB0}",
         f"v_lshrrev_b32 v{vFB}, 1, v{vFB}", f"v_lshl_add_u32 v{vB0}, v{vFB}, 6, v{vB0}", f"v_and_b32 v{vFB}, 3, v0",
         f"v_lshl_add_u32 v{vB0}, v{vFB}, 4, v{vB0}",
         f"v_add_u32 v{vX}, s{sRING}, v{vB0}", f"v_add_u32 v{vB0}, s{sQ}, v{vB0}", f"v_xor_b32 v{vB1}, 64, v{vB0}",
         f"v_lshrrev_b32 v{vW2}, 2, v0", f"v_and_b32 v{vW2}, 4, v{vW2}", f"v_xor_b32 v{vW2}, v{vW2}, v0",
         f"v_and_b32 v{vW2}, 7, v{vW2}", f"v_lshlrev_b32 v{vW2}, 4, v{vW2}", f"v_lshrrev_b32 v{vFB}, 3, v0",
         f"v_lshl_add_u32 v{vW2}, v{vFB}, 10, v{vW2}",
         f"s_lshl_b32 s{u1}, s{sJ2}, 7", f"v_add_u32 v{vW2}, s{u1}, v{vW2}",
         f"v_and_b32 v{vFB}, 15, v0", f"v_lshlrev_b32 v{vFB}, 3, v{vFB}", f"v_add_u32 v{vFB}, {L_STAT}, v{vFB}",
         f"s_mov_b32 s32, 0xbfb8aa3b", f"s_mov_b32 s33, 0xbfb8aa3b",
         f"s_and_b32 s{u0}, s{sSLOT}, 3", f"s_mul_i32 s{u0}, s{u0}, 3", f"s_add_u32 s{u0}, s{u0}, s{sJ2}",
         f"s_sub_u32 s{u1}, s{u0}, 11\ns_cmp_ge_u32 s{u0}, 11\ns_cselect_b32 s{u0}, s{u1}, s{u0}",
         f"s_lshl_b32 s{u0}, s{u0}, 2", f"s_add_u32 s{u0}, s{u0}, s{sWAVE}"]
for n in range(11):
    late.append(f"s_cmp_ge_u32 s{u0}, 43\ns_cselect_b32 s{sKS+n}, 0x10000, s{u0}")
    if n < 10:
        late.append(f"s_add_u32 s{u0}, s{u0}, 4\ns_sub_u32 s{u1}, s{u0}, 44\ns_cmp_ge_u32 s{u0}, 44\ns_cselect_b32 s{u0}, s{u1}, s{u0}")
sNEG = 32
lds_wait(vSYNC, 0, 4, 14)
stamp("g")


def g1_reads(b, slot):
    f = FB[b]
    L = [f"v_xor_b32 v{vA}, s{sKX}, v{vA0}\n"
         f"ds_read_b64_tr_b16 {vr(f,2)}, v{vT0} offset:{slot*3072}",
         f"ds_read_b64_tr_b16 {vr(f+2,2)}, v{vT0} offset:{slot*3072+256}",
         f"ds_read_b128 {vr(f+12,4)}, v{vA}",
         f"ds_read_b128 {vr(f+16,4)}, v{vA} offset:16384"]
    for hh in range(2):
        L.append(f"ds_read_b64_tr_b16 {vr(f+4+2*hh,2)}, v{vT1} offset:{slot*3072+256*hh}")
    L.append(f"ds_read_b128 {vr(f+20,4)}, v{vA} offset:32768")
    L.append(f"ds_read_b128 {vr(f+24,4)}, v{vA} offset:49152\ns_add_u32 s{sKX}, s{sKX}, 64\ns_and_b32 s{sKX}, s{sKX}, 0x3c0")
    for hh in range(2):
        L.append(f"ds_read_b64_tr_b16 {vr(f+8+2*hh,2)}, v{vT2} offset:{slot*3072+2048+512*hh}")
    return L


a(f"s_setprio {PG1}")
vm.wait("W0")
emit(g1_reads(0, 0))
for n in range(16):
    f = FB[n & 1]
    mf = []
    for ct in range(3):
        for rt in range(4):
            ac = ACC1 + (ct * 4 + rt) * 4
            mf.append(f"v_mfma_f32_16x16x32_bf16 {vr(ac,4)}, {vr(f+4*ct,4)}, {vr(f+12+4*rt,4)}, {'0' if n == 0 else vr(ac,4)}")
        mf.append(f"v_mfma_f32_16x16x32_bf16 {vr(CS+4*ct,4)}, {vr(f+4*ct,4)}, {vr(ONES,4)}, {'0' if n == 0 else vr(CS+4*ct,4)}")
    a("s_waitcnt lgkmcnt(0)")
    head = w1_refill(n % 3, f"W{n+3}") if n + 3 < 16 else []
    merge(mf[:3], head)
    fill = []
    if n + 1 < 16:
        vm.wait(f"W{n+1}")
        fill = g1_reads((n + 1) & 1, (n + 1) % 3)
    for i, m in enumerate(mf[3:]):
        a(m)
        if fill:
            a(fill.pop(0))
        if late and n >= 1:
            t = late.pop(0)
            a(t)
            if "buffer_load" in t:
                vm.issue("TG")
    if n in (3, 7, 11):
        stamp("g")
assert not late, len(late)
a("v_mov_b32 v14, 1")
lds_arrive(vSYNC, 1, 14)
stamp("g")


def area_base(ar):
    return (sRING, 4096 * ar) if ar < 2 else (sQ, 4096 * (ar - 2))


def w2_dma(n, ar):
    sb, off = area_base(ar)
    L = [f"s_add_u32 m0, s{sb}, {off}\ns_lshl_b32 s{sT1}, s{sKS+n}, 15\n"
         f"buffer_load_dwordx4 v{vW2}, s[{S_W2}:{S_W2+3}], s{sT1} offen lds"]
    for u in range(1, 4):
        L.append(f"s_add_u32 s{sT2}, s{sT1}, {7168*u}\n"
                 f"buffer_load_dwordx4 v{vW2}, s[{S_W2}:{S_W2+3}], s{sT2} offen offset:{1024*u} lds")
    vm.issue(f"D{n}", 4)
    return L


vBR0, vBR1, vBQ0, vBQ1 = vX, vD0, vB0, vB1
def w2_reads(ws, ar):
    w = WR + 16 * ws
    b0, b1 = (vBR0, vBR1) if ar < 2 else (vBQ0, vBQ1)
    off = area_base(ar)[1]
    return [f"ds_read_b64_tr_b16 {vr(w+4*ct+2*hh,2)}, v{b1 if ct >> 1 else b0} offset:{off+8*(ct&1)+2048*hh}"
            for ct in range(4) for hh in range(2)]


a(f"s_setprio {PEPI}")
STR = F0
EARLY = opt("early", 0)
early = []
if EARLY:
    early = w2_dma(0, 0) + w2_dma(1, 1)
    a(early.pop(0)); a(early.pop(0))
if not NOCONV:
    lds_wait(vSYNC, 3, 4, 14)
for rt in range(4):
    a(f"ds_read_b64 {vr(STR+2*rt,2)}, v{vFB} offset:{128*rt}")
a(f"v_xor_b32 v{vBR1}, 64, v{vBR0}")
a("s_waitcnt lgkmcnt(0)")
T, PKR = F0 + 8, F0 + 24
for rt in range(4):
    rs = STR + 2 * rt
    for ct in range(3):
        for hf in range(2):
            ac = ACC1 + (ct * 4 + rt) * 4 + 2 * hf
            a(f"v_pk_mul_f32 {vr(ac,2)}, {vr(ac,2)}, {vr(rs,2)} op_sel_hi:[1,0]")
            a(f"v_pk_fma_f32 {vr(PKR+8+4*ct+2*hf,2)}, {vr(CS+4*ct+2*hf,2)}, {vr(rs,2)}, {vr(ac,2)} op_sel:[0,1,0] op_sel_hi:[1,1,1] neg_lo:[0,1,0] neg_hi:[0,1,0]")
    if early:
        a(early.pop(0))
    silu_pk(PKR + 8, T, 12, sNEG)
    if early:
        a(early.pop(0))
    pk = PKR + 20 + 8 * (rt & 1)
    for i in range(6):
        a(f"v_cvt_pk_bf16_f32 v{pk+i}, v{PKR+8+2*i}, v{PKR+8+2*i+1}")
    a(f"buffer_store_dwordx4 {vr(pk,4)}, v{vL16}, s[{S_WS}:{S_WS+3}], s{sHF} offen offset:{1024*rt} sc1")
    a(f"buffer_store_dwordx2 {vr(pk+4,2)}, v{vL16}, s[{S_WS}:{S_WS+3}], s{sHH} offen offset:{1024*rt} sc1")
assert not early
vm.issue("S", 8)
a(f"s_lshl_b32 s{sT0}, s{sWAVE}, 2")
a(f"v_add_u32 v15, s{sT0}, v{vSYNC}")
a("v_mov_b32 v14, 1")
lds_arrive(15, 16, 14)
stamp("g")
a("v_mov_b32 v15, 0")
get_tag(vTG, 15)
lds_wait(vSYNC, 1, 4, 14)
if EARLY:
    emit(w2_dma(2, 2))
else:
    emit(w2_dma(0, 0))
ACC2, HFR = 16, 80
XT, SR = 144, 152
vH, vXO, vSO, vFL, vP = 5, 9, 10, 14, 15
a(f"s_lshl_b32 s{sI2}, s{sXCD}, 2")
a(f"s_and_b32 s{sT0}, s{sSLOT}, 3")
a(f"s_add_u32 s{sI2}, s{sI2}, s{sT0}")
for rp in range(4):
    a(f"s_add_u32 s{sT0}, s{sWAVE}, {rp}")
    a(f"s_and_b32 s{sT0}, s{sT0}, 3")
    a(f"s_lshl_b32 s{sT0}, s{sT0}, 10")
    a(f"v_add_u32 v{vH+rp}, s{sT0}, v{vL16}")
a(f"s_lshl_b32 s{sG}, s{sI2}, 9")
a(f"s_add_u32 s{sG}, s{sG}, {HF}")
a(f"s_mul_i32 s{sK}, s{sI2}, {43*4096}")
a(f"s_add_u32 s{sK}, s{sK}, {HB}")
vm.wait("S")
publish(f"s{sPEND}", 14, 15)
vm.issue("F")
stamp("g")
a(f"s_setprio {PG1}")
if EARLY:
    for n in range(2):
        emit(w2_reads(n, n))
    for n in range(3, 6):
        emit(w2_dma(n, n))
else:
    for n in range(1, 6):
        emit(w2_dma(n, n))
    vm.wait("D1")
    for n in range(2):
        emit(w2_reads(n, n))
a("s_waitcnt lgkmcnt(0)")
for m in range(2):
    emit(w2_dma(6 + m, m))
a("v_and_b32 v14, 15, v0")
a("v_lshrrev_b32 v15, 4, v0")
a("v_lshlrev_b32 v15, 4, v15")
a(f"v_lshl_add_u32 v{vXO}, v14, 10, v15")
a(f"s_lshl_b32 s9, s{sI2}, 16")
a(f"s_add_u32 s9, s9, s{sQ}")
a(f"s_lshl_b32 s{sT1}, s{sJ2}, 7")
a(f"s_add_u32 s9, s9, s{sT1}")
a("v_lshrrev_b32 v14, 3, v0")
a("v_bfe_u32 v15, v0, 2, 1")
a("v_lshlrev_b32 v15, 9, v15")
a(f"v_lshl_add_u32 v{vSO}, v14, 12, v15")
a("v_and_b32 v14, 3, v0")
a(f"v_lshl_add_u32 v{vSO}, v14, 4, v{vSO}")
a(f"s_lshr_b32 s{sT1}, s{sI2}, 3")
a(f"s_lshl_b32 s{sT1}, s{sT1}, 10")
a(f"s_bfe_u32 s{sT2}, s{sI2}, 0x10002")
a(f"s_lshl_b32 s{sT2}, s{sT2}, 8")
a(f"s_add_u32 s{sT1}, s{sT1}, s{sT2}")
a(f"s_and_b32 s{sT0}, s{sI2}, 3")
a(f"s_lshl_b32 s{sT0}, s{sT0}, 6")
a(f"s_add_u32 s{sT1}, s{sT1}, s{sT0}")
a(f"s_lshl_b32 s{sT0}, s{sJ2}, 18")
a(f"s_add_u32 s{sT1}, s{sT1}, s{sT0}")
a(f"s_lshl_b32 s{sT0}, s{sWAVE}, 16")
a(f"s_add_u32 s{sT1}, s{sT1}, s{sT0}")
a(f"s_add_u32 s{sGH}, s{sT1}, {ST}")
a(f"s_lshl_b32 s{sT0}, s{sJ2}, 1")
a(f"s_lshr_b32 s{sT1}, s{sI2}, 4")
a(f"s_add_u32 s{sT0}, s{sT0}, s{sT1}")
a(f"s_lshl_b32 s{sT0}, s{sT0}, 10")
a(f"s_lshl_b32 s{sT1}, s{sWAVE}, 8")
a(f"s_add_u32 s{sT0}, s{sT0}, s{sT1}")
a(f"s_add_u32 s{sPEND}, s{sT0}, {SF}")
for n in range(2, 6):
    vm.wait(f"D{n}")
    emit(w2_reads(n, n))
    if n >= 3:
        a("s_waitcnt lgkmcnt(8)")
        emit(w2_dma(5 + n, n - 1))
for hf in range(2):
    a(f"buffer_load_dwordx4 {vr(XT+4*hf,4)}, v{vXO}, s[{S_X}:{S_X+3}], s9 offen offset:{64*hf}")
a(f"v_and_b32 v{vFL}, 0x1ff, v{vL16}")
stamp("g")
poll_flags(vFL, f"s{sG}", vP)
vm.drain()
stamp("g")


def h_loads(n):
    hs = n % 4
    L = []
    for rp in range(4):
        pre = f"s_lshl_b32 s{sT1}, s{sKS+n}, 12\ns_add_u32 s{sT1}, s{sT1}, s{sK}\n" if rp == 0 else ""
        L.append(pre + f"buffer_load_dwordx4 {vr(HFR+16*hs+4*rp,4)}, v{vH+rp}, s[{S_WS}:{S_WS+3}], s{sT1} offen sc1")
    vm.issue(f"H{n}", 4)
    return L


for n in range(3):
    emit(h_loads(n))
a(f"v_and_b32 v{vFL}, 0xff, v{vL16}")
for n in range(11):
    ws, hs = n % 6, n % 4
    mf = []
    for rp in (1, 2, 3, 0):
        for ct in range(4):
            ac = ACC2 + (ct * 4 + rp) * 4
            mf.append(f"v_mfma_f32_16x16x32_bf16 {vr(ac,4)}, {vr(WR+16*ws+4*ct,4)}, {vr(HFR+16*hs+4*rp,4)}, {'0' if n == 0 else vr(ac,4)}")
    vm.wait(f"H{n}")
    if n == 0 or n >= 6:
        a("s_waitcnt lgkmcnt(0)")
    fill = h_loads(n + 3) if n + 3 < 11 else []
    if n == 8 and not NOCONV:
        fill = [f"buffer_load_dword v{vP}, v{vFL}, s[{S_WS}:{S_WS+3}], s{sPEND} offen sc1"]
        vm.issue("SP")
    fill += w2_reads((n + 5) % 6, n - 1) if 1 <= n <= 5 else []
    merge(mf, fill)
    if n == 9:
        if not NOCONV:
            dn = a.label("SOK")
            vm.wait("SP")
            a(f"v_cmp_ne_u32 vcc, s{sTAG}, v{vP}")
            a("s_nop 1")
            a("s_cmp_eq_u64 vcc, 0")
            a(f"s_cbranch_scc1 {dn}")
            poll_flags(vFL, f"s{sPEND}", vP)
            a(f"{dn}:")
        a(f"s_add_u32 s{sT2}, s{sGH}, {8*4096}")
        a(f"buffer_load_dwordx4 {vr(SR,4)}, v{vSO}, s[{S_WS}:{S_WS+3}], s{sGH} offen sc1")
        a(f"buffer_load_dwordx4 {vr(SR+4,4)}, v{vSO}, s[{S_WS}:{S_WS+3}], s{sT2} offen sc1")
        vm.issue("SL", 2)
stamp("g")
a(f"s_setprio {PEPI}")
a(f"v_add_u32 v14, s{sQ}, v{vL16}")
for rp in range(1, 4):
    for ct in range(4):
        a(f"ds_write_b128 v14, {vr(ACC2+(ct*4+rp)*4,4)} offset:{(rp-1)*4096+ct*1024}")
a("v_lshrrev_b32 v14, 3, v0")
a("v_lshlrev_b32 v14, 7, v14")
a("v_and_b32 v15, 3, v0")
a("v_lshl_add_u32 v14, v15, 5, v14")
a("v_bfe_u32 v15, v0, 2, 1")
a("v_lshl_add_u32 v14, v15, 4, v14")
a(f"v_add_u32 v14, s{sRING}, v14")
a("s_waitcnt vmcnt(0)")
a(f"ds_write_b128 v14, {vr(SR,4)}")
a(f"ds_write_b128 v14, {vr(SR+4,4)} offset:1024")
a("v_mov_b32 v14, 1")
lds_arrive(vSYNC, 2, 14)
for rp in range(1, 4):
    a(f"s_sub_u32 s{sT0}, s{sWAVE}, {rp}")
    a(f"s_and_b32 s{sT0}, s{sT0}, 3")
    a(f"s_lshl_b32 s{sT0}, s{sT0}, 14")
    a(f"v_add_u32 v{vH+rp}, s{sT0}, v{vL16}")
a("v_lshrrev_b32 v14, 5, v0")
a(f"v_mul_u32_u24 v14, {RINGB}, v14")
a("v_bfe_u32 v15, v0, 4, 1")
a("v_lshl_add_u32 v14, v15, 10, v14")
a("v_bfe_u32 v15, v0, 2, 2")
a("v_lshl_add_u32 v14, v15, 7, v14")
a("v_and_b32 v15, 3, v0")
a("v_lshl_add_u32 v14, v15, 3, v14")
a(f"s_lshl_b32 s{sT0}, s{sWAVE}, 5")
a(f"s_add_u32 s{sT0}, s{sT0}, {L_RING}")
a(f"v_add_u32 v{vH}, s{sT0}, v14")
lds_wait(vSYNC, 2, 4, 14)
stamp("g")
PR = HFR
for rp in range(1, 4):
    for ct in range(4):
        a(f"ds_read_b128 {vr(PR+16*(rp-1)+4*ct,4)}, v{vH+rp} offset:{(rp-1)*4096+ct*1024}")
O = WR
for sidx in range(3):
    a(f"s_waitcnt lgkmcnt({8-4*sidx})")
    for ct in range(4):
        for hf in range(2):
            src = (ACC2 + ct * 16 + 2 * hf) if sidx == 0 else (O + 4 * ct + 2 * hf)
            a(f"v_pk_add_f32 {vr(O+4*ct+2*hf,2)}, {vr(src,2)}, {vr(PR+16*sidx+4*ct+2*hf,2)}")
for ct in range(4):
    a(f"ds_read_b64_tr_b16 {vr(SR+2*ct,2)}, v{vH} offset:{512*(ct&1)+2*RINGB*(ct>>1)}")
silu_pk(O, O + 16, 16, sNEG)
a("s_waitcnt lgkmcnt(0)")
for ct in range(4):
    for hf in range(2):
        sdw = SR + 2 * ct + hf
        xdw = XT + 2 * ct + hf
        t = O + 16 + 4 * (2 * (ct & 1) + hf)
        a(f"v_lshlrev_b32 v{t}, 16, v{sdw}")
        a(f"v_and_b32 v{t+1}, 0xffff0000, v{sdw}")
        a(f"v_lshlrev_b32 v{t+2}, 16, v{xdw}")
        a(f"v_and_b32 v{t+3}, 0xffff0000, v{xdw}")
        a(f"v_pk_fma_f32 {vr(t,2)}, {vr(t,2)}, {vr(O+4*ct+2*hf,2)}, {vr(t+2,2)}")
        a(f"v_cvt_pk_bf16_f32 v{xdw}, v{t}, v{t+1}")
    if ct & 1:
        hf = ct >> 1
        a(f"buffer_store_dwordx4 {vr(XT+4*hf,4)}, v{vXO}, s[{S_OUT}:{S_OUT+3}], s9 offen offset:{64*hf}")
stamp("g")
dump_stamps("g")
a("s_endpgm")

a("L_conv:")
sCH, sP, sCB, sDT, sDS, sCW = 10, 11, 6, 7, 9, 12
a(f"s_setprio {opt('pc0', 2)}")
a("v_mov_b32 v15, 0")
a("v_lshlrev_b32 v14, 2, v0")
a(f"v_add_u32 v14, {L_SYNC}, v14")
a(f"s_cmp_lg_u32 s{sWAVE}, 4")
a("s_cbranch_scc1 L_nozero")
a("ds_write_b32 v14, v15")
a("L_nozero:")
a(f"s_lshl_b32 s{sT0}, s{sXCD}, 5")
a(f"s_add_u32 s{sT0}, s{sT0}, s{sSLOT}")
a(f"s_lshl_b32 s{sT1}, s{sT0}, 2")
a(f"s_bfe_u32 s{sT2}, s{sWAVE}, 0x10001")
a(f"s_lshl_b32 s{sCH}, s{sT0}, 1")
a(f"s_add_u32 s{sCH}, s{sCH}, s{sT2}")
a(f"s_and_b32 s{sP}, s{sWAVE}, 1")
a(f"s_and_b32 s{sCW}, s{sWAVE}, 3")
a(f"s_mul_i32 s{sCB}, s{sT2}, {CSTR}")
a(f"s_add_u32 s{sCB}, s{sCB}, {L_CONV}")
a(f"s_lshl_b32 s{sT0}, s{sCH}, 8")
a(f"s_lshl_b32 s{sT3}, s{sP}, 7")
a(f"s_add_u32 s{sT0}, s{sT0}, s{sT3}")
a("v_lshlrev_b32 v3, 1, v0")
for k in range(4):
    a(f"s_mov_b32 s{46+4*k}, {512*128*2}")
    a(f"s_mov_b32 s{47+4*k}, 0x00020000")
a("s_waitcnt lgkmcnt(0)")
if DIAG:
    a(f"s_mov_b32 s{STAMP0}, s100")
for k in range(4):
    a(f"s_mov_b32 s{44+4*k}, s{18+2*k}")
    a(f"s_and_b32 s{45+4*k}, s{19+2*k}, 0xffff")
    a(f"buffer_load_ushort v{4+k}, v3, s[{44+4*k}:{47+4*k}], s{sT0} offen")
a("s_barrier")
a(f"s_load_dword s{sDT}, s[26:27], s{sT1}")
a(f"s_load_dword s{sDS}, s[28:29], s{sT1}")
srd(S_WS, 40, WSB)
srd(S_DBG, 38, 256)
vEP, vTGc, PFD = 255, 254, 248
a(f"s_or_b32 s77, s2, s{sCW}")
a("s_cmp_lg_u32 s77, 0")
a("s_cbranch_scc1 L_noepoch")
a(f"buffer_load_dword v{vEP}, v15, s[{S_WS}:{S_WS+3}], 0 offen sc1")
a("L_noepoch:")
def post_tag():
    a("s_cmp_lg_u32 s77, 0")
    a("s_cbranch_scc1 L_noepoch2")
    a(f"v_add_u32 v14, 0x9e3779b8, v{vEP}")
    a("v_or_b32 v14, 1, v14")
    a("s_mov_b64 exec, 1")
    a(f"buffer_store_dword v14, v15, s[{S_DBG}:{S_DBG+3}], 0 offen sc1")
    a(f"buffer_store_dword v14, v15, s[{S_WS}:{S_WS+3}], 0 offen sc1")
    a("s_mov_b64 exec, -1")
    a("L_noepoch2:")
if NOCONV:
    a("s_waitcnt vmcnt(0)")
    post_tag()
    a("s_endpgm")
V, PK, DT, LOF, HIF, SEL, GA, MK = 64, 96, 112, 144, 160, 176, 208, 227
KD = 52
vKA, vUA, vTKa, vTKb, vTK2, vTK0, vKW, vSA = 231, 232, 233, 234, 235, 236, 237, 238
vXT, vXS, vSTA, vM, vQ, vPS = 242, 246, 247, 252, 253, 3
a(f"v_and_b32 v{vM}, 15, v0")
a(f"v_lshrrev_b32 v{vQ}, 4, v0")
a("v_and_b32 v10, 1, v0")
a("v_lshlrev_b32 v10, 4, v10")
a("v_mov_b32 v11, 0x3f80")
a("v_lshlrev_b32 v10, v10, v11")
a("v_lshrrev_b32 v11, 1, v0")
for g in range(8):
    for d in range(4):
        if d & 1:
            a(f"v_cndmask_b32 v{SEL+4*g+d}, 0, v10, s[74:75]")
        else:
            a(f"v_cmp_eq_u32 vcc, {4*g+d}, v11")
            a(f"v_cmp_eq_u32 s[74:75], {4*g+d+1}, v11")
            a("s_nop 0")
            a(f"v_cndmask_b32 v{SEL+4*g+d}, 0, v10, vcc")
a(f"s_lshl_b32 s{sT0}, s{sP}, 2")
a(f"s_add_u32 s{sT0}, s{sT0}, s{sCB}")
a(f"s_add_u32 s{sT0}, s{sT0}, {C_TK}")
a(f"v_lshrrev_b32 v10, 1, v{vQ}")
a("v_lshlrev_b32 v10, 7, v10")
a(f"v_and_b32 v11, 1, v{vQ}")
a("v_lshl_add_u32 v10, v11, 2, v10")
a(f"v_lshl_add_u32 v10, v{vM}, 3, v10")
a(f"v_lshl_add_u32 v{vTK0}, v10, 3, s{sT0}")
a(f"v_lshlrev_b32 v10, 6, v{vQ}")
a(f"v_lshlrev_b32 v11, 1, v{vM}")
a(f"v_cmp_gt_u32 vcc, 2, v{vQ}")
a("v_add_u32 v10, v10, v11")
a("v_add_u32 v10, 256, v10")
a("v_cndmask_b32 v11, 0, v11, vcc")
a("v_add_u32 v10, v10, v11")
a(f"v_lshl_add_u32 v{vTKa}, v10, 3, s{sT0}")
a("v_mov_b32 v11, 256")
a("v_cndmask_b32 v11, v11, 16, vcc")
a(f"v_add_u32 v{vTKb}, v{vTKa}, v11")
a(f"v_lshl_add_u32 v10, v{vQ}, 6, v{vM}")
a("v_add_u32 v10, 512, v10")
a(f"v_lshl_add_u32 v{vTK2}, v10, 3, s{sT0}")
a(f"v_xor_b32 v10, v{vM}, v{vQ}")
a("v_and_b32 v10, 3, v10")
a("v_lshlrev_b32 v10, 4, v10")
a(f"v_lshl_add_u32 v10, v{vM}, 10, v10")
a(f"v_lshrrev_b32 v11, 2, v{vM}")
a("v_lshl_add_u32 v10, v11, 6, v10")
a(f"s_lshl_b32 s{sT0}, s{sCW}, 14")
a(f"v_add_u32 v{vSA}, s{sT0}, v10")
for i in range(1, 4):
    a(f"v_xor_b32 v{vSA+i}, {64*i}, v{vSA}")
a(f"s_lshl_b32 s{sT1}, s{sJ1}, 3")
a(f"v_add_u32 v10, s{sT1}, v{vQ}")
a("v_and_b32 v12, 1, v0")
a("v_lshlrev_b32 v12, 3, v12")
a("v_bfe_u32 v13, v0, 2, 2")
a("v_add_u32 v12, v12, v13")
a("v_bfe_u32 v13, v0, 1, 1")
a(f"v_lshl_add_u32 v13, v13, 3, s{sT0}")
for hh in range(2):
    if hh:
        a("v_add_u32 v12, 4, v12")
    a("v_xor_b32 v11, v12, v10")
    a("v_lshl_add_u32 v11, v11, 4, v13")
    a(f"v_lshl_add_u32 v{vXT+hh}, v12, 10, v11")
    a(f"v_xor_b32 v{vXT+2+hh}, 64, v{vXT+hh}")
a("v_lshrrev_b32 v12, 3, v0")
a("v_lshlrev_b32 v12, 14, v12")
a("v_and_b32 v13, 0x70, v1")
a(f"v_add_u32 v{vXS}, v12, v13")
a("v_bfe_u32 v12, v0, 2, 1")
a(f"s_lshl_b32 s{sT0}, s{sCW}, 7")
a(f"s_add_u32 s76, s{sT0}, {L_STAT}")
a(f"v_lshl_add_u32 v{vSTA}, v12, 6, s76")
a(f"s_lshl_b32 s{sT0}, s{sI1}, 2")
a(f"s_add_u32 s{sT0}, s{sT0}, s{sCW}")
a(f"s_lshl_b32 s{sT1}, s{sJ1}, 18")
a(f"s_lshl_b32 s{sT2}, s{sT0}, 7")
a(f"s_add_u32 s{sT1}, s{sT1}, s{sT2}")
a(f"s_add_u32 s70, s{sT1}, {XNT}")
a(f"s_add_u32 s79, s70, {8*16384}")
a(f"s_lshl_b32 s{sT1}, s{sJ1}, 7")
a(f"s_add_u32 s{sT0}, s{sT0}, s{sT1}")
a(f"s_lshl_b32 s{sT0}, s{sT0}, 4")
a(f"s_add_u32 s71, s{sT0}, {XF}")
a(f"s_bfe_u32 s{sT2}, s{sWAVE}, 0x10001")
a(f"s_lshl_b32 s{sT2}, s{sT2}, 4")
a(f"v_add_u32 v{vPS}, s{sT2}, v2")
stamp("c")
a("s_waitcnt lgkmcnt(0)")
a(f"s_lshr_b32 s{sDT}, s{sDT}, s{sT2}")
a(f"s_lshl_b32 s{sDT}, s{sDT}, 16")
a(f"s_lshr_b32 s{sDS}, s{sDS}, s{sT2}")
a(f"s_lshl_b32 s{sDS}, s{sDS}, 16")
a(f"s_mov_b32 s{sT3}, 0x3fb8aa3b")
a(f"v_mov_b32 v8, s{sDT}")
a(f"v_mul_f32 v8, s{sT3}, v8")
a("v_exp_f32 v8, v8")
a("s_waitcnt vmcnt(0)")
stamp("c")
post_tag()
srd(44, 34, 512 * 1376 * 2)
a(f"s_lshl_b32 s{sT0}, s{sSLOT}, 1")
a(f"s_add_u32 s{sT0}, s{sT0}, s{sP}")
a(f"s_mul_i32 s78, s{sT0}, {22*1024}")
PFN = [0]
def pf(n=1):
    c = 0
    for _ in range(n):
        if PFN[0] < 11 and opt("touch", 1):
            k = PFN[0]; PFN[0] += 1; c += 1
            if k and k % 4 == 0:
                a("s_add_u32 s78, s78, 4096")
            a(f"buffer_load_dwordx4 {vr(PFD,4)}, v1, s[44:47], s78 offen offset:{1024*(k%4)}")
    return c
for k in range(4):
    a(f"v_lshlrev_b32 v{4+k}, 16, v{4+k}")
a("v_cvt_pk_bf16_f32 v8, v8, v8")
a("v_lshlrev_b32 v8, 16, v8")
a(f"v_mul_f32 v4, s{sT3}, v4")
a("v_exp_f32 v4, v4")
a("v_mul_f32 v5, v5, v8")
a("v_cvt_pk_bf16_f32 v4, v4, v4")
a("v_lshlrev_b32 v4, 16, v4")
a("v_mul_f32 v4, v4, v8")
a(f"v_mul_f32 v4, 0xbfb8aa3b, v4")
a("v_mul_f32 v5, 0.15915494, v5")
Y = 20
a("v_add_f32 v8, v8, v8")
a(f"v_mul_f32 v{Y}, v6, v8")
a(f"v_mul_f32 v{Y+1}, v7, v8")
Z1, Z8, Z128, Yn = 24, 22, 40, 50
for (dst, mul) in ((Z8, "0x41000000"), (Z1, None), (Z128, "0x43000000")):
    if mul is None:
        a("v_exp_f32 v10, v4")
        a("v_fract_f32 v11, v5")
    else:
        a(f"v_mul_f32 v10, {mul}, v4")
        a(f"v_mul_f32 v11, {mul}, v5")
        a("v_fract_f32 v11, v11")
        a("v_exp_f32 v10, v10")
    a("v_cos_f32 v12, v11")
    a("v_sin_f32 v13, v11")
    a(f"v_mul_f32 v{dst}, v10, v12")
    a(f"v_mul_f32 v{dst+1}, v10, v13")
ctmp = [42, 44, 46, 48]
cti = [0]


def cmul(d, x, y):
    assert d not in (x, y)
    return (f"v_mul_f32 v{d}, v{x}, v{y}\nv_mul_f32 v{d+1}, v{x}, v{y+1}\n"
            f"v_fma_f32 v{d}, -v{x+1}, v{y+1}, v{d}\nv_fmac_f32 v{d+1}, v{x+1}, v{y}")


def pcmul(d, x, y):
    t = ctmp[cti[0] % 4]; cti[0] += 1
    return (f"v_pk_mul_f32 {vr(t,2)}, {vr(x,2)}, {vr(y,2)} op_sel:[0,0] op_sel_hi:[0,1]\n"
            f"v_pk_fma_f32 {vr(d,2)}, {vr(x,2)}, {vr(y,2)}, {vr(t,2)} op_sel:[1,1,0] op_sel_hi:[1,0,1] neg_lo:[0,1,0]")


def mov2(d, x):
    return f"v_mov_b32 v{d}, v{x}\nv_mov_b32 v{d+1}, v{x+1}"


def Wp(e): return Z1 + 2 * (e - 1)


def pack(neg_im):
    ng = "-" if neg_im else ""
    for i in range(8):
        a(f"v_cvt_pk_bf16_f32 v{PK+i}, v{V+4*i}, v{V+4*i+2}")
        a(f"v_cvt_pk_bf16_f32 v{PK+8+i}, {ng}v{V+4*i+1}, {ng}v{V+4*i+3}")


def transpose_mfmas():
    L = []
    for h in range(2):
        for q0 in range(4):
            for part in range(2):
                d = DT + 8 * q0 + 4 * part
                L.append(f"v_mfma_f32_16x16x32_bf16 {vr(d,4)}, {vr(PK+8*part+4*h,4)}, {vr(SEL+4*(2*q0+h),4)}, {'0' if h == 0 else vr(d,4)}")
    return L


def frags(dst):
    for q0 in range(4):
        for i in range(4):
            a(f"v_cvt_pk_bf16_f32 v{dst+4*q0+i}, v{DT+8*q0+2*i}, v{DT+8*q0+2*i+1}")


def contract(t):
    return [f"v_mfma_f32_16x16x32_bf16 {vr(KD+4*t,4)}, {vr(HIF+4*ks,4)}, {vr(LOF+4*ks,4)}, {'0' if ks == 0 else vr(KD+4*t,4)}" for ks in range(4)]


a(f"v_mov_b32 v{V}, 1.0")
a(f"v_mov_b32 v{V+1}, 0")
a(mov2(V + 2, Z8))
a(pcmul(V + 4, Z8, Z8))
a(pcmul(Wp(2), Z1, Z1))
for j in range(3, 16):
    a(pcmul(V + 2 * j, V + 2 * (j - 2), V + 4))
    if j <= 7:
        a(pcmul(Wp(j), Wp(j - 2), Wp(2)))
a(pcmul(Yn, Y, Z128))
pack(True)
t0 = []
for i, yy in enumerate((Y, Yn)):
    t0.append(mov2(V + 16 * i, yy))
    t0 += [cmul(V + 16 * i + 2 * e, yy, Wp(e)) for e in range(1, 8)]
merge(transpose_mfmas(), t0)
pack(False)
frags(LOF)
t1 = [cmul(V + 0, Yn, Z128), cmul(V + 8, V + 0, Z128), cmul(V + 16, V + 8, Z128)]
t1 += [cmul(V + 2 * e, V + 0, Wp(2 * e)) for e in range(1, 4)]
t1 += [cmul(V + 20, V + 16, Z128)]
t1 += [cmul(V + 8 + 2 * e, V + 8, Wp(2 * e)) for e in range(1, 4)]
t1 += [cmul(V + 24, V + 20, Z128), cmul(V + 18, V + 16, Wp(4)), cmul(V + 28, V + 24, Z128), cmul(V + 22, V + 20, Wp(4)),
       cmul(Yn, V + 28, Z128), cmul(V + 26, V + 24, Wp(4)), cmul(V + 30, V + 28, Wp(4))]
merge(transpose_mfmas(), t1)
pack(False)
frags(HIF)
t2 = [mov2(V, Yn), cmul(Y, Z128, Z128), cmul(V + 2, Yn, Z128)]
t2 += [cmul(V + 2 * i, V + 2 * (i - 2), Y) for i in range(2, 10)]
merge(contract(0) + transpose_mfmas(), t2)
pack(False)
frags(HIF)
merge(contract(1) + transpose_mfmas(), [f"ds_write_b32 v{vTK0}, v{KD+rho} offset:{8*rho}" for rho in range(4)], first=2, every=3)
for rho in range(4):
    a(f"ds_write_b32 v{vTKb if rho >> 1 else vTKa}, v{KD+4+rho} offset:{8*(rho&1)}")
frags(HIF)
emit(contract(2))
ON, SM, SQ, RW, UP, SF0 = 128, 132, 136, 140, 148, 64
for i in range(4):
    a(f"v_mov_b32 v{ON+i}, 0x3f803f80")
a("v_mov_b32 v14, 1")
a(f"s_lshl_b32 s{sT0}, s{sCW}, 2")
a(f"v_add_u32 v12, s{sT0}, v2")
for rho in range(4):
    a(f"ds_write_b32 v{vTK2}, v{KD+8+rho} offset:{128*rho}")
lds_arrive(vPS, 4, 14)
stamp("c")
a(f"s_setprio {PSTAT}")
lds_wait(12, 20, 1, 13)
stamp("c")
for ks in range(16):
    a(f"ds_read_b128 {vr(SF0+4*ks,4)}, v{vSA+(ks&3)} offset:{256*(ks>>2)}")
for ks in range(16):
    if ks % 4 == 0:
        a(f"s_waitcnt lgkmcnt({12-ks})")
    a(f"v_mfma_f32_16x16x32_bf16 {vr(SM,4)}, {vr(SF0+4*ks,4)}, {vr(ON,4)}, {'0' if ks == 0 else vr(SM,4)}")
    a(f"v_mfma_f32_16x16x32_bf16 {vr(SQ,4)}, {vr(SF0+4*ks,4)}, {vr(SF0+4*ks,4)}, {'0' if ks == 0 else vr(SQ,4)}")
for inst in range(2):
    for hh in range(2):
        a(f"ds_read_b64_tr_b16 {vr(RW+4*inst+2*hh,2)}, v{vXT+2*inst+hh}")
a(f"buffer_load_dword v{vTGc}, v15, s[{S_DBG}:{S_DBG+3}], 0 offen sc1")
a(f"v_and_b32 v10, 3, v{vM}")
a(f"v_lshl_add_u32 v11, v{vM}, 3, s76")
for r in range(1, 4):
    a(f"v_cmp_eq_u32 vcc, {r}, v10")
    a(f"v_cndmask_b32 v{SM}, v{SM}, v{SM+r}, vcc")
    a(f"v_cndmask_b32 v{SQ}, v{SQ}, v{SQ+r}, vcc")
a(f"v_mul_f32 v{SM}, 0x3b000000, v{SM}")
a(f"v_mul_f32 v{SQ}, 0x3b000000, v{SQ}")
a(f"v_fma_f32 v{SQ}, -v{SM}, v{SM}, v{SQ}")
a(f"v_max_f32 v{SQ}, 0, v{SQ}")
a(f"v_cvt_pk_bf16_f32 v{SM}, v{SM}, v{SQ}")
a(f"v_and_b32 v{SQ}, 0xffff0000, v{SM}")
a(f"v_add_f32 v{SQ}, 0x3727c5ac, v{SQ}")
a(f"v_cvt_pk_bf16_f32 v{SQ}, v{SQ}, v{SQ}")
a(f"v_lshlrev_b32 v{SQ}, 16, v{SQ}")
a(f"v_sqrt_f32 v{SQ}, v{SQ}")
a(f"v_lshlrev_b32 v{SM}, 16, v{SM}")
a(f"v_cvt_pk_bf16_f32 v{SQ}, v{SQ}, v{SQ}")
a(f"v_lshlrev_b32 v{SQ}, 16, v{SQ}")
a(f"v_rcp_f32 v{SM+2}, v{SQ}")
a(f"v_lshrrev_b32 v10, 2, v{vM}")
a(f"v_cmp_eq_u32 vcc, v10, v{vQ}")
a(f"v_mul_f32 v{SM+3}, v{SM}, v{SM+2}")
a("s_and_saveexec_b64 s[72:73], vcc")
a(f"ds_write_b64 v11, {vr(SM+2,2)}")
lds_arrive(2, 3, 14)
for k in range(4):
    a(f"ds_read_b128 {vr(SF0+4*k,4)}, v{vSTA} offset:{16*k}")
a("s_waitcnt lgkmcnt(6)")
for i in range(8):
    a(f"v_lshlrev_b32 v{UP+2*i}, 16, v{RW+i}")
    a(f"v_and_b32 v{UP+1+2*i}, 0xffff0000, v{RW+i}")
a("s_waitcnt lgkmcnt(0)")
for inst in range(2):
    for i in range(8):
        a(f"v_fma_f32 v{UP+8*inst+i}, v{UP+8*inst+i}, v{SF0+2*i}, -v{SF0+1+2*i}")
    for i in range(4 * inst, 4 * inst + 4):
        a(f"v_cvt_pk_bf16_f32 v{RW+i}, v{UP+2*i}, v{UP+1+2*i}")
    a(f"buffer_store_dwordx4 {vr(RW+4*inst,4)}, v{vXS}, s[{S_WS}:{S_WS+3}], s{79 if inst else 70} offen sc1")
a(f"s_setprio {PCONV}")
stamp("c")
a(f"v_lshlrev_b32 v10, 3, v{vQ}")
a(f"v_sub_u32 v10, v{vM}, v10")
a(f"s_mul_i32 s{sT0}, s{sP}, 100")
a(f"s_add_u32 s{sT0}, s{sT0}, 16")
a(f"v_add_u32 v10, s{sT0}, v10")
a("v_mov_b32 v12, 0xffff")
a("v_mov_b32 v13, 0xffff0000")
for d in range(4):
    a(f"v_cmp_le_i32 vcc, {2*d}, v10")
    a(f"v_cmp_le_i32 s[72:73], {2*d+1}, v10")
    a(f"v_cndmask_b32 v{MK+d}, 0, v12, vcc")
    a("v_cndmask_b32 v11, 0, v13, s[72:73]")
    a(f"v_or_b32 v{MK+d}, v{MK+d}, v11")
a(f"v_and_b32 v10, 3, v{vM}")
a(f"v_mul_u32_u24 v10, {KCS}, v10")
a(f"v_lshrrev_b32 v11, 2, v{vM}")
a("v_lshlrev_b32 v11, 3, v11")
a("v_sub_u32 v10, v10, v11")
a(f"v_lshl_add_u32 v10, v{vQ}, 4, v10")
a(f"s_lshl_b32 s{sT0}, s{sP}, 8")
a(f"s_sub_u32 s{sT0}, s{sCB}, s{sT0}")
a(f"s_add_u32 s{sT1}, s{sT0}, 24")
a(f"v_add_u32 v{vKA}, s{sT1}, v10")
a(f"v_lshlrev_b32 v10, 5, v{vM}")
a(f"v_lshl_add_u32 v10, v{vQ}, 4, v10")
a(f"s_add_u32 s{sT1}, s{sT0}, {C_UL}")
a(f"v_add_u32 v{vUA}, s{sT1}, v10")
a(f"s_add_u32 s{sT0}, s{sCB}, {C_UL}")
a(f"v_add_u32 v10, s{sT0}, v1")
for i in range(4):
    a(f"v_mov_b32 v{16+i}, 0")
a("v_cmp_gt_u32 vcc, 30, v0")
a("s_and_saveexec_b64 s[72:73], vcc")
a("ds_write_b128 v10, v[16:19]")
a("s_mov_b64 exec, -1")
a(f"s_lshl_b32 s{sT0}, s{sP}, 6")
a(f"v_add_u32 v12, s{sT0}, v0")
a(f"v_lshl_add_u32 v{vKW}, v12, 5, s{sCB}")
a("v_lshlrev_b32 v13, 4, v12")
a("v_sub_u32 v13, 0x7ff, v13")
a("v_cvt_f32_u32 v16, v13")
a(f"s_add_u32 s{sT1}, s{sCB}, {C_TK}")
a(f"v_lshl_add_u32 v17, v13, 3, s{sT1}")
a(f"s_add_u32 s{sT0}, s{sT1}, {8*127}")
a(f"v_mov_b32 v18, s{sT0}")
a(f"s_sub_u32 s{sT0}, s{sT1}, {8*0x4280}")
for s in range(0, 19, 2):
    a(f"v_subrev_f32 v10, {float(s)}, v16" if s else "v_mov_b32 v10, v16")
    a(f"v_subrev_f32 v11, {float(s+1)}, v16")
    a("v_cvt_pk_bf16_f32 v10, v10, v11")
    for k in range(2):
        if s + k > 18:
            continue
        a("v_and_b32 v11, 0x7fff, v10" if k == 0 else "v_bfe_u32 v11, v10, 16, 15")
        a(f"v_lshl_add_u32 v11, v11, 3, s{sT0}")
        a(f"v_subrev_u32 v12, {8*(s+k)}, v17")
        a(f"v_med3_i32 v12, v12, s{sT1}, v18")
        a(f"v_max_i32 v{GA+s+k}, v11, v12")
a("s_waitcnt vmcnt(0)")
get_tag(vTGc, 15)
publish("s71", 14, 15)
stamp("c")
a(f"s_lshl_b32 s{sT0}, s{sXCD}, 11")
a(f"s_add_u32 s74, s{sT0}, {XF}")
a(f"s_lshr_b32 s{sT0}, s{sCH}, 2")
a(f"s_lshl_b32 s{sT0}, s{sT0}, 14")
a(f"s_and_b32 s{sT1}, s{sCH}, 2")
a(f"s_lshl_b32 s{sT1}, s{sT1}, 4")
a(f"s_add_u32 s{sT0}, s{sT0}, s{sT1}")
a(f"s_lshl_b32 s{sT1}, s{sP}, 13")
a(f"s_add_u32 s{sT0}, s{sT0}, s{sT1}")
a(f"s_add_u32 s75, s{sT0}, {XNT}")
a(f"s_add_u32 s76, s75, 4096")
a(f"s_lshl_b32 s{sT1}, s{sP}, 10")
a(f"s_add_u32 s74, s74, s{sT1}")
a("v_lshrrev_b32 v10, 1, v0")
a("v_and_b32 v11, 1, v0")
a("v_lshlrev_b32 v9, 6, v10")
a("v_lshl_add_u32 v9, v11, 4, v9")
a(f"v_mul_u32_u24 v11, {CSTR}, v11")
a("v_lshl_add_u32 v10, v10, 4, v11")
a(f"s_lshl_b32 s{sT0}, s{sP}, 11")
a(f"s_add_u32 s{sT0}, s{sT0}, {L_CONV+C_UL+480}")
a(f"v_add_u32 v8, s{sT0}, v10")
GV, KP = 64, 112
lds_wait(vPS, 4, 2, 13)
for s in range(19):
    a(f"ds_read_b64 {vr(GV+2*s,2)}, v{GA+s}")
a("s_waitcnt lgkmcnt(0)")
for s in range(19):
    a(f"v_add_f32 v{GV+2*s}, v{GV+2*s}, v{GV+2*s+1}")
for kap in range(4):
    for d in range(8):
        s0 = 3 - kap + 2 * d
        a(f"v_cvt_pk_bf16_f32 v{KP+8*kap+d}, v{GV+2*s0}, v{GV+2*(s0+1)}")
def k_copies():
    for kap in range(4):
        for hq in range(2):
            a(f"ds_write_b128 v{vKW}, {vr(KP+8*kap+4*hq,4)} offset:{kap*KCS+16*hq}")
LATEW = opt("latew", 1)
if not LATEW:
    k_copies()
stamp("c")
a(f"s_cmp_ge_u32 s{sCW}, 2")
a("s_cbranch_scc1 L_nou")
poll_flags(1, "s74", 13, sleep=4)
for i in range(4):
    a(f"buffer_load_dwordx4 {vr(16+4*i,4)}, v9, s[{S_WS}:{S_WS+3}], s{75+(i>>1)} offen offset:{2048*(i&1)} sc1")
a("s_waitcnt vmcnt(0)")
a("s_branch L_join")
a("L_nou:")
if opt("touch", 1):
    for k in range(22):
        if k and k % 4 == 0:
            a("s_add_u32 s78, s78, 4096")
        a(f"buffer_load_dwordx4 {vr(PFD,4)}, v1, s[44:47], s78 offen offset:{1024*(k%4)}")
        a(f"s_waitcnt vmcnt({opt('pfd', 6)})")
a("L_join:")
stamp("c")
lds_wait(2, 1, 4, 13)
if LATEW:
    k_copies()
a(f"s_cmp_ge_u32 s{sCW}, 2")
a("s_cbranch_scc1 L_nou2")
for i in range(4):
    a(f"ds_write_b128 v8, {vr(16+4*i,4)} offset:{512*i}")
a("L_nou2:")
a(f"s_setprio {PCM}")
a("v_mov_b32 v14, 1")
lds_arrive(2, 12, 14)
lds_wait(2, 12, 4, 13)
stamp("c")
if opt("gate", 1):
    a(f"s_lshl_b32 s{sT0}, s{sCW}, 2")
    a(f"v_add_u32 v12, s{sT0}, v2")
    lds_wait(12, 16, 1, 13)
stamp("c")
CA = 16
FR = [48, 112]


def conv_reads(rho, b):
    f = FR[b]
    L = []
    for s in range(8):
        L.append(f"ds_read_b128 {vr(f+32+4*s,4)}, v{vUA} offset:{512*s+64*(7-rho)}")
        for hh in range(2):
            L.append(f"ds_read_b64 {vr(f+4*s+2*hh,2)}, v{vKA} offset:{64*(63-8*s-rho)+8*hh}")
    return L


emit(conv_reads(0, 0))
for rho in range(4):
    f = FR[rho & 1]
    a("s_waitcnt lgkmcnt(0)")
    if rho == 0:
        for d in range(4):
            a(f"v_and_b32 v{f+d}, v{f+d}, v{MK+d}")
    mf = []
    seen = set()
    for s in range(8):
        for w in range(8 - s):
            t = s + w
            c = "0" if (rho == 0 and t not in seen) else vr(CA + 4 * t, 4)
            seen.add(t)
            mf.append(f"v_mfma_f32_16x16x32_bf16 {vr(CA+4*t,4)}, {vr(f+4*s,4)}, {vr(f+32+4*w,4)}, {c}")
    if rho < 3:
        merge(mf, conv_reads(rho + 1, (rho + 1) & 1))
    else:
        tail = [f"s_add_u32 s{sT0}, s{sCB}, {C_TK}", f"s_lshl_b32 s{sT1}, s{sP}, 12", f"s_add_u32 s{sT2}, s{sT0}, s{sT1}",
                f"v_add_u32 v12, s{sT2}, v1", f"s_xor_b32 s{sT1}, s{sT1}, 4096", f"s_add_u32 s{sT2}, s{sT0}, s{sT1}",
                f"v_add_u32 v11, s{sT2}, v1",
                f"v_lshlrev_b32 v10, 5, v{vM}", f"v_lshl_add_u32 v10, v{vQ}, 3, v10",
                f"s_lshl_b32 s{sT0}, s{sP}, 11", f"s_add_u32 s{sT0}, s{sT0}, s{sCB}", f"s_add_u32 s{sT0}, s{sT0}, {C_UL+480}",
                f"v_add_u32 v10, s{sT0}, v10"]
        tail += [f"ds_read_b64 {vr(48+2*i,2)}, v10 offset:{512*i}" for i in range(4)]
        tail += [f"s_lshl_b32 s{sT0}, s{sCH}, 12", f"s_lshl_b32 s{sT1}, s{sP}, 11", f"s_add_u32 s{sT0}, s{sT0}, s{sT1}",
                 f"s_add_u32 s70, s{sT0}, {ST}",
                 f"s_lshl_b32 s{sT0}, s{sXCD}, 1", f"s_add_u32 s{sT0}, s{sT0}, s{sP}", f"s_lshl_b32 s{sT0}, s{sT0}, 10",
                 f"s_and_b32 s{sT1}, s{sCH}, 63", f"s_lshl_b32 s{sT1}, s{sT1}, 4", f"s_add_u32 s{sT0}, s{sT0}, s{sT1}",
                 f"s_add_u32 s71, s{sT0}, {SF}", "v_mov_b32 v14, 1"]
        merge(mf, tail)
stamp("c")
a(f"s_cmp_eq_u32 s{sP}, 0")
a("s_cbranch_scc0 L_xp1")
for i in range(4):
    a(f"ds_write_b128 v12, {vr(CA+16+4*i,4)} offset:{1024*i}")
lds_arrive(vPS, 6, 14)
a("s_branch L_xdone")
a("L_xp1:")
a("s_nop 7")
for i in range(4):
    a(f"ds_write_b128 v12, {vr(CA+4*i,4)} offset:{1024*i}")
lds_arrive(vPS, 6, 14)
for i in range(16):
    a(f"v_mov_b32 v{CA+i}, v{CA+16+i}")
a("L_xdone:")
a("s_waitcnt lgkmcnt(5)")
for i in range(4):
    for hf in range(2):
        a(f"v_lshlrev_b32 v{72+4*i+2*hf}, 16, v{48+2*i+hf}")
        a(f"v_and_b32 v{72+4*i+2*hf+1}, 0xffff0000, v{48+2*i+hf}")
for i in range(16):
    a(f"v_fma_f32 v{CA+i}, v{72+i}, s{sDS}, v{CA+i}")
lds_wait(vPS, 6, 2, 13)
for i in range(4):
    a(f"ds_read_b128 {vr(48+4*i,4)}, v11 offset:{1024*i}")
for pr in range(2):
    a(f"s_waitcnt lgkmcnt({2-2*pr})")
    for i in range(8 * pr, 8 * pr + 8):
        a(f"v_add_f32 v{CA+i}, v{CA+i}, v{48+i}")
    for i in range(4 * pr, 4 * pr + 4):
        a(f"v_cvt_pk_bf16_f32 v{64+i}, v{CA+2*i}, v{CA+2*i+1}")
    for hf in range(2):
        a(f"v_permlane16_swap_b32 v{64+4*pr+hf}, v{64+4*pr+2+hf}")
    a(f"buffer_store_dwordx4 {vr(64+4*pr,4)}, v1, s[{S_WS}:{S_WS+3}], s70 offen offset:{1024*pr} sc1")
a("s_waitcnt vmcnt(0)")
publish("s71", 14, 15)
stamp("c")
dump_stamps("c")
a("L_end:")
a("s_endpgm")
a("L_code_end:")
a.raw('.section .rodata,"a"\n.p2align 6')
a.raw(kernel_desc(KN, 256, 102, 256))
open(OUT, "w").write(a.text())
print("nops inserted:", a.nnop, "instrs:", sum(1 for i in a.items if not isinstance(i, str)), "lds", LDS_BYTES)
```

```python
import sys
from asmlib import *

DIAG = "--diag" in sys.argv
NOCONV = "--noconv" in sys.argv
CYC = "--cyc" in sys.argv
MAP48 = "--map48" in sys.argv
OUT = [x for x in sys.argv[1:] if not x.startswith("--")][0]


def opt(name, default):
    for x in sys.argv:
        if x.startswith(f"--{name}="):
            return int(x.split("=")[1])
    return default


PCONV, PSTAT, PG1, PEPI, PCM = opt("pconv", 0), opt("pstat", 2), opt("pg1", 3), opt("pepi", 3), opt("pcm", 2)

XF, SF, HF = 0x1000, 0x5000, 0x9000
XNT, ST, HB = 0x20000, 0x220000, 0x420000
STAMP, WSB, OOB = 0x1000000, 0x10000000, 0x40000000
L_RING, RINGB = 65536, 9216
L_CONV = L_RING + 4 * RINGB
KCS = 4160
C_TK = 4 * KCS
C_UL = C_TK + 8192
CSTR = C_UL + 4608
L_SYNC = L_CONV + 2 * CSTR
L_STAT = L_SYNC + 256
LDS_BYTES = L_STAT + 512
W1RS = 2752
SPIN = 1 << 18

a = Asm()
sWAVE, sI1, sJ1, sI2, sJ2, sTAG = 3, 4, 5, 6, 7, 8
sG, sK, sRING, sGH, sPEND, sQ = 10, 11, 12, 13, 14, 15
S_X, S_W1, S_W2, S_OUT, S_WS, S_DBG = 44, 48, 52, 56, 60, 64
sT0, sT1, sT2, sT3 = 42, 43, 68, 69
sKS = 70
sXCD, sSLOT, sSPIN = 81, 82, 83
sHF, sHH = 0, 1
STAMP0 = 84
nstamp = {"g": 0, "c": 0}


def srd_l(d, base, nbytes):
    return [f"s_mov_b32 s{d}, s{base}", f"s_and_b32 s{d+1}, s{base+1}, 0xffff",
            f"s_mov_b32 s{d+2}, {nbytes}", f"s_mov_b32 s{d+3}, 0x00020000"]


def emit(L):
    for t in L:
        a(t)


def srd(d, base, nbytes):
    emit(srd_l(d, base, nbytes))


WST = "--wst" in sys.argv
_phase = [0]
def fst():
    if WST:
        _phase[0] = 1
        stamp("g", True)
def stamp(role, fine=False):
    if not DIAG:
        return
    if WST and role == "g" and not fine and nstamp["g"] >= 1 and not _phase[0]:
        return
    k = nstamp[role]; nstamp[role] += 1
    assert k < 16
    a("s_memtime s[100:101]" if CYC else "s_memrealtime s[100:101]")
    a("s_waitcnt lgkmcnt(0)")
    a(f"s_mov_b32 s{STAMP0+k}, s100")


def dump_stamps(role):
    if not DIAG:
        return
    a(f"s_lshl_b32 s{sT0}, s2, 3")
    a(f"s_add_u32 s{sT0}, s{sT0}, s{sWAVE}")
    a(f"s_lshl_b32 s{sT0}, s{sT0}, 6")
    a(f"s_add_u32 s{sT0}, s{sT0}, {STAMP}")
    a("v_mov_b32 v14, 0")
    for k in range(nstamp[role]):
        a(f"v_mov_b32 v15, s{STAMP0+k}")
        a(f"buffer_store_dword v15, v14, s[{S_WS}:{S_WS+3}], s{sT0} offen offset:{4*k}")
    a("s_waitcnt vmcnt(0)")


class VM:
    def __init__(self):
        self.q = []
    def issue(self, tag, n=1):
        self.q += [tag] * n
    def wait(self, tag):
        if tag not in self.q:
            return
        idx = max(i for i, t in enumerate(self.q) if t == tag)
        a(f"s_waitcnt vmcnt({min(len(self.q) - 1 - idx, 63)})")
        self.q = self.q[idx + 1:]
    def drain(self):
        self.q = []


def lds_arrive(vsync, word, vone):
    a("s_mov_b64 exec, 1")
    a(f"ds_add_u32 v{vsync}, v{vone} offset:{4*word}")
    a("s_mov_b64 exec, -1")


def lds_wait(vsync, word, n, vtmp):
    lp, dn = a.label("LW"), a.label("LWD")
    a(f"s_mov_b32 s{sSPIN}, 0")
    a(f"{lp}:")
    a(f"ds_read_b32 v{vtmp}, v{vsync} offset:{4*word}")
    a(f"s_add_u32 s{sSPIN}, s{sSPIN}, 1")
    a("s_waitcnt lgkmcnt(0)")
    a(f"v_readfirstlane_b32 s{sT0}, v{vtmp}")
    a(f"s_cmp_gt_u32 s{sSPIN}, {SPIN*8}")
    a(f"s_cbranch_scc1 {dn}")
    a(f"s_cmp_ge_u32 s{sT0}, {n}")
    a(f"s_cbranch_scc1 {dn}")
    a(f"s_sleep {opt('lsleep', 1)}")
    a(f"s_branch {lp}")
    a(f"{dn}:")


def poll_flags(voff, soff, vtmp, sleep=1):
    lp, dn = a.label("PF"), a.label("PFD")
    a(f"s_mov_b32 s{sSPIN}, 0")
    a(f"{lp}:")
    a(f"buffer_load_dword v{vtmp}, v{voff}, s[{S_WS}:{S_WS+3}], {soff} offen sc1")
    a(f"s_add_u32 s{sSPIN}, s{sSPIN}, 1")
    a("s_waitcnt vmcnt(0)")
    a(f"v_cmp_ne_u32 vcc, s{sTAG}, v{vtmp}")
    a(f"s_cmp_gt_u32 s{sSPIN}, {SPIN}")
    a(f"s_cbranch_scc1 {dn}")
    a("s_cmp_eq_u64 vcc, 0")
    a(f"s_cbranch_scc1 {dn}")
    a(f"s_sleep {sleep}")
    a(f"s_branch {lp}")
    a(f"{dn}:")


def get_tag(vtmp, vzero):
    lp, dn = a.label("GT"), a.label("GTD")
    a(f"s_mov_b32 s{sSPIN}, 0")
    a(f"{lp}:")
    a(f"v_readfirstlane_b32 s{sTAG}, v{vtmp}")
    a(f"s_add_u32 s{sSPIN}, s{sSPIN}, 1")
    a(f"s_cmp_gt_u32 s{sSPIN}, {SPIN}")
    a(f"s_cbranch_scc1 {dn}")
    a(f"s_cmp_lg_u32 s{sTAG}, 0")
    a(f"s_cbranch_scc1 {dn}")
    a("s_sleep 1")
    a(f"buffer_load_dword v{vtmp}, v{vzero}, s[{S_DBG}:{S_DBG+3}], 0 offen sc1")
    a("s_waitcnt vmcnt(0)")
    a(f"s_branch {lp}")
    a(f"{dn}:")


def publish(soff, vtmp, vzero):
    a(f"v_mov_b32 v{vtmp}, s{sTAG}")
    a("s_mov_b64 exec, 1")
    a(f"buffer_store_dword v{vtmp}, v{vzero}, s[{S_WS}:{S_WS+3}], {soff} offen sc1")
    a("s_mov_b64 exec, -1")


def merge(main, fill, first=0, every=1):
    fill = list(fill)
    for i, m in enumerate(main):
        a(m)
        if i >= first and (i - first) % every == 0 and fill:
            a(fill.pop(0))
    for f in fill:
        a(f)


def silu_pk(src, tmp, n, sneg, drip=lambda k: None):
    for i in range(0, n, 2):
        a(f"v_pk_mul_f32 {vr(tmp+i,2)}, {vr(src+i,2)}, s[{sneg}:{sneg+1}]")
    for i in range(n):
        a(f"v_exp_f32 v{tmp+i}, v{tmp+i}")
    drip(2)
    for i in range(0, n, 2):
        a(f"v_pk_add_f32 {vr(tmp+i,2)}, {vr(tmp+i,2)}, 1.0 op_sel_hi:[1,0]")
    for i in range(n):
        a(f"v_rcp_f32 v{tmp+i}, v{tmp+i}")
    for i in range(0, n, 2):
        a(f"v_pk_mul_f32 {vr(src+i,2)}, {vr(src+i,2)}, {vr(tmp+i,2)}")


def klist_code(dst, count, srot, t0, stbl, t1):
    L = []
    for n in range(count):
        L += [f"s_add_u32 s{t0}, s{srot}, {n}", f"s_and_b32 s{t0}, s{t0}, 7", f"s_mul_i32 s{t0}, s{t0}, 43",
              f"s_add_u32 s{t1}, s{t0}, 35", f"s_lshr_b32 s{t0}, s{t0}, 3", f"s_lshr_b32 s{t1}, s{t1}, 3",
              f"s_add_u32 s{t0}, s{t0}, s{stbl}", f"s_min_u32 s{dst+n}, s{t0}, s{t1}"]
    return L


a.raw(open("recurrent_scan__ssm_conv_s4d__dense_activation_silu__prompt.s.ref").read().split("; Override")[0].rstrip())
a.raw(f"; @launch grid=(256,1,1) block=(512,1,1) lds={LDS_BYTES}")
a.raw('.amdgcn_target "amdgcn-amd-amdhsa--gfx950"')
a.raw(".text")
a.raw(f".globl {KN}\n.p2align 8\n.type {KN},@function\n{KN}:")
a("s_cmp_ge_u32 s2, 256")
a("s_cbranch_scc1 L_end")
a("s_load_dwordx16 s[16:31], s[0:1], 0")
a("s_load_dwordx8 s[32:39], s[0:1], 64")
a("s_load_dwordx2 s[40:41], s[0:1], 96")
if DIAG:
    a("s_memtime s[100:101]" if CYC else "s_memrealtime s[100:101]")
    nstamp["g"] = nstamp["c"] = 1
a("s_getpc_b64 s[64:65]")
a("L_pc:")
a("s_and_b32 s65, s65, 0xffff")
a("s_mov_b32 s66, L_code_end-L_pc")
a("s_mov_b32 s67, 0x00020000")
a("v_lshlrev_b32 v1, 7, v0")
a("buffer_load_dword v254, v1, s[64:67], 0 offen")
a("v_lshrrev_b32 v1, 6, v0")
a("v_and_b32 v0, 63, v0")
a(f"v_readfirstlane_b32 s{sWAVE}, v1")
a("v_lshlrev_b32 v1, 4, v0")
a(f"s_and_b32 s{sXCD}, s2, 7")
a(f"s_lshr_b32 s{sSLOT}, s2, 3")
if MAP48:
    a(f"s_lshl_b32 s{sT0}, s{sXCD}, 2")
    a(f"s_and_b32 s{sI1}, s{sSLOT}, 3")
    a(f"s_add_u32 s{sI1}, s{sI1}, s{sT0}")
    a(f"s_lshr_b32 s{sJ1}, s{sSLOT}, 2")
else:
    a(f"s_lshr_b32 s{sT0}, s{sXCD}, 1")
    a(f"s_lshl_b32 s{sT0}, s{sT0}, 3")
    a(f"s_and_b32 s{sI1}, s{sSLOT}, 7")
    a(f"s_add_u32 s{sI1}, s{sI1}, s{sT0}")
    a(f"s_and_b32 s{sT0}, s{sXCD}, 1")
    a(f"s_lshl_b32 s{sT0}, s{sT0}, 2")
    a(f"s_lshr_b32 s{sJ1}, s{sSLOT}, 3")
    a(f"s_add_u32 s{sJ1}, s{sJ1}, s{sT0}")
a(f"v_mov_b32 v2, {L_SYNC}")
a(f"s_cmp_ge_u32 s{sWAVE}, 4")
a("s_cbranch_scc1 L_conv")

vL16, vSYNC = 1, 2
vX, vD0, vD1, vD2, vA0, vT0, vT1, vT2, vW2, vB0, vB1 = 3, 4, 5, 6, 7, 8, 9, 10, 11, 12, 13
ACC1, CS, F0, F1, TMP, WR = 16, 64, 76, 104, 132, 160
FB = [F0, F1]
ONES, vA, vFA, vFB = TMP, TMP + 4, TMP + 5, TMP + 6
vTG = TMP + 27
vm = VM()
vm.issue("PF")
a("v_lshrrev_b32 v14, 4, v0")
a("v_and_b32 v14, 2, v14")
a("v_xor_b32 v14, v14, v0")
a("v_and_b32 v14, 3, v14")
a("v_lshrrev_b32 v15, 2, v0")
a(f"v_mul_u32_u24 v{vD0}, {W1RS}, v15")
a(f"v_lshl_add_u32 v{vD0}, v14, 4, v{vD0}")
a(f"v_add_u32 v{vD1}, {16*W1RS-1024}, v{vD0}")
a("v_bfe_u32 v14, v0, 1, 2")
a("v_lshrrev_b32 v15, 5, v0")
a("v_lshl_add_u32 v14, v15, 2, v14")
a("v_bfe_u32 v15, v0, 3, 2")
a("v_lshl_add_u32 v14, v15, 3, v14")
a(f"v_mul_u32_u24 v14, {W1RS}, v14")
a("v_and_b32 v15, 1, v0")
a(f"v_lshl_add_u32 v{vD2}, v15, 4, v14")
a(f"s_mul_i32 s{sT0}, s{sJ1}, 43")
a(f"s_add_u32 s{sT1}, s{sT0}, 35")
a(f"s_lshr_b32 s{sT0}, s{sT0}, 3")
a(f"s_lshr_b32 s{sT1}, s{sT1}, 3")
a(f"s_sub_u32 s{sT1}, s{sT1}, s{sT0}")
a(f"s_lshl_b32 s{sT2}, s{sWAVE}, 3")
a(f"s_lshr_b32 s{sT2}, 0x05030200, s{sT2}")
a(f"s_and_b32 s{sT2}, s{sT2}, 7")
a(f"s_min_u32 s{sT2}, s{sT2}, s{sT1}")
a(f"s_add_u32 s{sHF}, s{sT0}, s{sT2}")
a(f"s_lshl_b32 s{sG}, s{sHF}, 6")
a(f"s_lshr_b32 s{sT2}, s{sWAVE}, 1")
a(f"s_mul_i32 s{sT2}, s{sT2}, 3")
a(f"s_add_u32 s{sT2}, s{sT2}, 1")
a(f"s_add_u32 s{sHH}, s{sT0}, s{sT2}")
a(f"s_cmp_lt_u32 s{sT2}, s{sT1}")
a(f"s_cselect_b32 s9, 0, {OOB}")
a(f"s_lshl_b32 s{sGH}, s{sHH}, 1")
a(f"s_and_b32 s{sT2}, s{sWAVE}, 1")
a(f"s_add_u32 s{sGH}, s{sGH}, s{sT2}")
a(f"s_lshl_b32 s{sGH}, s{sGH}, 5")
a(f"s_add_u32 s{sGH}, s{sGH}, s9")
if MAP48:
    a(f"s_and_b32 s{sT0}, s{sSLOT}, 3")
    a(f"s_lshl_b32 s{sT0}, s{sT0}, 1")
else:
    a(f"s_and_b32 s{sT0}, s{sSLOT}, 7")
a(f"s_mul_i32 s{sK}, s{sT0}, {2*32*W1RS}")
sKX = sI2
a(f"s_lshl_b32 s{sKX}, s{sT0}, 7")
a(f"s_mul_i32 s{sRING}, s{sWAVE}, {RINGB}")
a(f"s_add_u32 s{sRING}, s{sRING}, {L_RING}")


def w1_refill(slot, tag):
    vm.issue(tag, 3)
    return [
        f"s_add_u32 m0, s{sRING}, {slot*3072}\ns_add_u32 s{sT1}, s{sG}, s{sK}\n"
        f"buffer_load_dwordx4 v{vD0}, s[{S_W1}:{S_W1+3}], s{sT1} offen lds",
        f"s_add_u32 s{sT2}, s{sGH}, s{sK}\n"
        f"buffer_load_dwordx4 v{vD1}, s[{S_W1}:{S_W1+3}], s{sT1} offen offset:1024 lds",
        f"s_add_u32 m0, s{sRING}, {slot*3072+2048}\ns_add_u32 s{sK}, s{sK}, {32*W1RS}\n"
        f"buffer_load_dwordx4 v{vD2}, s[{S_W1}:{S_W1+3}], s{sT2} offen lds\n"
        f"s_cmp_eq_u32 s{sK}, {512*W1RS}\ns_cselect_b32 s{sK}, 0, s{sK}",
    ]


a("v_and_b32 v14, 15, v0")
a(f"v_lshrrev_b32 v{vFA}, 4, v0")
a(f"v_xor_b32 v15, v14, v{vFA}")
a("v_and_b32 v15, 3, v15")
a("v_lshlrev_b32 v15, 4, v15")
a("v_lshl_add_u32 v15, v14, 10, v15")
a("v_lshrrev_b32 v14, 2, v14")
a(f"v_lshl_add_u32 v{vA0}, v14, 6, v15")
a(f"v_lshl_add_u32 v15, v{vFA}, 3, v14")
a("v_lshlrev_b32 v15, 6, v15")
a(f"v_and_b32 v{vT0}, 1, v{vFA}")
a(f"v_lshl_add_u32 v15, v{vT0}, 5, v15")
a(f"v_and_b32 v{vT0}, 3, v0")
a(f"v_lshl_add_u32 v15, v{vT0}, 3, v15")
a(f"v_add_u32 v{vT0}, s{sRING}, v15")
a(f"v_xor_b32 v{vT1}, 32, v{vT0}")
a(f"v_lshlrev_b32 v{vT2}, 3, v0")
a(f"v_add_u32 v{vT2}, s{sRING}, v{vT2}")
for i in range(4):
    a(f"v_mov_b32 v{ONES+i}, 0x3f803f80")
sXR, sXB = 72, 73
a(f"s_lshl_b32 s{sQ}, s{sWAVE}, 14")
a(f"s_lshl_b32 s{sXB}, s{sI1}, 16")
a(f"s_lshl_b32 s{sXR}, s{sJ1}, 12")
XO = WR
for k in range(4):
    a(f"s_add_u32 s{sT1}, s{sJ1}, {k}")
    a(f"s_and_b32 s{sT1}, s{sT1}, 3")
    a(f"s_lshl_b32 s{sT3}, s{sT1}, 6")
    a(f"v_xor_b32 v{XO+4*k}, s{sT3}, v{vL16}")
    for r in range(1, 4):
        a(f"v_xor_b32 v{XO+4*k+r}, {16*r}, v{XO+4*k}")
    a(f"s_lshl_b32 s{sT1}, s{sT1}, 12")
    a(f"s_add_u32 s{74+k}, s{sT1}, s{sQ}")
a("s_mov_b32 s46, 2097152")
a("s_mov_b32 s47, 0x00020000")
a(f"s_mov_b32 s50, {512*1376*2}")
a("s_mov_b32 s51, 0x00020000")
a("s_waitcnt lgkmcnt(0)")
if DIAG:
    a(f"s_mov_b32 s{STAMP0}, s100")
a("s_barrier")
a("s_mov_b32 s44, s16")
a("s_and_b32 s45, s17, 0xffff")
a("s_mov_b32 s48, s32")
a("s_and_b32 s49, s33, 0xffff")
W1FIRST = opt("w1first", 0)
def x_group(k):
    a(f"s_mov_b32 m0, s{74+k}")
    a(f"s_add_u32 s{sT1}, s{74+k}, s{sXB}")
    for r in range(4):
        a(f"buffer_load_dwordx4 v{XO+4*k+r}, s[{S_X}:{S_X+3}], s{sT1} offen offset:{1024*r} lds")
    vm.issue("X", 4)
if W1FIRST == 1:
    for k in range(4):
        x_group(k)
        if k < 3:
            emit(w1_refill(k, f"W{k}"))
elif W1FIRST == 3:
    for sl in range(2):
        emit(w1_refill(sl, f"W{sl}"))
    for k in range(4):
        x_group(k)
    emit(w1_refill(2, "W2"))
elif W1FIRST == 4:
    x_group(0)
    for sl in range(2):
        emit(w1_refill(sl, f"W{sl}"))
    for k in range(1, 4):
        x_group(k)
    emit(w1_refill(2, "W2"))
elif W1FIRST == 2:
    for sl in range(3):
        emit(w1_refill(sl, f"W{sl}"))
    for k in range(4):
        x_group(k)
else:
    for k in range(4):
        x_group(k)
    for sl in range(3):
        emit(w1_refill(sl, f"W{sl}"))
stamp("g")
a("s_setprio 3")
vPW = TMP + 8
a("v_mov_b32 v14, 1")
a(f"s_lshl_b32 s{sT0}, s{sWAVE}, 2")
a(f"v_add_u32 v{vPW}, s{sT0}, v{vSYNC}")
vm.wait("X")
a("s_mov_b64 exec, 1")
a(f"ds_add_u32 v{vSYNC}, v14")
a(f"ds_add_u32 v{vPW}, v14 offset:80")
a("s_mov_b64 exec, -1")
stamp("g")

u0, u1, u2 = 34, 35, 36
late = []
late += srd_l(S_WS, 40, WSB) + srd_l(S_DBG, 38, 256) + srd_l(S_W2, 34, 512 * 1376 * 2) + srd_l(S_OUT, 36, 2048 * 512 * 2)
late += [f"v_mov_b32 v{vFB}, 0",
         f"buffer_load_dword v{vTG}, v{vFB}, s[{S_DBG}:{S_DBG+3}], 0 offen sc1",
         f"s_lshr_b32 s{sJ2}, s{sSLOT}, 2",
         f"s_mul_i32 s{u0}, s{sI1}, 43", f"s_add_u32 s{sHF}, s{sHF}, s{u0}", f"s_lshl_b32 s{sHF}, s{sHF}, 12",
         f"s_add_u32 s{sHF}, s{sHF}, {HB}", f"s_add_u32 s{sHH}, s{sHH}, s{u0}", f"s_lshl_b32 s{sHH}, s{sHH}, 12",
         f"s_add_u32 s{sHH}, s{sHH}, s9", f"s_and_b32 s{u1}, s{sWAVE}, 1", f"s_lshl_b32 s{u1}, s{u1}, 11",
         f"s_add_u32 s{u1}, s{u1}, {HB}", f"s_add_u32 s{sHH}, s{sHH}, s{u1}",
         f"s_lshl_b32 s{u0}, s{sI1}, 3", f"s_add_u32 s{u0}, s{u0}, s{sJ1}", f"s_lshl_b32 s{u0}, s{u0}, 2",
         f"s_add_u32 s{u0}, s{u0}, s{sWAVE}", f"s_lshl_b32 s{u0}, s{u0}, 4", f"s_add_u32 s{sPEND}, s{u0}, {HF}",
         f"v_bfe_u32 v{vFB}, v0, 2, 2", f"v_lshl_add_u32 v{vB0}, v{vFA}, 2, v{vFB}", f"v_lshlrev_b32 v{vB0}, 7, v{vB0}",
         f"v_lshrrev_b32 v{vFB}, 1, v{vFB}", f"v_lshl_add_u32 v{vB0}, v{vFB}, 6, v{vB0}", f"v_and_b32 v{vFB}, 3, v0",
         f"v_lshl_add_u32 v{vB0}, v{vFB}, 4, v{vB0}",
         f"v_add_u32 v{vX}, s{sRING}, v{vB0}", f"v_add_u32 v{vB0}, s{sQ}, v{vB0}", f"v_xor_b32 v{vB1}, 64, v{vB0}",
         f"v_lshrrev_b32 v{vW2}, 2, v0", f"v_and_b32 v{vW2}, 4, v{vW2}", f"v_xor_b32 v{vW2}, v{vW2}, v0",
         f"v_and_b32 v{vW2}, 7, v{vW2}", f"v_lshlrev_b32 v{vW2}, 4, v{vW2}", f"v_lshrrev_b32 v{vFB}, 3, v0",
         f"v_lshl_add_u32 v{vW2}, v{vFB}, 10, v{vW2}",
         f"s_lshl_b32 s{u1}, s{sJ2}, 7", f"v_add_u32 v{vW2}, s{u1}, v{vW2}",
         f"v_and_b32 v{vFB}, 15, v0", f"v_lshlrev_b32 v{vFB}, 3, v{vFB}", f"v_add_u32 v{vFB}, {L_STAT}, v{vFB}",
         f"s_mov_b32 s32, 0xbfb8aa3b", f"s_mov_b32 s33, 0xbfb8aa3b",
         f"s_and_b32 s{u0}, s{sSLOT}, 3", f"s_lshl_b32 s{u0}, s{u0}, 1", f"s_add_u32 s{u0}, s{u0}, s{sJ2}",
         f"s_lshl_b32 s{u2}, s{sWAVE}, 3", f"s_lshr_b32 s{u2}, 0x05030200, s{u2}", f"s_and_b32 s{u2}, s{u2}, 7"]
late += klist_code(sKS, 8, u0, u1, u2, 37)
for m in range(2):
    late += [f"s_add_u32 s{u1}, s{u0}, s{sWAVE}", f"s_add_u32 s{u1}, s{u1}, {4*m}", f"s_and_b32 s{u1}, s{u1}, 7",
             f"s_mul_i32 s{u1}, s{u1}, 43", f"s_lshr_b32 s{u1}, s{u1}, 3", f"s_add_u32 s{sKS+8+m}, s{u1}, 1"]
late += [f"s_lshl_b32 s{u1}, s{sWAVE}, 4", f"s_add_u32 s{u1}, s{u1}, 14", f"s_min_u32 s{u1}, s{u1}, 41",
         f"s_cmp_eq_u32 s{sWAVE}, 3\ns_cselect_b32 s{sKS+10}, 0x10000, s{u1}"]
sNEG = 32
lds_wait(vSYNC, 0, 4, 14)
stamp("g")


def g1_reads(b, slot):
    f = FB[b]
    L = [f"v_xor_b32 v{vA}, s{sKX}, v{vA0}\n"
         f"ds_read_b64_tr_b16 {vr(f,2)}, v{vT0} offset:{slot*3072}",
         f"ds_read_b64_tr_b16 {vr(f+2,2)}, v{vT0} offset:{slot*3072+256}",
         f"ds_read_b128 {vr(f+12,4)}, v{vA}",
         f"ds_read_b128 {vr(f+16,4)}, v{vA} offset:16384"]
    for hh in range(2):
        L.append(f"ds_read_b64_tr_b16 {vr(f+4+2*hh,2)}, v{vT1} offset:{slot*3072+256*hh}")
    L.append(f"ds_read_b128 {vr(f+20,4)}, v{vA} offset:32768")
    L.append(f"ds_read_b128 {vr(f+24,4)}, v{vA} offset:49152\ns_add_u32 s{sKX}, s{sKX}, 64\ns_and_b32 s{sKX}, s{sKX}, 0x3c0")
    for hh in range(2):
        L.append(f"ds_read_b64_tr_b16 {vr(f+8+2*hh,2)}, v{vT2} offset:{slot*3072+2048+512*hh}")
    return L


a(f"s_setprio {PG1}")
vm.wait("W0")
emit(g1_reads(0, 0))
for n in range(16):
    f = FB[n & 1]
    mf = []
    for ct in range(3):
        for rt in range(4):
            ac = ACC1 + (ct * 4 + rt) * 4
            mf.append(f"v_mfma_f32_16x16x32_bf16 {vr(ac,4)}, {vr(f+4*ct,4)}, {vr(f+12+4*rt,4)}, {'0' if n == 0 else vr(ac,4)}")
        mf.append(f"v_mfma_f32_16x16x32_bf16 {vr(CS+4*ct,4)}, {vr(f+4*ct,4)}, {vr(ONES,4)}, {'0' if n == 0 else vr(CS+4*ct,4)}")
    a("s_waitcnt lgkmcnt(0)")
    head = w1_refill(n % 3, f"W{n+3}") if n + 3 < 16 else []
    merge(mf[:3], head)
    if n == opt("tstep", 12):
        lds_arrive(vSYNC, 30, 14)
    fill = []
    if n + 1 < 16:
        vm.wait(f"W{n+1}")
        fill = g1_reads((n + 1) & 1, (n + 1) % 3)
    for i, m in enumerate(mf[3:]):
        a(m)
        if fill:
            a(fill.pop(0))
        for _ in range(1 if n < 8 else 2):
            if late and n >= 1:
                t = late.pop(0)
                a(t)
                if "buffer_load" in t:
                    vm.issue("TG")
    if n in (3, 7, 11):
        stamp("g")
assert not late, len(late)
a("v_mov_b32 v14, 1")
lds_arrive(vSYNC, 1, 14)
stamp("g")


def area_base(ar):
    return (sRING, 4096 * ar) if ar < 2 else (sQ, 4096 * (ar - 2))


def w2_dma(n, ar):
    sb, off = area_base(ar)
    L = [f"s_add_u32 m0, s{sb}, {off}\ns_lshl_b32 s{sT1}, s{sKS+n}, 15\n"
         f"buffer_load_dwordx4 v{vW2}, s[{S_W2}:{S_W2+3}], s{sT1} offen lds"]
    for u in range(1, 4):
        L.append(f"s_add_u32 s{sT2}, s{sT1}, {7168*u}\n"
                 f"buffer_load_dwordx4 v{vW2}, s[{S_W2}:{S_W2+3}], s{sT2} offen offset:{1024*u} lds")
    vm.issue(f"D{n}", 4)
    return L


vBR0, vBR1, vBQ0, vBQ1 = vX, vD0, vB0, vB1
def w2_reads(ws, ar):
    w = WR + 16 * ws
    b0, b1 = (vBR0, vBR1) if ar < 2 else (vBQ0, vBQ1)
    off = area_base(ar)[1]
    return [f"ds_read_b64_tr_b16 {vr(w+4*ct+2*hh,2)}, v{b1 if ct >> 1 else b0} offset:{off+8*(ct&1)+2048*hh}"
            for ct in range(4) for hh in range(2)]


a(f"s_setprio {PEPI}")
STR = F0
early = []
if not NOCONV:
    lds_wait(vSYNC, 3, 4, 14)
for rt in range(4):
    a(f"ds_read_b64 {vr(STR+2*rt,2)}, v{vFB} offset:{128*rt}")
a(f"v_xor_b32 v{vBR1}, 64, v{vBR0}")
a("s_waitcnt lgkmcnt(0)")
T, PKR = F0 + 8, F0 + 24
for rt in range(4):
    rs = STR + 2 * rt
    for ct in range(3):
        for hf in range(2):
            ac = ACC1 + (ct * 4 + rt) * 4 + 2 * hf
            a(f"v_pk_mul_f32 {vr(ac,2)}, {vr(ac,2)}, {vr(rs,2)} op_sel_hi:[1,0]")
            a(f"v_pk_fma_f32 {vr(PKR+8+4*ct+2*hf,2)}, {vr(CS+4*ct+2*hf,2)}, {vr(rs,2)}, {vr(ac,2)} op_sel:[0,1,0] op_sel_hi:[1,1,1] neg_lo:[0,1,0] neg_hi:[0,1,0]")
    if early:
        a(early.pop(0))
    silu_pk(PKR + 8, T, 12, sNEG)
    if early:
        a(early.pop(0))
    pk = PKR + 20 + 4 * (rt & 1)
    hq = PKR + 28 + (0 if rt < 2 else 12)
    hq = 128 if rt < 2 else 144
    for i in range(4):
        a(f"v_cvt_pk_bf16_f32 v{pk+i}, v{PKR+8+2*i}, v{PKR+8+2*i+1}")
    for i in range(2):
        a(f"v_cvt_pk_bf16_f32 v{hq+2*(rt&1)+i}, v{PKR+16+2*i}, v{PKR+16+2*i+1}")
    a(f"buffer_store_dwordx4 {vr(pk,4)}, v{vL16}, s[{S_WS}:{S_WS+3}], s{sHF} offen offset:{1024*rt} sc1")
    if rt & 1:
        a(f"buffer_store_dwordx4 {vr(hq,4)}, v{vL16}, s[{S_WS}:{S_WS+3}], s{sHH} offen offset:{1024*(rt>>1)} sc1")
assert not early
vm.issue("S", 6)
a("v_mov_b32 v14, 1")
lds_arrive(vPW, 16, 14)
stamp("g")
a("v_mov_b32 v15, 0")
get_tag(vTG, 15)
fst_on = True
fst()
lds_wait(vSYNC, 1, 4, 14)
emit(w2_dma(0, 0) + w2_dma(1, 1))
fst()
ACC2, HFR = 16, 80
XT, SR = 144, 152
vH, vXO, vSO, vFL, vP = 5, 9, 10, 14, 15
a(f"s_lshl_b32 s{sI2}, s{sXCD}, 2")
a(f"s_and_b32 s{sT0}, s{sSLOT}, 3")
a(f"s_add_u32 s{sI2}, s{sI2}, s{sT0}")
for rp in range(4):
    a(f"s_xor_b32 s{sT0}, s{sWAVE}, {rp}")
    a(f"s_lshl_b32 s{sT0}, s{sT0}, 10")
    a(f"v_add_u32 v{vH+rp}, s{sT0}, v{vL16}")
a(f"s_lshl_b32 s{sG}, s{sI2}, 9")
a(f"s_add_u32 s{sG}, s{sG}, {HF}")
a(f"s_mul_i32 s{sK}, s{sI2}, {43*4096}")
a(f"s_add_u32 s{sK}, s{sK}, {HB}")
sSF = sHF
a("v_and_b32 v14, 15, v0")
a("v_lshrrev_b32 v15, 4, v0")
a("v_lshlrev_b32 v15, 4, v15")
a(f"v_lshl_add_u32 v{vXO}, v14, 10, v15")
a(f"s_lshl_b32 s9, s{sI2}, 16")
a(f"s_add_u32 s9, s9, s{sQ}")
a(f"s_lshl_b32 s{sT1}, s{sJ2}, 7")
a(f"s_add_u32 s9, s9, s{sT1}")
a("v_lshrrev_b32 v14, 3, v0")
a("v_bfe_u32 v15, v0, 2, 1")
a("v_lshlrev_b32 v15, 9, v15")
a(f"v_lshl_add_u32 v{vSO}, v14, 12, v15")
a("v_and_b32 v14, 3, v0")
a(f"v_lshl_add_u32 v{vSO}, v14, 4, v{vSO}")
a(f"s_lshr_b32 s{sT1}, s{sI2}, 3")
a(f"s_lshl_b32 s{sT1}, s{sT1}, 10")
a(f"s_bfe_u32 s{sT2}, s{sI2}, 0x10002")
a(f"s_lshl_b32 s{sT2}, s{sT2}, 8")
a(f"s_add_u32 s{sT1}, s{sT1}, s{sT2}")
a(f"s_and_b32 s{sT0}, s{sI2}, 3")
a(f"s_lshl_b32 s{sT0}, s{sT0}, 6")
a(f"s_add_u32 s{sT1}, s{sT1}, s{sT0}")
a(f"s_lshl_b32 s{sT0}, s{sJ2}, 18")
a(f"s_add_u32 s{sT1}, s{sT1}, s{sT0}")
a(f"s_lshl_b32 s{sT0}, s{sWAVE}, 16")
a(f"s_add_u32 s{sT1}, s{sT1}, s{sT0}")
a(f"s_add_u32 s{sGH}, s{sT1}, {ST}")
a(f"s_lshl_b32 s{sT0}, s{sJ2}, 1")
a(f"s_lshr_b32 s{sT1}, s{sI2}, 4")
a(f"s_add_u32 s{sT0}, s{sT0}, s{sT1}")
a(f"s_lshl_b32 s{sT0}, s{sT0}, 10")
a(f"s_lshl_b32 s{sT1}, s{sWAVE}, 8")
a(f"s_add_u32 s{sT0}, s{sT0}, s{sT1}")
a(f"s_add_u32 s{sSF}, s{sT0}, {SF}")
a("v_mov_b32 v15, 0")
vm.wait("S")
publish(f"s{sPEND}", 14, 15)
vm.issue("F")
stamp("g")
a(f"s_setprio {PG1}")
for n in range(2, 6):
    emit(w2_dma(n, n))
a(f"v_and_b32 v{vFL}, 0x1ff, v{vL16}")
fst()
PPOS = opt("ppos", 3)
for n in range(6):
    vm.wait(f"D{n}")
    emit(w2_reads(n, n))
    if n >= 1:
        a("s_waitcnt lgkmcnt(8)")
        emit(w2_dma(5 + n, n - 1))
    if n == PPOS:
        a(f"buffer_load_dword v{vP}, v{vFL}, s[{S_WS}:{S_WS+3}], s{sG} offen sc1")
        vm.issue("HP")
stamp("g")
dn = a.label("HOK")
vm.wait("HP")
a(f"v_cmp_ne_u32 vcc, s{sTAG}, v{vP}")
a("s_nop 1")
a("s_cmp_eq_u64 vcc, 0")
a(f"s_cbranch_scc1 {dn}")
poll_flags(vFL, f"s{sG}", vP)
a(f"{dn}:")
stamp("g")


def h_loads(n):
    hs = n % 4
    L = []
    for rp in range(4):
        pre = f"s_lshl_b32 s{sT1}, s{sKS+n}, 12\ns_add_u32 s{sT1}, s{sT1}, s{sK}\n" if rp == 0 else ""
        if n == 8 and rp == 0:
            pre += (f"s_lshl_b32 s{sT0}, s{sWAVE}, 1\ns_lshr_b32 s{sT2}, s{sWAVE}, 1\ns_or_b32 s{sT0}, s{sT0}, s{sT2}\n"
                    f"s_and_b32 s{sT0}, s{sT0}, 3\ns_lshl_b32 s{sT0}, s{sT0}, 10\nv_add_u32 v{vH}, s{sT0}, v{vL16}\n")
            for i in range(1, 4):
                pre += f"v_xor_b32 v{vH+i}, {1024*i}, v{vH}\n"
        src = vH + rp if n < 8 else vH + 2 * (rp & 1) + (rp >> 1)
        L.append(pre + f"buffer_load_dwordx4 {vr(HFR+16*hs+4*rp,4)}, v{src}, s[{S_WS}:{S_WS+3}], s{sT1} offen sc1")
    vm.issue(f"H{n}", 4)
    return L


def h_fix(n):
    b = HFR + 16 * (n % 4)
    od, dn = a.label("HO"), a.label("HD")
    a(f"s_bitcmp1_b32 s{sWAVE}, 0")
    a(f"s_cbranch_scc1 {od}")
    for pp in range(2):
        for i in range(2):
            a(f"v_swap_b32 v{b+8*pp+2+i}, v{b+8*pp+4+i}")
    a(f"s_branch {dn}")
    a(f"{od}:")
    for pp in range(2):
        for i in range(2):
            a(f"v_swap_b32 v{b+8*pp+i}, v{b+8*pp+6+i}")
    a(f"{dn}:")
    a("s_nop 1")


emit(h_loads(0))
if opt("htouch", 0):
    for k in range(2):
        a(f"s_lshl_b32 s{sT0}, s{sJ2}, 2")
        a(f"s_add_u32 s{sT0}, s{sT0}, s{sWAVE}")
        if k:
            a(f"s_add_u32 s{sT0}, s{sT0}, 32")
        a(f"s_lshr_b32 s{sT1}, s{sT0}, 2")
        a(f"s_mul_i32 s{sT2}, s{sT1}, 43")
        a(f"s_lshr_b32 s{sT2}, s{sT2}, 3")
        a(f"s_add_u32 s{sT2}, s{sT2}, 1")
        if k:
            a(f"s_lshl_b32 s{sT2}, s{sT1}, 4")
            a(f"s_sub_u32 s{sT2}, s{sT2}, 114")
            a(f"s_min_u32 s{sT2}, s{sT2}, 41")
        a(f"s_lshl_b32 s{sT2}, s{sT2}, 2")
        a(f"s_add_u32 s{sT2}, s{sT2}, s{sWAVE}")
        a(f"s_lshl_b32 s{sT2}, s{sT2}, 10")
        a(f"s_add_u32 s{sT2}, s{sT2}, s{sK}")
        a(f"buffer_load_dwordx4 {vr(SR,4)}, v{vL16}, s[{S_WS}:{S_WS+3}], s{sT2} offen sc1")
        vm.issue("HT")
for n in range(1, 3):
    emit(h_loads(n))
for hf in range(2):
    a(f"buffer_load_dwordx4 {vr(XT+4*hf,4)}, v{vXO}, s[{S_X}:{S_X+3}], s9 offen offset:{64*hf}")
vm.issue("XT", 2)
a(f"v_and_b32 v{vFL}, 0xff, v{vL16}")
for n in range(11):
    ws, hs = n % 6, n % 4
    mf = []
    for rp in (1, 2, 3, 0):
        for ct in range(4):
            ac = ACC2 + (ct * 4 + rp) * 4
            mf.append(f"v_mfma_f32_16x16x32_bf16 {vr(ac,4)}, {vr(WR+16*ws+4*ct,4)}, {vr(HFR+16*hs+4*rp,4)}, {'0' if n == 0 else vr(ac,4)}")
    vm.wait(f"H{n}")
    if n >= 8:
        h_fix(n)
    if n == 0 or n >= 6:
        a("s_waitcnt lgkmcnt(0)")
    fill = h_loads(n + 3) if n + 3 < 11 else []
    if n == 8 and not NOCONV:
        fill = [f"buffer_load_dword v{vP}, v{vFL}, s[{S_WS}:{S_WS+3}], s{sSF} offen sc1"]
        vm.issue("SP")
    fill += w2_reads((n + 5) % 6, n - 1) if 1 <= n <= 5 else []
    merge(mf, fill)
    if n in (0, 3, 7):
        fst()
    if n == 9:
        if not NOCONV:
            dn = a.label("SOK")
            vm.wait("SP")
            a(f"v_cmp_ne_u32 vcc, s{sTAG}, v{vP}")
            a("s_nop 1")
            a("s_cmp_eq_u64 vcc, 0")
            a(f"s_cbranch_scc1 {dn}")
            poll_flags(vFL, f"s{sSF}", vP)
            a(f"{dn}:")
        a(f"s_add_u32 s{sT2}, s{sGH}, {8*4096}")
        a(f"buffer_load_dwordx4 {vr(SR,4)}, v{vSO}, s[{S_WS}:{S_WS+3}], s{sGH} offen sc1")
        a(f"buffer_load_dwordx4 {vr(SR+4,4)}, v{vSO}, s[{S_WS}:{S_WS+3}], s{sT2} offen sc1")
        vm.issue("SL", 2)
stamp("g")
a(f"s_setprio {PEPI}")
a(f"v_add_u32 v14, s{sQ}, v{vL16}")
for rp in range(1, 4):
    for ct in range(4):
        a(f"ds_write_b128 v14, {vr(ACC2+(ct*4+rp)*4,4)} offset:{(rp-1)*4096+ct*1024}")
a("v_lshrrev_b32 v14, 3, v0")
a("v_lshlrev_b32 v14, 7, v14")
a("v_and_b32 v15, 3, v0")
a("v_lshl_add_u32 v14, v15, 5, v14")
a("v_bfe_u32 v15, v0, 2, 1")
a("v_lshl_add_u32 v14, v15, 4, v14")
a(f"v_add_u32 v14, s{sRING}, v14")
a("s_waitcnt vmcnt(0)")
a(f"ds_write_b128 v14, {vr(SR,4)}")
a(f"ds_write_b128 v14, {vr(SR+4,4)} offset:1024")
a("v_mov_b32 v14, 1")
lds_arrive(vSYNC, 2, 14)
for rp in range(1, 4):
    a(f"s_xor_b32 s{sT0}, s{sWAVE}, {rp}")
    a(f"s_lshl_b32 s{sT0}, s{sT0}, 14")
    a(f"v_add_u32 v{vH+rp}, s{sT0}, v{vL16}")
a("v_lshrrev_b32 v14, 5, v0")
a(f"v_mul_u32_u24 v14, {RINGB}, v14")
a("v_bfe_u32 v15, v0, 4, 1")
a("v_lshl_add_u32 v14, v15, 10, v14")
a("v_bfe_u32 v15, v0, 2, 2")
a("v_lshl_add_u32 v14, v15, 7, v14")
a("v_and_b32 v15, 3, v0")
a("v_lshl_add_u32 v14, v15, 3, v14")
a(f"s_lshl_b32 s{sT0}, s{sWAVE}, 5")
a(f"s_add_u32 s{sT0}, s{sT0}, {L_RING}")
a(f"v_add_u32 v{vH}, s{sT0}, v14")
lds_wait(vSYNC, 2, 4, 14)
stamp("g")
PR = HFR
for rp in range(1, 4):
    for ct in range(4):
        a(f"ds_read_b128 {vr(PR+16*(rp-1)+4*ct,4)}, v{vH+rp} offset:{(rp-1)*4096+ct*1024}")
O = WR
for sidx in range(3):
    a(f"s_waitcnt lgkmcnt({8-4*sidx})")
    for ct in range(4):
        for hf in range(2):
            src = (ACC2 + ct * 16 + 2 * hf) if sidx == 0 else (O + 4 * ct + 2 * hf)
            a(f"v_pk_add_f32 {vr(O+4*ct+2*hf,2)}, {vr(src,2)}, {vr(PR+16*sidx+4*ct+2*hf,2)}")
for ct in range(4):
    a(f"ds_read_b64_tr_b16 {vr(SR+2*ct,2)}, v{vH} offset:{512*(ct&1)+2*RINGB*(ct>>1)}")
silu_pk(O, O + 16, 16, sNEG)
a("s_waitcnt lgkmcnt(0)")
for ct in range(4):
    for hf in range(2):
        sdw = SR + 2 * ct + hf
        xdw = XT + 2 * ct + hf
        t = O + 16 + 4 * (2 * (ct & 1) + hf)
        a(f"v_lshlrev_b32 v{t}, 16, v{sdw}")
        a(f"v_and_b32 v{t+1}, 0xffff0000, v{sdw}")
        a(f"v_lshlrev_b32 v{t+2}, 16, v{xdw}")
        a(f"v_and_b32 v{t+3}, 0xffff0000, v{xdw}")
        a(f"v_pk_fma_f32 {vr(t,2)}, {vr(t,2)}, {vr(O+4*ct+2*hf,2)}, {vr(t+2,2)}")
        a(f"v_cvt_pk_bf16_f32 v{xdw}, v{t}, v{t+1}")
    if ct & 1:
        hf = ct >> 1
        a(f"buffer_store_dwordx4 {vr(XT+4*hf,4)}, v{vXO}, s[{S_OUT}:{S_OUT+3}], s9 offen offset:{64*hf}")
stamp("g")
dump_stamps("g")
a("s_endpgm")

a("L_conv:")
sCH, sP, sCB, sDT, sDS, sCW = 10, 11, 6, 7, 9, 12
a(f"s_setprio {opt('pc0', 2)}")
a("v_mov_b32 v15, 0")
a("v_lshlrev_b32 v14, 2, v0")
a(f"v_add_u32 v14, {L_SYNC}, v14")
a(f"s_cmp_lg_u32 s{sWAVE}, 4")
a("s_cbranch_scc1 L_nozero")
a("ds_write_b32 v14, v15")
a("L_nozero:")
a(f"s_lshl_b32 s{sT0}, s{sXCD}, 5")
a(f"s_add_u32 s{sT0}, s{sT0}, s{sSLOT}")
a(f"s_lshl_b32 s{sT1}, s{sT0}, 2")
a(f"s_bfe_u32 s{sT2}, s{sWAVE}, 0x10001")
a(f"s_lshl_b32 s{sCH}, s{sT0}, 1")
a(f"s_add_u32 s{sCH}, s{sCH}, s{sT2}")
a(f"s_and_b32 s{sP}, s{sWAVE}, 1")
a(f"s_and_b32 s{sCW}, s{sWAVE}, 3")
a(f"s_mul_i32 s{sCB}, s{sT2}, {CSTR}")
a(f"s_add_u32 s{sCB}, s{sCB}, {L_CONV}")
a(f"s_lshl_b32 s{sT0}, s{sCH}, 8")
a(f"s_lshl_b32 s{sT3}, s{sP}, 7")
a(f"s_add_u32 s{sT0}, s{sT0}, s{sT3}")
a("v_lshlrev_b32 v3, 1, v0")
for k in range(4):
    a(f"s_mov_b32 s{46+4*k}, {512*128*2}")
    a(f"s_mov_b32 s{47+4*k}, 0x00020000")
a("s_waitcnt lgkmcnt(0)")
if DIAG:
    a(f"s_mov_b32 s{STAMP0}, s100")
for k in range(4):
    a(f"s_mov_b32 s{44+4*k}, s{18+2*k}")
    a(f"s_and_b32 s{45+4*k}, s{19+2*k}, 0xffff")
    a(f"buffer_load_ushort v{4+k}, v3, s[{44+4*k}:{47+4*k}], s{sT0} offen")
a("s_barrier")
a(f"s_load_dword s{sDT}, s[26:27], s{sT1}")
a(f"s_load_dword s{sDS}, s[28:29], s{sT1}")
srd(S_WS, 40, WSB)
srd(S_DBG, 38, 256)
vEP, vTGc, PFD = 255, 254, 248
a(f"s_or_b32 s77, s2, s{sCW}")
a("s_cmp_lg_u32 s77, 0")
a("s_cbranch_scc1 L_noepoch")
a(f"buffer_load_dword v{vEP}, v15, s[{S_WS}:{S_WS+3}], 0 offen sc1")
a("L_noepoch:")
def post_tag():
    a("s_cmp_lg_u32 s77, 0")
    a("s_cbranch_scc1 L_noepoch2")
    a(f"v_add_u32 v14, 0x9e3779b8, v{vEP}")
    a("v_or_b32 v14, 1, v14")
    a("s_mov_b64 exec, 1")
    a(f"buffer_store_dword v14, v15, s[{S_DBG}:{S_DBG+3}], 0 offen sc1")
    a(f"buffer_store_dword v14, v15, s[{S_WS}:{S_WS+3}], 0 offen sc1")
    a("s_mov_b64 exec, -1")
    a("L_noepoch2:")
if NOCONV:
    a("s_waitcnt vmcnt(0)")
    post_tag()
    a("s_endpgm")
V, PK, DT, LOF, HIF, SEL, GA, MK = 64, 96, 112, 144, 160, 176, 208, 227
KD = 52
vKA, vUA, vTKa, vTKb, vTK2, vTK0, vKW, vSA = 231, 232, 233, 234, 235, 236, 237, 238
vXT, vXS, vSTA, vM, vQ, vPS = 242, 246, 247, 252, 253, 3
a(f"v_and_b32 v{vM}, 15, v0")
a(f"v_lshrrev_b32 v{vQ}, 4, v0")
a("v_and_b32 v10, 1, v0")
a("v_lshlrev_b32 v10, 4, v10")
a("v_mov_b32 v11, 0x3f80")
a("v_lshlrev_b32 v10, v10, v11")
a("v_lshrrev_b32 v11, 1, v0")
for g in range(8):
    for d in range(4):
        if d & 1:
            a(f"v_cndmask_b32 v{SEL+4*g+d}, 0, v10, s[74:75]")
        else:
            a(f"v_cmp_eq_u32 vcc, {4*g+d}, v11")
            a(f"v_cmp_eq_u32 s[74:75], {4*g+d+1}, v11")
            a("s_nop 0")
            a(f"v_cndmask_b32 v{SEL+4*g+d}, 0, v10, vcc")
a(f"s_lshl_b32 s{sT0}, s{sP}, 2")
a(f"s_add_u32 s{sT0}, s{sT0}, s{sCB}")
a(f"s_add_u32 s{sT0}, s{sT0}, {C_TK}")
a(f"v_lshrrev_b32 v10, 1, v{vQ}")
a("v_lshlrev_b32 v10, 7, v10")
a(f"v_and_b32 v11, 1, v{vQ}")
a("v_lshl_add_u32 v10, v11, 2, v10")
a(f"v_lshl_add_u32 v10, v{vM}, 3, v10")
a(f"v_lshl_add_u32 v{vTK0}, v10, 3, s{sT0}")
a(f"v_lshlrev_b32 v10, 6, v{vQ}")
a(f"v_lshlrev_b32 v11, 1, v{vM}")
a(f"v_cmp_gt_u32 vcc, 2, v{vQ}")
a("v_add_u32 v10, v10, v11")
a("v_add_u32 v10, 256, v10")
a("v_cndmask_b32 v11, 0, v11, vcc")
a("v_add_u32 v10, v10, v11")
a(f"v_lshl_add_u32 v{vTKa}, v10, 3, s{sT0}")
a("v_mov_b32 v11, 256")
a("v_cndmask_b32 v11, v11, 16, vcc")
a(f"v_add_u32 v{vTKb}, v{vTKa}, v11")
a(f"v_lshl_add_u32 v10, v{vQ}, 6, v{vM}")
a("v_add_u32 v10, 512, v10")
a(f"v_lshl_add_u32 v{vTK2}, v10, 3, s{sT0}")
a(f"v_xor_b32 v10, v{vM}, v{vQ}")
a("v_and_b32 v10, 3, v10")
a("v_lshlrev_b32 v10, 4, v10")
a(f"v_lshl_add_u32 v10, v{vM}, 10, v10")
a(f"v_lshrrev_b32 v11, 2, v{vM}")
a("v_lshl_add_u32 v10, v11, 6, v10")
a(f"s_lshl_b32 s{sT0}, s{sCW}, 14")
a(f"v_add_u32 v{vSA}, s{sT0}, v10")
for i in range(1, 4):
    a(f"v_xor_b32 v{vSA+i}, {64*i}, v{vSA}")
a(f"s_lshl_b32 s{sT1}, s{sJ1}, 3")
a(f"v_add_u32 v10, s{sT1}, v{vQ}")
a("v_and_b32 v12, 1, v0")
a("v_lshlrev_b32 v12, 3, v12")
a("v_bfe_u32 v13, v0, 2, 2")
a("v_add_u32 v12, v12, v13")
a("v_bfe_u32 v13, v0, 1, 1")
a(f"v_lshl_add_u32 v13, v13, 3, s{sT0}")
for hh in range(2):
    if hh:
        a("v_add_u32 v12, 4, v12")
    a("v_xor_b32 v11, v12, v10")
    a("v_lshl_add_u32 v11, v11, 4, v13")
    a(f"v_lshl_add_u32 v{vXT+hh}, v12, 10, v11")
    a(f"v_xor_b32 v{vXT+2+hh}, 64, v{vXT+hh}")
a("v_lshrrev_b32 v12, 3, v0")
a("v_lshlrev_b32 v12, 14, v12")
a("v_and_b32 v13, 0x70, v1")
a(f"v_add_u32 v{vXS}, v12, v13")
a("v_bfe_u32 v12, v0, 2, 1")
a(f"s_lshl_b32 s{sT0}, s{sCW}, 7")
a(f"s_add_u32 s76, s{sT0}, {L_STAT}")
a(f"v_lshl_add_u32 v{vSTA}, v12, 6, s76")
a(f"s_lshl_b32 s{sT0}, s{sI1}, 2")
a(f"s_add_u32 s{sT0}, s{sT0}, s{sCW}")
a(f"s_lshl_b32 s{sT1}, s{sJ1}, 18")
a(f"s_lshl_b32 s{sT2}, s{sT0}, 7")
a(f"s_add_u32 s{sT1}, s{sT1}, s{sT2}")
a(f"s_add_u32 s70, s{sT1}, {XNT}")
a(f"s_add_u32 s79, s70, {8*16384}")
a(f"s_lshl_b32 s{sT1}, s{sJ1}, 7")
a(f"s_add_u32 s{sT0}, s{sT0}, s{sT1}")
a(f"s_lshl_b32 s{sT0}, s{sT0}, 4")
a(f"s_add_u32 s71, s{sT0}, {XF}")
a(f"s_bfe_u32 s{sT2}, s{sWAVE}, 0x10001")
a(f"s_lshl_b32 s{sT2}, s{sT2}, 4")
a(f"v_add_u32 v{vPS}, s{sT2}, v2")
stamp("c")
a("s_waitcnt lgkmcnt(0)")
a(f"s_lshr_b32 s{sDT}, s{sDT}, s{sT2}")
a(f"s_lshl_b32 s{sDT}, s{sDT}, 16")
a(f"s_lshr_b32 s{sDS}, s{sDS}, s{sT2}")
a(f"s_lshl_b32 s{sDS}, s{sDS}, 16")
a(f"s_mov_b32 s{sT3}, 0x3fb8aa3b")
a(f"v_mov_b32 v8, s{sDT}")
a(f"v_mul_f32 v8, s{sT3}, v8")
a("v_exp_f32 v8, v8")
a("s_waitcnt vmcnt(0)")
stamp("c")
post_tag()
for k in range(4):
    a(f"v_lshlrev_b32 v{4+k}, 16, v{4+k}")
a("v_cvt_pk_bf16_f32 v8, v8, v8")
a("v_lshlrev_b32 v8, 16, v8")
a(f"v_mul_f32 v4, s{sT3}, v4")
a("v_exp_f32 v4, v4")
a("v_mul_f32 v5, v5, v8")
a("v_cvt_pk_bf16_f32 v4, v4, v4")
a("v_lshlrev_b32 v4, 16, v4")
a("v_mul_f32 v4, v4, v8")
a(f"v_mul_f32 v4, 0xbfb8aa3b, v4")
a("v_mul_f32 v5, 0.15915494, v5")
Y = 20
a("v_add_f32 v8, v8, v8")
a(f"v_mul_f32 v{Y}, v6, v8")
a(f"v_mul_f32 v{Y+1}, v7, v8")
Z1, Z8, Z128, Yn = 24, 22, 40, 50
for (dst, mul) in ((Z8, "0x41000000"), (Z1, None), (Z128, "0x43000000")):
    if mul is None:
        a("v_exp_f32 v10, v4")
        a("v_fract_f32 v11, v5")
    else:
        a(f"v_mul_f32 v10, {mul}, v4")
        a(f"v_mul_f32 v11, {mul}, v5")
        a("v_fract_f32 v11, v11")
        a("v_exp_f32 v10, v10")
    a("v_cos_f32 v12, v11")
    a("v_sin_f32 v13, v11")
    a(f"v_mul_f32 v{dst}, v10, v12")
    a(f"v_mul_f32 v{dst+1}, v10, v13")
ctmp = [42, 44, 46, 48]
cti = [0]


def cmul(d, x, y):
    assert d not in (x, y)
    return (f"v_mul_f32 v{d}, v{x}, v{y}\nv_mul_f32 v{d+1}, v{x}, v{y+1}\n"
            f"v_fma_f32 v{d}, -v{x+1}, v{y+1}, v{d}\nv_fmac_f32 v{d+1}, v{x+1}, v{y}")


def pcmul(d, x, y):
    t = ctmp[cti[0] % 4]; cti[0] += 1
    return (f"v_pk_mul_f32 {vr(t,2)}, {vr(x,2)}, {vr(y,2)} op_sel:[0,0] op_sel_hi:[0,1]\n"
            f"v_pk_fma_f32 {vr(d,2)}, {vr(x,2)}, {vr(y,2)}, {vr(t,2)} op_sel:[1,1,0] op_sel_hi:[1,0,1] neg_lo:[0,1,0]")


def mov2(d, x):
    return f"v_mov_b32 v{d}, v{x}\nv_mov_b32 v{d+1}, v{x+1}"


def Wp(e): return Z1 + 2 * (e - 1)


def pack(neg_im):
    ng = "-" if neg_im else ""
    for i in range(8):
        a(f"v_cvt_pk_bf16_f32 v{PK+i}, v{V+4*i}, v{V+4*i+2}")
        a(f"v_cvt_pk_bf16_f32 v{PK+8+i}, {ng}v{V+4*i+1}, {ng}v{V+4*i+3}")


def transpose_mfmas():
    L = []
    for h in range(2):
        for q0 in range(4):
            for part in range(2):
                d = DT + 8 * q0 + 4 * part
                L.append(f"v_mfma_f32_16x16x32_bf16 {vr(d,4)}, {vr(PK+8*part+4*h,4)}, {vr(SEL+4*(2*q0+h),4)}, {'0' if h == 0 else vr(d,4)}")
    return L


def frags(dst):
    for q0 in range(4):
        for i in range(4):
            a(f"v_cvt_pk_bf16_f32 v{dst+4*q0+i}, v{DT+8*q0+2*i}, v{DT+8*q0+2*i+1}")


def contract(t):
    return [f"v_mfma_f32_16x16x32_bf16 {vr(KD+4*t,4)}, {vr(HIF+4*ks,4)}, {vr(LOF+4*ks,4)}, {'0' if ks == 0 else vr(KD+4*t,4)}" for ks in range(4)]


a(f"v_mov_b32 v{V}, 1.0")
a(f"v_mov_b32 v{V+1}, 0")
a(mov2(V + 2, Z8))
a(pcmul(V + 4, Z8, Z8))
a(pcmul(Wp(2), Z1, Z1))
for j in range(3, 16):
    a(pcmul(V + 2 * j, V + 2 * (j - 2), V + 4))
    if j <= 7:
        a(pcmul(Wp(j), Wp(j - 2), Wp(2)))
a(pcmul(Yn, Y, Z128))
pack(True)
t0 = []
for i, yy in enumerate((Y, Yn)):
    t0.append(mov2(V + 16 * i, yy))
    t0 += [cmul(V + 16 * i + 2 * e, yy, Wp(e)) for e in range(1, 8)]
merge(transpose_mfmas(), t0)
pack(False)
frags(LOF)
t1 = [cmul(V + 0, Yn, Z128), cmul(V + 8, V + 0, Z128), cmul(V + 16, V + 8, Z128)]
t1 += [cmul(V + 2 * e, V + 0, Wp(2 * e)) for e in range(1, 4)]
t1 += [cmul(V + 20, V + 16, Z128)]
t1 += [cmul(V + 8 + 2 * e, V + 8, Wp(2 * e)) for e in range(1, 4)]
t1 += [cmul(V + 24, V + 20, Z128), cmul(V + 18, V + 16, Wp(4)), cmul(V + 28, V + 24, Z128), cmul(V + 22, V + 20, Wp(4)),
       cmul(Yn, V + 28, Z128), cmul(V + 26, V + 24, Wp(4)), cmul(V + 30, V + 28, Wp(4))]
merge(transpose_mfmas(), t1)
pack(False)
frags(HIF)
t2 = [mov2(V, Yn), cmul(Y, Z128, Z128), cmul(V + 2, Yn, Z128)]
t2 += [cmul(V + 2 * i, V + 2 * (i - 2), Y) for i in range(2, 10)]
merge(contract(0) + transpose_mfmas(), t2)
pack(False)
frags(HIF)
merge(contract(1) + transpose_mfmas(), [f"ds_write_b32 v{vTK0}, v{KD+rho} offset:{8*rho}" for rho in range(4)], first=2, every=3)
for rho in range(4):
    a(f"ds_write_b32 v{vTKb if rho >> 1 else vTKa}, v{KD+4+rho} offset:{8*(rho&1)}")
frags(HIF)
emit(contract(2))
ON, SM, SQ, RW, UP, SF0 = 128, 132, 136, 140, 148, 64
for i in range(4):
    a(f"v_mov_b32 v{ON+i}, 0x3f803f80")
a("v_mov_b32 v14, 1")
a(f"s_lshl_b32 s{sT0}, s{sCW}, 2")
a(f"v_add_u32 v12, s{sT0}, v2")
for rho in range(4):
    a(f"ds_write_b32 v{vTK2}, v{KD+8+rho} offset:{128*rho}")
lds_arrive(vPS, 4, 14)
stamp("c")
a(f"s_setprio {PSTAT}")
lds_wait(12, 20, 1, 13)
stamp("c")
for ks in range(16):
    a(f"ds_read_b128 {vr(SF0+4*ks,4)}, v{vSA+(ks&3)} offset:{256*(ks>>2)}")
for ks in range(16):
    if ks % 4 == 0:
        a(f"s_waitcnt lgkmcnt({12-ks})")
    a(f"v_mfma_f32_16x16x32_bf16 {vr(SM,4)}, {vr(SF0+4*ks,4)}, {vr(ON,4)}, {'0' if ks == 0 else vr(SM,4)}")
    a(f"v_mfma_f32_16x16x32_bf16 {vr(SQ,4)}, {vr(SF0+4*ks,4)}, {vr(SF0+4*ks,4)}, {'0' if ks == 0 else vr(SQ,4)}")
for inst in range(2):
    for hh in range(2):
        a(f"ds_read_b64_tr_b16 {vr(RW+4*inst+2*hh,2)}, v{vXT+2*inst+hh}")
a(f"buffer_load_dword v{vTGc}, v15, s[{S_DBG}:{S_DBG+3}], 0 offen sc1")
a(f"v_and_b32 v10, 3, v{vM}")
a(f"v_lshl_add_u32 v11, v{vM}, 3, s76")
for r in range(1, 4):
    a(f"v_cmp_eq_u32 vcc, {r}, v10")
    a(f"v_cndmask_b32 v{SM}, v{SM}, v{SM+r}, vcc")
    a(f"v_cndmask_b32 v{SQ}, v{SQ}, v{SQ+r}, vcc")
a(f"v_mul_f32 v{SM}, 0x3b000000, v{SM}")
a(f"v_mul_f32 v{SQ}, 0x3b000000, v{SQ}")
a(f"v_fma_f32 v{SQ}, -v{SM}, v{SM}, v{SQ}")
a(f"v_max_f32 v{SQ}, 0, v{SQ}")
a(f"v_cvt_pk_bf16_f32 v{SM}, v{SM}, v{SQ}")
a(f"v_and_b32 v{SQ}, 0xffff0000, v{SM}")
a(f"v_add_f32 v{SQ}, 0x3727c5ac, v{SQ}")
a(f"v_cvt_pk_bf16_f32 v{SQ}, v{SQ}, v{SQ}")
a(f"v_lshlrev_b32 v{SQ}, 16, v{SQ}")
a(f"v_sqrt_f32 v{SQ}, v{SQ}")
a(f"v_lshlrev_b32 v{SM}, 16, v{SM}")
a(f"v_cvt_pk_bf16_f32 v{SQ}, v{SQ}, v{SQ}")
a(f"v_lshlrev_b32 v{SQ}, 16, v{SQ}")
a(f"v_rcp_f32 v{SM+2}, v{SQ}")
a(f"v_lshrrev_b32 v10, 2, v{vM}")
a(f"v_cmp_eq_u32 vcc, v10, v{vQ}")
a(f"v_mul_f32 v{SM+3}, v{SM}, v{SM+2}")
a("s_and_saveexec_b64 s[72:73], vcc")
a(f"ds_write_b64 v11, {vr(SM+2,2)}")
lds_arrive(2, 3, 14)
for k in range(4):
    a(f"ds_read_b128 {vr(SF0+4*k,4)}, v{vSTA} offset:{16*k}")
a("s_waitcnt lgkmcnt(6)")
for i in range(8):
    a(f"v_lshlrev_b32 v{UP+2*i}, 16, v{RW+i}")
    a(f"v_and_b32 v{UP+1+2*i}, 0xffff0000, v{RW+i}")
a("s_waitcnt lgkmcnt(0)")
for inst in range(2):
    for i in range(8):
        a(f"v_fma_f32 v{UP+8*inst+i}, v{UP+8*inst+i}, v{SF0+2*i}, -v{SF0+1+2*i}")
    for i in range(4 * inst, 4 * inst + 4):
        a(f"v_cvt_pk_bf16_f32 v{RW+i}, v{UP+2*i}, v{UP+1+2*i}")
    a(f"buffer_store_dwordx4 {vr(RW+4*inst,4)}, v{vXS}, s[{S_WS}:{S_WS+3}], s{79 if inst else 70} offen sc1")
a(f"s_setprio {PCONV}")
stamp("c")
a(f"v_lshlrev_b32 v10, 3, v{vQ}")
a(f"v_sub_u32 v10, v{vM}, v10")
a(f"s_mul_i32 s{sT0}, s{sP}, 100")
a(f"s_add_u32 s{sT0}, s{sT0}, 16")
a(f"v_add_u32 v10, s{sT0}, v10")
a("v_mov_b32 v12, 0xffff")
a("v_mov_b32 v13, 0xffff0000")
for d in range(4):
    a(f"v_cmp_le_i32 vcc, {2*d}, v10")
    a(f"v_cmp_le_i32 s[72:73], {2*d+1}, v10")
    a(f"v_cndmask_b32 v{MK+d}, 0, v12, vcc")
    a("v_cndmask_b32 v11, 0, v13, s[72:73]")
    a(f"v_or_b32 v{MK+d}, v{MK+d}, v11")
a(f"v_and_b32 v10, 3, v{vM}")
a(f"v_mul_u32_u24 v10, {KCS}, v10")
a(f"v_lshrrev_b32 v11, 2, v{vM}")
a("v_lshlrev_b32 v11, 3, v11")
a("v_sub_u32 v10, v10, v11")
a(f"v_lshl_add_u32 v10, v{vQ}, 4, v10")
a(f"s_lshl_b32 s{sT0}, s{sP}, 8")
a(f"s_sub_u32 s{sT0}, s{sCB}, s{sT0}")
a(f"s_add_u32 s{sT1}, s{sT0}, 24")
a(f"v_add_u32 v{vKA}, s{sT1}, v10")
a(f"v_lshlrev_b32 v10, 5, v{vM}")
a(f"v_lshl_add_u32 v10, v{vQ}, 4, v10")
a(f"s_add_u32 s{sT1}, s{sT0}, {C_UL}")
a(f"v_add_u32 v{vUA}, s{sT1}, v10")
a(f"s_add_u32 s{sT0}, s{sCB}, {C_UL}")
a(f"v_add_u32 v10, s{sT0}, v1")
for i in range(4):
    a(f"v_mov_b32 v{16+i}, 0")
a("v_cmp_gt_u32 vcc, 30, v0")
a("s_and_saveexec_b64 s[72:73], vcc")
a("ds_write_b128 v10, v[16:19]")
a("s_mov_b64 exec, -1")
a(f"s_lshl_b32 s{sT0}, s{sP}, 6")
a(f"v_add_u32 v12, s{sT0}, v0")
a(f"v_lshl_add_u32 v{vKW}, v12, 5, s{sCB}")
a("v_lshlrev_b32 v13, 4, v12")
a("v_sub_u32 v13, 0x7ff, v13")
a("v_cvt_f32_u32 v16, v13")
a(f"s_add_u32 s{sT1}, s{sCB}, {C_TK}")
a(f"v_lshl_add_u32 v17, v13, 3, s{sT1}")
a(f"s_add_u32 s{sT0}, s{sT1}, {8*127}")
a(f"v_mov_b32 v18, s{sT0}")
a(f"s_sub_u32 s{sT0}, s{sT1}, {8*0x4280}")
for s in range(0, 19, 2):
    a(f"v_subrev_f32 v10, {float(s)}, v16" if s else "v_mov_b32 v10, v16")
    a(f"v_subrev_f32 v11, {float(s+1)}, v16")
    a("v_cvt_pk_bf16_f32 v10, v10, v11")
    for k in range(2):
        if s + k > 18:
            continue
        a("v_and_b32 v11, 0x7fff, v10" if k == 0 else "v_bfe_u32 v11, v10, 16, 15")
        a(f"v_lshl_add_u32 v11, v11, 3, s{sT0}")
        a(f"v_subrev_u32 v12, {8*(s+k)}, v17")
        a(f"v_med3_i32 v12, v12, s{sT1}, v18")
        a(f"v_max_i32 v{GA+s+k}, v11, v12")
a("s_waitcnt vmcnt(0)")
get_tag(vTGc, 15)
publish("s71", 14, 15)
stamp("c")
a(f"s_lshl_b32 s{sT0}, s{sXCD}, 11")
a(f"s_add_u32 s74, s{sT0}, {XF}")
a(f"s_lshr_b32 s{sT0}, s{sCH}, 2")
a(f"s_lshl_b32 s{sT0}, s{sT0}, 14")
a(f"s_and_b32 s{sT1}, s{sCH}, 2")
a(f"s_lshl_b32 s{sT1}, s{sT1}, 4")
a(f"s_add_u32 s{sT0}, s{sT0}, s{sT1}")
a(f"s_lshl_b32 s{sT1}, s{sCW}, 12")
a(f"s_add_u32 s{sT0}, s{sT0}, s{sT1}")
a(f"s_add_u32 s75, s{sT0}, {XNT}")
a(f"s_lshl_b32 s{sT1}, s{sCW}, 9")
a(f"s_add_u32 s74, s74, s{sT1}")
a("v_and_b32 v7, 0x1ff, v1")
a("v_lshrrev_b32 v10, 1, v0")
a("v_and_b32 v11, 1, v0")
a("v_lshlrev_b32 v9, 6, v10")
a("v_lshl_add_u32 v9, v11, 4, v9")
a(f"v_mul_u32_u24 v11, {CSTR}, v11")
a("v_lshl_add_u32 v10, v10, 4, v11")
a(f"s_lshl_b32 s{sT0}, s{sCW}, 10")
a(f"s_add_u32 s{sT0}, s{sT0}, {L_CONV+C_UL+480}")
a(f"v_add_u32 v8, s{sT0}, v10")
GV, KP = 64, 112
lds_wait(vPS, 4, 2, 13)
for s in range(19):
    a(f"ds_read_b64 {vr(GV+2*s,2)}, v{GA+s}")
a("s_waitcnt lgkmcnt(0)")
for s in range(19):
    a(f"v_add_f32 v{GV+2*s}, v{GV+2*s}, v{GV+2*s+1}")
for kap in range(4):
    for d in range(8):
        s0 = 3 - kap + 2 * d
        a(f"v_cvt_pk_bf16_f32 v{KP+8*kap+d}, v{GV+2*s0}, v{GV+2*(s0+1)}")
def k_copies():
    for kap in range(4):
        for hq in range(2):
            a(f"ds_write_b128 v{vKW}, {vr(KP+8*kap+4*hq,4)} offset:{kap*KCS+16*hq}")
LATEW = opt("latew", 1)
if not LATEW:
    k_copies()
stamp("c")
poll_flags(7, "s74", 13, sleep=4)
for i in range(2):
    a(f"buffer_load_dwordx4 {vr(16+4*i,4)}, v9, s[{S_WS}:{S_WS+3}], s75 offen offset:{2048*i} sc1")
a(f"s_lshl_b32 s{sT0}, s{sCW}, 2")
a(f"v_add_u32 v12, s{sT0}, v2")
a("v_mov_b32 v14, 1")
stamp("c")
srd(44, 34, 512 * 1376 * 2)
a(f"s_lshl_b32 s{sT0}, s{sSLOT}, 2")
a(f"s_add_u32 s{sT0}, s{sT0}, s{sCW}")
a(f"s_mul_i32 s78, s{sT0}, {11*1024}")
lds_wait(2, 30, 4, 13)
for k in range(11):
    if k and k % 4 == 0:
        a("s_add_u32 s78, s78, 4096")
    a(f"buffer_load_dwordx4 {vr(PFD,4)}, v1, s[44:47], s78 offen offset:{1024*(k%4)}")
if LATEW:
    lds_wait(2, 1, 4, 13)
    k_copies()
a("s_waitcnt vmcnt(11)")
for i in range(2):
    a(f"ds_write_b128 v8, {vr(16+4*i,4)} offset:{512*i}")
lds_arrive(2, 12, 14)
a(f"s_setprio {PCM}")
lds_wait(2, 12, 4, 13)
stamp("c")
if opt("gate", 1):
    lds_wait(12, 16, 1, 13)
stamp("c")
CA = 16
FR = [48, 112]


def conv_reads(rho, b):
    f = FR[b]
    L = []
    for s in range(8):
        L.append(f"ds_read_b128 {vr(f+32+4*s,4)}, v{vUA} offset:{512*s+64*(7-rho)}")
        for hh in range(2):
            L.append(f"ds_read_b64 {vr(f+4*s+2*hh,2)}, v{vKA} offset:{64*(63-8*s-rho)+8*hh}")
    return L


emit(conv_reads(0, 0))
for rho in range(4):
    f = FR[rho & 1]
    a("s_waitcnt lgkmcnt(0)")
    if rho == 0:
        for d in range(4):
            a(f"v_and_b32 v{f+d}, v{f+d}, v{MK+d}")
    mf = []
    seen = set()
    for s in range(8):
        for w in range(8 - s):
            t = s + w
            c = "0" if (rho == 0 and t not in seen) else vr(CA + 4 * t, 4)
            seen.add(t)
            mf.append(f"v_mfma_f32_16x16x32_bf16 {vr(CA+4*t,4)}, {vr(f+4*s,4)}, {vr(f+32+4*w,4)}, {c}")
    if rho < 3:
        merge(mf, conv_reads(rho + 1, (rho + 1) & 1))
    else:
        tail = [f"s_add_u32 s{sT0}, s{sCB}, {C_TK}", f"s_lshl_b32 s{sT1}, s{sP}, 12", f"s_add_u32 s{sT2}, s{sT0}, s{sT1}",
                f"v_add_u32 v12, s{sT2}, v1", f"s_xor_b32 s{sT1}, s{sT1}, 4096", f"s_add_u32 s{sT2}, s{sT0}, s{sT1}",
                f"v_add_u32 v11, s{sT2}, v1",
                f"v_lshlrev_b32 v10, 5, v{vM}", f"v_lshl_add_u32 v10, v{vQ}, 3, v10",
                f"s_lshl_b32 s{sT0}, s{sP}, 11", f"s_add_u32 s{sT0}, s{sT0}, s{sCB}", f"s_add_u32 s{sT0}, s{sT0}, {C_UL+480}",
                f"v_add_u32 v10, s{sT0}, v10"]
        tail += [f"ds_read_b64 {vr(48+2*i,2)}, v10 offset:{512*i}" for i in range(4)]
        tail += [f"s_lshl_b32 s{sT0}, s{sCH}, 12", f"s_lshl_b32 s{sT1}, s{sP}, 11", f"s_add_u32 s{sT0}, s{sT0}, s{sT1}",
                 f"s_add_u32 s70, s{sT0}, {ST}",
                 f"s_lshl_b32 s{sT0}, s{sXCD}, 1", f"s_add_u32 s{sT0}, s{sT0}, s{sP}", f"s_lshl_b32 s{sT0}, s{sT0}, 10",
                 f"s_and_b32 s{sT1}, s{sCH}, 63", f"s_lshl_b32 s{sT1}, s{sT1}, 4", f"s_add_u32 s{sT0}, s{sT0}, s{sT1}",
                 f"s_add_u32 s71, s{sT0}, {SF}", "v_mov_b32 v14, 1"]
        merge(mf, tail)
stamp("c")
a(f"s_cmp_eq_u32 s{sP}, 0")
a("s_cbranch_scc0 L_xp1")
for i in range(4):
    a(f"ds_write_b128 v12, {vr(CA+16+4*i,4)} offset:{1024*i}")
lds_arrive(vPS, 6, 14)
a("s_branch L_xdone")
a("L_xp1:")
a("s_nop 7")
for i in range(4):
    a(f"ds_write_b128 v12, {vr(CA+4*i,4)} offset:{1024*i}")
lds_arrive(vPS, 6, 14)
for i in range(16):
    a(f"v_mov_b32 v{CA+i}, v{CA+16+i}")
a("L_xdone:")
a("s_waitcnt lgkmcnt(5)")
for i in range(4):
    for hf in range(2):
        a(f"v_lshlrev_b32 v{72+4*i+2*hf}, 16, v{48+2*i+hf}")
        a(f"v_and_b32 v{72+4*i+2*hf+1}, 0xffff0000, v{48+2*i+hf}")
for i in range(16):
    a(f"v_fma_f32 v{CA+i}, v{72+i}, s{sDS}, v{CA+i}")
lds_wait(vPS, 6, 2, 13)
for i in range(4):
    a(f"ds_read_b128 {vr(48+4*i,4)}, v11 offset:{1024*i}")
for pr in range(2):
    a(f"s_waitcnt lgkmcnt({2-2*pr})")
    for i in range(8 * pr, 8 * pr + 8):
        a(f"v_add_f32 v{CA+i}, v{CA+i}, v{48+i}")
    for i in range(4 * pr, 4 * pr + 4):
        a(f"v_cvt_pk_bf16_f32 v{64+i}, v{CA+2*i}, v{CA+2*i+1}")
    for hf in range(2):
        a(f"v_permlane16_swap_b32 v{64+4*pr+hf}, v{64+4*pr+2+hf}")
    a(f"buffer_store_dwordx4 {vr(64+4*pr,4)}, v1, s[{S_WS}:{S_WS+3}], s70 offen offset:{1024*pr} sc1")
a("s_waitcnt vmcnt(0)")
publish("s71", 14, 15)
stamp("c")
dump_stamps("c")
a("L_end:")
a("s_endpgm")
a("L_code_end:")
a.raw('.section .rodata,"a"\n.p2align 6')
a.raw(kernel_desc(KN, 256, 102, 256))
open(OUT, "w").write(a.text())
print("nops inserted:", a.nnop, "instrs:", sum(1 for i in a.items if not isinstance(i, str)), "lds", LDS_BYTES)
```

```python
import sys
from asmlib import *

DIAG = "--diag" in sys.argv
NOCONV = "--noconv" in sys.argv
CYC = "--cyc" in sys.argv
MAP48 = "--map48" in sys.argv
OUT = [x for x in sys.argv[1:] if not x.startswith("--")][0]


def opt(name, default):
    for x in sys.argv:
        if x.startswith(f"--{name}="):
            return int(x.split("=")[1])
    return default


PCONV, PSTAT, PG1, PEPI, PCM = opt("pconv", 0), opt("pstat", 2), opt("pg1", 1), opt("pepi", 3), opt("pcm", 2)

XF, SF, HF = 0x1000, 0x5000, 0x9000
XNT, ST, HB = 0x20000, 0x220000, 0x420000
STAMP, WSB, OOB = 0x1000000, 0x10000000, 0x40000000
L_RING, RINGB = 65536, 9216
L_CONV = L_RING + 4 * RINGB
KCS = 4160
C_TK = 4 * KCS
C_UL = C_TK + 8192
CSTR = C_UL + 4608
L_SYNC = L_CONV + 2 * CSTR
L_STAT = L_SYNC + 256
LDS_BYTES = L_STAT + 512
W1RS = 2752
SPIN = 1 << 18

a = Asm()
sWAVE, sI1, sJ1, sI2, sJ2, sTAG = 3, 4, 5, 6, 7, 8
sG, sK, sRING, sGH, sPEND, sQ = 10, 11, 12, 13, 14, 15
S_X, S_W1, S_W2, S_OUT, S_WS, S_DBG = 44, 48, 52, 56, 60, 64
sT0, sT1, sT2, sT3 = 42, 43, 68, 69
sKS = 70
sXCD, sSLOT, sSPIN = 81, 82, 83
sHF, sHH = 0, 1
STAMP0 = 84
nstamp = {"g": 0, "c": 0}


def srd_l(d, base, nbytes):
    return [f"s_mov_b32 s{d}, s{base}", f"s_and_b32 s{d+1}, s{base+1}, 0xffff",
            f"s_mov_b32 s{d+2}, {nbytes}", f"s_mov_b32 s{d+3}, 0x00020000"]


def emit(L):
    for t in L:
        a(t)


def srd(d, base, nbytes):
    emit(srd_l(d, base, nbytes))


WST = "--wst" in sys.argv
_phase = [0]
def fst():
    if WST:
        _phase[0] = 1
        stamp("g", True)
def stamp(role, fine=False):
    if not DIAG:
        return
    if WST and role == "g" and not fine and nstamp["g"] >= 1 and not _phase[0]:
        return
    k = nstamp[role]; nstamp[role] += 1
    assert k < 16
    a("s_memtime s[100:101]" if CYC else "s_memrealtime s[100:101]")
    a("s_waitcnt lgkmcnt(0)")
    a(f"s_mov_b32 s{STAMP0+k}, s100")


def dump_stamps(role):
    if not DIAG:
        return
    a(f"s_lshl_b32 s{sT0}, s2, 3")
    a(f"s_add_u32 s{sT0}, s{sT0}, s{sWAVE}")
    a(f"s_lshl_b32 s{sT0}, s{sT0}, 6")
    a(f"s_add_u32 s{sT0}, s{sT0}, {STAMP}")
    a("v_mov_b32 v14, 0")
    for k in range(nstamp[role]):
        a(f"v_mov_b32 v15, s{STAMP0+k}")
        a(f"buffer_store_dword v15, v14, s[{S_WS}:{S_WS+3}], s{sT0} offen offset:{4*k}")
    a("s_waitcnt vmcnt(0)")


class VM:
    def __init__(self):
        self.q = []
    def issue(self, tag, n=1):
        self.q += [tag] * n
    def wait(self, tag):
        if tag not in self.q:
            return
        idx = max(i for i, t in enumerate(self.q) if t == tag)
        a(f"s_waitcnt vmcnt({min(len(self.q) - 1 - idx, 63)})")
        self.q = self.q[idx + 1:]
    def drain(self):
        self.q = []


def lds_arrive(vsync, word, vone):
    a("s_mov_b64 exec, 1")
    a(f"ds_add_u32 v{vsync}, v{vone} offset:{4*word}")
    a("s_mov_b64 exec, -1")


def lds_wait(vsync, word, n, vtmp):
    lp, dn = a.label("LW"), a.label("LWD")
    a(f"s_mov_b32 s{sSPIN}, 0")
    a(f"{lp}:")
    a(f"ds_read_b32 v{vtmp}, v{vsync} offset:{4*word}")
    a(f"s_add_u32 s{sSPIN}, s{sSPIN}, 1")
    a("s_waitcnt lgkmcnt(0)")
    a(f"v_readfirstlane_b32 s{sT0}, v{vtmp}")
    a(f"s_cmp_gt_u32 s{sSPIN}, {SPIN*8}")
    a(f"s_cbranch_scc1 {dn}")
    a(f"s_cmp_ge_u32 s{sT0}, {n}")
    a(f"s_cbranch_scc1 {dn}")
    a(f"s_sleep {opt('lsleep', 1)}")
    a(f"s_branch {lp}")
    a(f"{dn}:")


def poll_flags(voff, soff, vtmp, sleep=1):
    lp, dn = a.label("PF"), a.label("PFD")
    a(f"s_mov_b32 s{sSPIN}, 0")
    a(f"{lp}:")
    a(f"buffer_load_dword v{vtmp}, v{voff}, s[{S_WS}:{S_WS+3}], {soff} offen sc1")
    a(f"s_add_u32 s{sSPIN}, s{sSPIN}, 1")
    a("s_waitcnt vmcnt(0)")
    a(f"v_cmp_ne_u32 vcc, s{sTAG}, v{vtmp}")
    a(f"s_cmp_gt_u32 s{sSPIN}, {SPIN}")
    a(f"s_cbranch_scc1 {dn}")
    a("s_cmp_eq_u64 vcc, 0")
    a(f"s_cbranch_scc1 {dn}")
    a(f"s_sleep {sleep}")
    a(f"s_branch {lp}")
    a(f"{dn}:")


def get_tag(vtmp, vzero):
    lp, dn = a.label("GT"), a.label("GTD")
    a(f"s_mov_b32 s{sSPIN}, 0")
    a(f"{lp}:")
    a(f"v_readfirstlane_b32 s{sTAG}, v{vtmp}")
    a(f"s_add_u32 s{sSPIN}, s{sSPIN}, 1")
    a(f"s_cmp_gt_u32 s{sSPIN}, {SPIN}")
    a(f"s_cbranch_scc1 {dn}")
    a(f"s_cmp_lg_u32 s{sTAG}, 0")
    a(f"s_cbranch_scc1 {dn}")
    a("s_sleep 1")
    a(f"buffer_load_dword v{vtmp}, v{vzero}, s[{S_DBG}:{S_DBG+3}], 0 offen sc1")
    a("s_waitcnt vmcnt(0)")
    a(f"s_branch {lp}")
    a(f"{dn}:")


def publish(soff, vtmp, vzero):
    a(f"v_mov_b32 v{vtmp}, s{sTAG}")
    a("s_mov_b64 exec, 1")
    a(f"buffer_store_dword v{vtmp}, v{vzero}, s[{S_WS}:{S_WS+3}], {soff} offen sc1")
    a("s_mov_b64 exec, -1")


def merge(main, fill, first=0, every=1):
    fill = list(fill)
    for i, m in enumerate(main):
        a(m)
        if i >= first and (i - first) % every == 0 and fill:
            a(fill.pop(0))
    for f in fill:
        a(f)


def silu_pk(src, tmp, n, sneg, drip=lambda k: None):
    for i in range(0, n, 2):
        a(f"v_pk_mul_f32 {vr(tmp+i,2)}, {vr(src+i,2)}, s[{sneg}:{sneg+1}]")
    for i in range(n):
        a(f"v_exp_f32 v{tmp+i}, v{tmp+i}")
    drip(2)
    for i in range(0, n, 2):
        a(f"v_pk_add_f32 {vr(tmp+i,2)}, {vr(tmp+i,2)}, 1.0 op_sel_hi:[1,0]")
    for i in range(n):
        a(f"v_rcp_f32 v{tmp+i}, v{tmp+i}")
    for i in range(0, n, 2):
        a(f"v_pk_mul_f32 {vr(src+i,2)}, {vr(src+i,2)}, {vr(tmp+i,2)}")


def klist_code(dst, count, srot, t0, stbl, t1):
    L = []
    for n in range(count):
        L += [f"s_add_u32 s{t0}, s{srot}, {n}", f"s_and_b32 s{t0}, s{t0}, 7", f"s_mul_i32 s{t0}, s{t0}, 43",
              f"s_add_u32 s{t1}, s{t0}, 35", f"s_lshr_b32 s{t0}, s{t0}, 3", f"s_lshr_b32 s{t1}, s{t1}, 3",
              f"s_add_u32 s{t0}, s{t0}, s{stbl}", f"s_min_u32 s{dst+n}, s{t0}, s{t1}"]
    return L


a.raw(open("recurrent_scan__ssm_conv_s4d__dense_activation_silu__prompt.s.ref").read().split("; Override")[0].rstrip())
a.raw(f"; @launch grid=(256,1,1) block=(512,1,1) lds={LDS_BYTES}")
a.raw('.amdgcn_target "amdgcn-amd-amdhsa--gfx950"')
a.raw(".text")
a.raw(f".globl {KN}\n.p2align 8\n.type {KN},@function\n{KN}:")
a("s_cmp_ge_u32 s2, 256")
a("s_cbranch_scc1 L_end")
a("s_load_dwordx16 s[16:31], s[0:1], 0")
a("s_load_dwordx8 s[32:39], s[0:1], 64")
a("s_load_dwordx2 s[40:41], s[0:1], 96")
if DIAG:
    a("s_memtime s[100:101]" if CYC else "s_memrealtime s[100:101]")
    nstamp["g"] = nstamp["c"] = 1
a("s_getpc_b64 s[64:65]")
a("L_pc:")
a("s_and_b32 s65, s65, 0xffff")
a("s_mov_b32 s66, L_code_end-L_pc")
a("s_mov_b32 s67, 0x00020000")
a("v_lshlrev_b32 v1, 7, v0")
a("buffer_load_dword v254, v1, s[64:67], 0 offen")
a("v_lshrrev_b32 v1, 6, v0")
a("v_and_b32 v0, 63, v0")
a(f"v_readfirstlane_b32 s{sWAVE}, v1")
a("v_lshlrev_b32 v1, 4, v0")
a(f"s_and_b32 s{sXCD}, s2, 7")
a(f"s_lshr_b32 s{sSLOT}, s2, 3")
if MAP48:
    a(f"s_lshl_b32 s{sT0}, s{sXCD}, 2")
    a(f"s_and_b32 s{sI1}, s{sSLOT}, 3")
    a(f"s_add_u32 s{sI1}, s{sI1}, s{sT0}")
    a(f"s_lshr_b32 s{sJ1}, s{sSLOT}, 2")
else:
    a(f"s_lshr_b32 s{sT0}, s{sXCD}, 1")
    a(f"s_lshl_b32 s{sT0}, s{sT0}, 3")
    a(f"s_and_b32 s{sI1}, s{sSLOT}, 7")
    a(f"s_add_u32 s{sI1}, s{sI1}, s{sT0}")
    a(f"s_and_b32 s{sT0}, s{sXCD}, 1")
    a(f"s_lshl_b32 s{sT0}, s{sT0}, 2")
    a(f"s_lshr_b32 s{sJ1}, s{sSLOT}, 3")
    a(f"s_add_u32 s{sJ1}, s{sJ1}, s{sT0}")
a(f"v_mov_b32 v2, {L_SYNC}")
a(f"s_cmp_ge_u32 s{sWAVE}, 4")
a("s_cbranch_scc1 L_conv")

vL16, vSYNC = 1, 2
vX, vD0, vD1, vD2, vA0, vT0, vT1, vT2, vW2, vB0, vB1 = 3, 4, 5, 6, 7, 8, 9, 10, 11, 12, 13
ACC1, CS, F0, F1, TMP, WR = 16, 64, 76, 104, 132, 160
FB = [F0, F1]
ONES, vA, vFA, vFB = TMP, TMP + 4, TMP + 5, TMP + 6
vTG = TMP + 27
vm = VM()
vm.issue("PF")
a("v_lshrrev_b32 v14, 4, v0")
a("v_and_b32 v14, 2, v14")
a("v_xor_b32 v14, v14, v0")
a("v_and_b32 v14, 3, v14")
a("v_lshrrev_b32 v15, 2, v0")
a(f"v_mul_u32_u24 v{vD0}, {W1RS}, v15")
a(f"v_lshl_add_u32 v{vD0}, v14, 4, v{vD0}")
a(f"v_add_u32 v{vD1}, {16*W1RS-1024}, v{vD0}")
a("v_bfe_u32 v14, v0, 1, 2")
a("v_lshrrev_b32 v15, 5, v0")
a("v_lshl_add_u32 v14, v15, 2, v14")
a("v_bfe_u32 v15, v0, 3, 2")
a("v_lshl_add_u32 v14, v15, 3, v14")
a(f"v_mul_u32_u24 v14, {W1RS}, v14")
a("v_and_b32 v15, 1, v0")
a(f"v_lshl_add_u32 v{vD2}, v15, 4, v14")
a(f"s_mul_i32 s{sT0}, s{sJ1}, 43")
a(f"s_add_u32 s{sT1}, s{sT0}, 35")
a(f"s_lshr_b32 s{sT0}, s{sT0}, 3")
a(f"s_lshr_b32 s{sT1}, s{sT1}, 3")
a(f"s_sub_u32 s{sT1}, s{sT1}, s{sT0}")
a(f"s_lshl_b32 s{sT2}, s{sWAVE}, 3")
a(f"s_lshr_b32 s{sT2}, 0x05030200, s{sT2}")
a(f"s_and_b32 s{sT2}, s{sT2}, 7")
a(f"s_min_u32 s{sT2}, s{sT2}, s{sT1}")
a(f"s_add_u32 s{sHF}, s{sT0}, s{sT2}")
a(f"s_lshl_b32 s{sG}, s{sHF}, 6")
a(f"s_lshr_b32 s{sT2}, s{sWAVE}, 1")
a(f"s_mul_i32 s{sT2}, s{sT2}, 3")
a(f"s_add_u32 s{sT2}, s{sT2}, 1")
a(f"s_add_u32 s{sHH}, s{sT0}, s{sT2}")
a(f"s_cmp_lt_u32 s{sT2}, s{sT1}")
a(f"s_cselect_b32 s9, 0, {OOB}")
a(f"s_lshl_b32 s{sGH}, s{sHH}, 1")
a(f"s_and_b32 s{sT2}, s{sWAVE}, 1")
a(f"s_add_u32 s{sGH}, s{sGH}, s{sT2}")
a(f"s_lshl_b32 s{sGH}, s{sGH}, 5")
a(f"s_add_u32 s{sGH}, s{sGH}, s9")
if MAP48:
    a(f"s_and_b32 s{sT0}, s{sSLOT}, 3")
    a(f"s_lshl_b32 s{sT0}, s{sT0}, 1")
else:
    a(f"s_and_b32 s{sT0}, s{sSLOT}, 7")
a(f"s_mul_i32 s{sK}, s{sT0}, {2*32*W1RS}")
sKX = sI2
a(f"s_lshl_b32 s{sKX}, s{sT0}, 7")
a(f"s_mul_i32 s{sRING}, s{sWAVE}, {RINGB}")
a(f"s_add_u32 s{sRING}, s{sRING}, {L_RING}")


def w1_refill(slot, tag):
    vm.issue(tag, 3)
    return [
        f"s_add_u32 m0, s{sRING}, {slot*3072}\ns_add_u32 s{sT1}, s{sG}, s{sK}\n"
        f"buffer_load_dwordx4 v{vD0}, s[{S_W1}:{S_W1+3}], s{sT1} offen lds",
        f"s_add_u32 s{sT2}, s{sGH}, s{sK}\n"
        f"buffer_load_dwordx4 v{vD1}, s[{S_W1}:{S_W1+3}], s{sT1} offen offset:1024 lds",
        f"s_add_u32 m0, s{sRING}, {slot*3072+2048}\ns_add_u32 s{sK}, s{sK}, {32*W1RS}\n"
        f"buffer_load_dwordx4 v{vD2}, s[{S_W1}:{S_W1+3}], s{sT2} offen lds\n"
        f"s_cmp_eq_u32 s{sK}, {512*W1RS}\ns_cselect_b32 s{sK}, 0, s{sK}",
    ]


a("v_and_b32 v14, 15, v0")
a(f"v_lshrrev_b32 v{vFA}, 4, v0")
a(f"v_xor_b32 v15, v14, v{vFA}")
a("v_and_b32 v15, 3, v15")
a("v_lshlrev_b32 v15, 4, v15")
a("v_lshl_add_u32 v15, v14, 10, v15")
a("v_lshrrev_b32 v14, 2, v14")
a(f"v_lshl_add_u32 v{vA0}, v14, 6, v15")
a(f"v_lshl_add_u32 v15, v{vFA}, 3, v14")
a("v_lshlrev_b32 v15, 6, v15")
a(f"v_and_b32 v{vT0}, 1, v{vFA}")
a(f"v_lshl_add_u32 v15, v{vT0}, 5, v15")
a(f"v_and_b32 v{vT0}, 3, v0")
a(f"v_lshl_add_u32 v15, v{vT0}, 3, v15")
a(f"v_add_u32 v{vT0}, s{sRING}, v15")
a(f"v_xor_b32 v{vT1}, 32, v{vT0}")
a(f"v_lshlrev_b32 v{vT2}, 3, v0")
a(f"v_add_u32 v{vT2}, s{sRING}, v{vT2}")
for i in range(4):
    a(f"v_mov_b32 v{ONES+i}, 0x3f803f80")
sXR, sXB = 72, 73
a(f"s_lshl_b32 s{sQ}, s{sWAVE}, 14")
a(f"s_lshl_b32 s{sXB}, s{sI1}, 16")
a(f"s_lshl_b32 s{sXR}, s{sJ1}, 12")
XO = WR
for k in range(4):
    a(f"s_add_u32 s{sT1}, s{sJ1}, {k}")
    a(f"s_and_b32 s{sT1}, s{sT1}, 3")
    a(f"s_lshl_b32 s{sT3}, s{sT1}, 6")
    a(f"v_xor_b32 v{XO+4*k}, s{sT3}, v{vL16}")
    for r in range(1, 4):
        a(f"v_xor_b32 v{XO+4*k+r}, {16*r}, v{XO+4*k}")
    a(f"s_lshl_b32 s{sT1}, s{sT1}, 12")
    a(f"s_add_u32 s{74+k}, s{sT1}, s{sQ}")
a("s_mov_b32 s46, 2097152")
a("s_mov_b32 s47, 0x00020000")
a(f"s_mov_b32 s50, {512*1376*2}")
a("s_mov_b32 s51, 0x00020000")
a("s_waitcnt lgkmcnt(0)")
if DIAG:
    a(f"s_mov_b32 s{STAMP0}, s100")
a("s_barrier")
a("s_mov_b32 s44, s16")
a("s_and_b32 s45, s17, 0xffff")
a("s_mov_b32 s48, s32")
a("s_and_b32 s49, s33, 0xffff")
W1FIRST = opt("w1first", 0)
def x_group(k):
    a(f"s_mov_b32 m0, s{74+k}")
    a(f"s_add_u32 s{sT1}, s{74+k}, s{sXB}")
    for r in range(4):
        a(f"buffer_load_dwordx4 v{XO+4*k+r}, s[{S_X}:{S_X+3}], s{sT1} offen offset:{1024*r} lds")
    vm.issue("X", 4)
if W1FIRST == 1:
    for k in range(4):
        x_group(k)
        if k < 3:
            emit(w1_refill(k, f"W{k}"))
elif W1FIRST == 3:
    for sl in range(2):
        emit(w1_refill(sl, f"W{sl}"))
    for k in range(4):
        x_group(k)
    emit(w1_refill(2, "W2"))
elif W1FIRST == 4:
    x_group(0)
    for sl in range(2):
        emit(w1_refill(sl, f"W{sl}"))
    for k in range(1, 4):
        x_group(k)
    emit(w1_refill(2, "W2"))
elif W1FIRST == 2:
    for sl in range(3):
        emit(w1_refill(sl, f"W{sl}"))
    for k in range(4):
        x_group(k)
else:
    for k in range(4):
        x_group(k)
    for sl in range(3):
        emit(w1_refill(sl, f"W{sl}"))
stamp("g")
a("s_setprio 3")
vPW = TMP + 8
a("v_mov_b32 v14, 1")
a(f"s_lshl_b32 s{sT0}, s{sWAVE}, 2")
a(f"v_add_u32 v{vPW}, s{sT0}, v{vSYNC}")
vm.wait("X")
a("s_mov_b64 exec, 1")
a(f"ds_add_u32 v{vSYNC}, v14")
a(f"ds_add_u32 v{vPW}, v14 offset:80")
a("s_mov_b64 exec, -1")
stamp("g")

u0, u1, u2 = 34, 35, 36
late = []
late += srd_l(S_WS, 40, WSB) + srd_l(S_DBG, 38, 256) + srd_l(S_W2, 34, 512 * 1376 * 2) + srd_l(S_OUT, 36, 2048 * 512 * 2)
late += [f"v_mov_b32 v{vFB}, 0",
         f"buffer_load_dword v{vTG}, v{vFB}, s[{S_DBG}:{S_DBG+3}], 0 offen sc1",
         f"s_mov_b32 s{sJ2}, s{sJ1}",
         f"s_mul_i32 s{u0}, s{sI1}, 43", f"s_add_u32 s{sHF}, s{sHF}, s{u0}", f"s_lshl_b32 s{sHF}, s{sHF}, 12",
         f"s_add_u32 s{sHF}, s{sHF}, {HB}", f"s_add_u32 s{sHH}, s{sHH}, s{u0}", f"s_lshl_b32 s{sHH}, s{sHH}, 12",
         f"s_add_u32 s{sHH}, s{sHH}, s9", f"s_and_b32 s{u1}, s{sWAVE}, 1", f"s_lshl_b32 s{u1}, s{u1}, 11",
         f"s_add_u32 s{u1}, s{u1}, {HB}", f"s_add_u32 s{sHH}, s{sHH}, s{u1}",
         f"s_lshl_b32 s{u0}, s{sI1}, 3", f"s_add_u32 s{u0}, s{u0}, s{sJ1}", f"s_lshl_b32 s{u0}, s{u0}, 2",
         f"s_add_u32 s{u0}, s{u0}, s{sWAVE}", f"s_lshl_b32 s{u0}, s{u0}, 4", f"s_add_u32 s{sPEND}, s{u0}, {HF}",
         f"v_bfe_u32 v{vFB}, v0, 2, 2", f"v_lshl_add_u32 v{vB0}, v{vFA}, 2, v{vFB}", f"v_lshlrev_b32 v{vB0}, 7, v{vB0}",
         f"v_lshrrev_b32 v{vFB}, 1, v{vFB}", f"v_lshl_add_u32 v{vB0}, v{vFB}, 6, v{vB0}", f"v_and_b32 v{vFB}, 3, v0",
         f"v_lshl_add_u32 v{vB0}, v{vFB}, 4, v{vB0}",
         f"v_add_u32 v{vX}, s{sRING}, v{vB0}", f"v_add_u32 v{vB0}, s{sQ}, v{vB0}", f"v_xor_b32 v{vB1}, 64, v{vB0}",
         f"v_lshrrev_b32 v{vW2}, 2, v0", f"v_and_b32 v{vW2}, 4, v{vW2}", f"v_xor_b32 v{vW2}, v{vW2}, v0",
         f"v_and_b32 v{vW2}, 7, v{vW2}", f"v_lshlrev_b32 v{vW2}, 4, v{vW2}", f"v_lshrrev_b32 v{vFB}, 3, v0",
         f"v_lshl_add_u32 v{vW2}, v{vFB}, 10, v{vW2}",
         f"s_lshl_b32 s{u1}, s{sJ2}, 7", f"v_add_u32 v{vW2}, s{u1}, v{vW2}",
         f"v_and_b32 v{vFB}, 15, v0", f"v_lshlrev_b32 v{vFB}, 3, v{vFB}", f"v_add_u32 v{vFB}, {L_STAT}, v{vFB}",
         f"s_mov_b32 s32, 0xbfb8aa3b", f"s_mov_b32 s33, 0xbfb8aa3b",
         f"s_lshl_b32 s{u0}, s{sJ2}, 1", f"s_add_u32 s{u0}, s{u0}, s{sSLOT}",
         f"s_lshl_b32 s{u2}, s{sWAVE}, 3", f"s_lshr_b32 s{u2}, 0x05030200, s{u2}", f"s_and_b32 s{u2}, s{u2}, 7"]
late += klist_code(sKS, 8, u0, u1, u2, 37)
for m in range(2):
    late += [f"s_add_u32 s{u1}, s{u0}, s{sWAVE}", f"s_add_u32 s{u1}, s{u1}, {4*m}", f"s_and_b32 s{u1}, s{u1}, 7",
             f"s_mul_i32 s{u1}, s{u1}, 43", f"s_lshr_b32 s{u1}, s{u1}, 3", f"s_add_u32 s{sKS+8+m}, s{u1}, 1"]
late += [f"s_lshl_b32 s{u1}, s{sWAVE}, 4", f"s_add_u32 s{u1}, s{u1}, 14", f"s_min_u32 s{u1}, s{u1}, 41",
         f"s_cmp_eq_u32 s{sWAVE}, 3\ns_cselect_b32 s{sKS+10}, 0x10000, s{u1}"]
sNEG = 32
lds_wait(vSYNC, 0, 4, 14)
stamp("g")


def g1_reads(b, slot):
    f = FB[b]
    L = [f"v_xor_b32 v{vA}, s{sKX}, v{vA0}\n"
         f"ds_read_b64_tr_b16 {vr(f,2)}, v{vT0} offset:{slot*3072}",
         f"ds_read_b64_tr_b16 {vr(f+2,2)}, v{vT0} offset:{slot*3072+256}",
         f"ds_read_b128 {vr(f+12,4)}, v{vA}",
         f"ds_read_b128 {vr(f+16,4)}, v{vA} offset:16384"]
    for hh in range(2):
        L.append(f"ds_read_b64_tr_b16 {vr(f+4+2*hh,2)}, v{vT1} offset:{slot*3072+256*hh}")
    L.append(f"ds_read_b128 {vr(f+20,4)}, v{vA} offset:32768")
    L.append(f"ds_read_b128 {vr(f+24,4)}, v{vA} offset:49152\ns_add_u32 s{sKX}, s{sKX}, 64\ns_and_b32 s{sKX}, s{sKX}, 0x3c0")
    for hh in range(2):
        L.append(f"ds_read_b64_tr_b16 {vr(f+8+2*hh,2)}, v{vT2} offset:{slot*3072+2048+512*hh}")
    return L


a(f"s_setprio {PG1}")
vm.wait("W0")
emit(g1_reads(0, 0))
for n in range(16):
    f = FB[n & 1]
    mf = []
    for ct in range(3):
        for rt in range(4):
            ac = ACC1 + (ct * 4 + rt) * 4
            mf.append(f"v_mfma_f32_16x16x32_bf16 {vr(ac,4)}, {vr(f+4*ct,4)}, {vr(f+12+4*rt,4)}, {'0' if n == 0 else vr(ac,4)}")
        mf.append(f"v_mfma_f32_16x16x32_bf16 {vr(CS+4*ct,4)}, {vr(f+4*ct,4)}, {vr(ONES,4)}, {'0' if n == 0 else vr(CS+4*ct,4)}")
    a("s_waitcnt lgkmcnt(0)")
    head = w1_refill(n % 3, f"W{n+3}") if n + 3 < 16 else []
    merge(mf[:3], head)
    if n == opt("tstep", 12):
        lds_arrive(vSYNC, 30, 14)
    fill = []
    if n + 1 < 16:
        vm.wait(f"W{n+1}")
        fill = g1_reads((n + 1) & 1, (n + 1) % 3)
    for i, m in enumerate(mf[3:]):
        a(m)
        if fill:
            a(fill.pop(0))
        for _ in range(1 if n < 8 else 2):
            if late and n >= 1:
                t = late.pop(0)
                a(t)
                if "buffer_load" in t:
                    vm.issue("TG")
    if n in (3, 7, 11):
        stamp("g")
assert not late, len(late)
a("v_mov_b32 v14, 1")
lds_arrive(vSYNC, 1, 14)
stamp("g")


def area_base(ar):
    return (sRING, 4096 * ar) if ar < 2 else (sQ, 4096 * (ar - 2))


def w2_dma(n, ar):
    sb, off = area_base(ar)
    L = [f"s_add_u32 m0, s{sb}, {off}\ns_lshl_b32 s{sT1}, s{sKS+n}, 15\n"
         f"buffer_load_dwordx4 v{vW2}, s[{S_W2}:{S_W2+3}], s{sT1} offen lds"]
    for u in range(1, 4):
        L.append(f"s_add_u32 s{sT2}, s{sT1}, {7168*u}\n"
                 f"buffer_load_dwordx4 v{vW2}, s[{S_W2}:{S_W2+3}], s{sT2} offen offset:{1024*u} lds")
    vm.issue(f"D{n}", 4)
    return L


vBR0, vBR1, vBQ0, vBQ1 = vX, vD0, vB0, vB1
def w2_reads(ws, ar):
    w = WR + 16 * ws
    b0, b1 = (vBR0, vBR1) if ar < 2 else (vBQ0, vBQ1)
    off = area_base(ar)[1]
    return [f"ds_read_b64_tr_b16 {vr(w+4*ct+2*hh,2)}, v{b1 if ct >> 1 else b0} offset:{off+8*(ct&1)+2048*hh}"
            for ct in range(4) for hh in range(2)]


a(f"s_setprio {PEPI}")
STR = F0
early = []
if not NOCONV:
    lds_wait(vSYNC, 3, 4, 14)
for rt in range(4):
    a(f"ds_read_b64 {vr(STR+2*rt,2)}, v{vFB} offset:{128*rt}")
a(f"v_xor_b32 v{vBR1}, 64, v{vBR0}")
a("s_waitcnt lgkmcnt(0)")
T, PKR = F0 + 8, F0 + 24
for rt in range(4):
    rs = STR + 2 * rt
    for ct in range(3):
        for hf in range(2):
            ac = ACC1 + (ct * 4 + rt) * 4 + 2 * hf
            a(f"v_pk_mul_f32 {vr(ac,2)}, {vr(ac,2)}, {vr(rs,2)} op_sel_hi:[1,0]")
            a(f"v_pk_fma_f32 {vr(PKR+8+4*ct+2*hf,2)}, {vr(CS+4*ct+2*hf,2)}, {vr(rs,2)}, {vr(ac,2)} op_sel:[0,1,0] op_sel_hi:[1,1,1] neg_lo:[0,1,0] neg_hi:[0,1,0]")
    if early:
        a(early.pop(0))
    silu_pk(PKR + 8, T, 12, sNEG)
    if early:
        a(early.pop(0))
    pk = PKR + 20 + 4 * (rt & 1)
    hq = PKR + 28 + (0 if rt < 2 else 12)
    hq = 128 if rt < 2 else 144
    for i in range(4):
        a(f"v_cvt_pk_bf16_f32 v{pk+i}, v{PKR+8+2*i}, v{PKR+8+2*i+1}")
    for i in range(2):
        a(f"v_cvt_pk_bf16_f32 v{hq+2*(rt&1)+i}, v{PKR+16+2*i}, v{PKR+16+2*i+1}")
    a(f"buffer_store_dwordx4 {vr(pk,4)}, v{vL16}, s[{S_WS}:{S_WS+3}], s{sHF} offen offset:{1024*rt} sc1")
    if rt & 1:
        a(f"buffer_store_dwordx4 {vr(hq,4)}, v{vL16}, s[{S_WS}:{S_WS+3}], s{sHH} offen offset:{1024*(rt>>1)} sc1")
assert not early
vm.issue("S", 6)
a("v_mov_b32 v14, 1")
lds_arrive(vPW, 16, 14)
stamp("g")
a("v_mov_b32 v15, 0")
get_tag(vTG, 15)
fst_on = True
fst()
lds_wait(vSYNC, 1, 4, 14)
emit(w2_dma(0, 0) + w2_dma(1, 1))
fst()
ACC2, HFR = 16, 80
XT, SR = 144, 152
vH, vXO, vSO, vFL, vP = 5, 9, 10, 14, 15
a(f"s_mov_b32 s{sI2}, s{sI1}")
for rp in range(4):
    a(f"s_xor_b32 s{sT0}, s{sWAVE}, {rp}")
    a(f"s_lshl_b32 s{sT0}, s{sT0}, 10")
    a(f"v_add_u32 v{vH+rp}, s{sT0}, v{vL16}")
a(f"s_lshl_b32 s{sG}, s{sI2}, 9")
a(f"s_add_u32 s{sG}, s{sG}, {HF}")
a(f"s_mul_i32 s{sK}, s{sI2}, {43*4096}")
a(f"s_add_u32 s{sK}, s{sK}, {HB}")
sSF = sHF
a("v_and_b32 v14, 15, v0")
a("v_lshrrev_b32 v15, 4, v0")
a("v_lshlrev_b32 v15, 4, v15")
a(f"v_lshl_add_u32 v{vXO}, v14, 10, v15")
a(f"s_lshl_b32 s9, s{sI2}, 16")
a(f"s_add_u32 s9, s9, s{sQ}")
a(f"s_lshl_b32 s{sT1}, s{sJ2}, 7")
a(f"s_add_u32 s9, s9, s{sT1}")
a("v_lshrrev_b32 v14, 3, v0")
a("v_bfe_u32 v15, v0, 2, 1")
a("v_lshlrev_b32 v15, 9, v15")
a(f"v_lshl_add_u32 v{vSO}, v14, 12, v15")
a("v_and_b32 v14, 3, v0")
a(f"v_lshl_add_u32 v{vSO}, v14, 4, v{vSO}")
a(f"s_lshr_b32 s{sT1}, s{sI2}, 3")
a(f"s_lshl_b32 s{sT1}, s{sT1}, 10")
a(f"s_bfe_u32 s{sT2}, s{sI2}, 0x10002")
a(f"s_lshl_b32 s{sT2}, s{sT2}, 8")
a(f"s_add_u32 s{sT1}, s{sT1}, s{sT2}")
a(f"s_and_b32 s{sT0}, s{sI2}, 3")
a(f"s_lshl_b32 s{sT0}, s{sT0}, 6")
a(f"s_add_u32 s{sT1}, s{sT1}, s{sT0}")
a(f"s_lshl_b32 s{sT0}, s{sJ2}, 18")
a(f"s_add_u32 s{sT1}, s{sT1}, s{sT0}")
a(f"s_lshl_b32 s{sT0}, s{sWAVE}, 16")
a(f"s_add_u32 s{sT1}, s{sT1}, s{sT0}")
a(f"s_add_u32 s{sGH}, s{sT1}, {ST}")
a(f"s_lshl_b32 s{sT0}, s{sJ2}, 1")
a(f"s_lshr_b32 s{sT1}, s{sI2}, 4")
a(f"s_add_u32 s{sT0}, s{sT0}, s{sT1}")
a(f"s_lshl_b32 s{sT0}, s{sT0}, 10")
a(f"s_lshl_b32 s{sT1}, s{sWAVE}, 8")
a(f"s_add_u32 s{sT0}, s{sT0}, s{sT1}")
a(f"s_add_u32 s{sSF}, s{sT0}, {SF}")
a("v_mov_b32 v15, 0")
vm.wait("S")
publish(f"s{sPEND}", 14, 15)
vm.issue("F")
stamp("g")
a(f"s_setprio {PG1}")
for n in range(2, 6):
    emit(w2_dma(n, n))
a(f"v_and_b32 v{vFL}, 0x1ff, v{vL16}")
fst()
def h_loads(n):
    hs = n % 4
    L = []
    for rp in range(4):
        pre = f"s_lshl_b32 s{sT1}, s{sKS+n}, 12\ns_add_u32 s{sT1}, s{sT1}, s{sK}\n" if rp == 0 else ""
        if n == 8 and rp == 0:
            pre += (f"s_lshl_b32 s{sT0}, s{sWAVE}, 1\ns_lshr_b32 s{sT2}, s{sWAVE}, 1\ns_or_b32 s{sT0}, s{sT0}, s{sT2}\n"
                    f"s_and_b32 s{sT0}, s{sT0}, 3\ns_lshl_b32 s{sT0}, s{sT0}, 10\nv_add_u32 v{vH}, s{sT0}, v{vL16}\n")
            for i in range(1, 4):
                pre += f"v_xor_b32 v{vH+i}, {1024*i}, v{vH}\n"
        src = vH + rp if n < 8 else vH + 2 * (rp & 1) + (rp >> 1)
        L.append(pre + f"buffer_load_dwordx4 {vr(HFR+16*hs+4*rp,4)}, v{src}, s[{S_WS}:{S_WS+3}], s{sT1} offen sc1")
    vm.issue(f"H{n}", 4)
    return L


def h_fix(n):
    b = HFR + 16 * (n % 4)
    od, dn = a.label("HO"), a.label("HD")
    a(f"s_bitcmp1_b32 s{sWAVE}, 0")
    a(f"s_cbranch_scc1 {od}")
    for pp in range(2):
        for i in range(2):
            a(f"v_swap_b32 v{b+8*pp+2+i}, v{b+8*pp+4+i}")
    a(f"s_branch {dn}")
    a(f"{od}:")
    for pp in range(2):
        for i in range(2):
            a(f"v_swap_b32 v{b+8*pp+i}, v{b+8*pp+6+i}")
    a(f"{dn}:")
    a("s_nop 1")


PPOS, HPOS = opt("ppos", 3), opt("hpos", 5)
for n in range(6):
    vm.wait(f"D{n}")
    emit(w2_reads(n, n))
    if n >= 1:
        a("s_waitcnt lgkmcnt(8)")
        emit(w2_dma(5 + n, n - 1))
    if n == PPOS:
        a(f"buffer_load_dword v{vP}, v{vFL}, s[{S_WS}:{S_WS+3}], s{sG} offen sc1")
        vm.issue("HP")
    if n == HPOS:
        stamp("g")
        dn = a.label("HOK")
        vm.wait("HP")
        a(f"v_cmp_ne_u32 vcc, s{sTAG}, v{vP}")
        a("s_nop 1")
        a("s_cmp_eq_u64 vcc, 0")
        a(f"s_cbranch_scc1 {dn}")
        poll_flags(vFL, f"s{sG}", vP)
        a(f"{dn}:")
        stamp("g")
        for k in range(3):
            emit(h_loads(k))
for hf in range(2):
    a(f"buffer_load_dwordx4 {vr(XT+4*hf,4)}, v{vXO}, s[{S_X}:{S_X+3}], s9 offen offset:{64*hf}")
vm.issue("XT", 2)
a(f"v_and_b32 v{vFL}, 0xff, v{vL16}")
for n in range(11):
    ws, hs = n % 6, n % 4
    mf = []
    for rp in (1, 2, 3, 0):
        for ct in range(4):
            ac = ACC2 + (ct * 4 + rp) * 4
            mf.append(f"v_mfma_f32_16x16x32_bf16 {vr(ac,4)}, {vr(WR+16*ws+4*ct,4)}, {vr(HFR+16*hs+4*rp,4)}, {'0' if n == 0 else vr(ac,4)}")
    vm.wait(f"H{n}")
    if n >= 8:
        h_fix(n)
    if n == 0 or n >= 6:
        a("s_waitcnt lgkmcnt(0)")
    if 1 <= n <= 5:
        vm.wait(f"D{n+5}")
    fill = h_loads(n + 3) if n + 3 < 11 else []
    if n == 8 and not NOCONV:
        fill = [f"buffer_load_dword v{vP}, v{vFL}, s[{S_WS}:{S_WS+3}], s{sSF} offen sc1"]
        vm.issue("SP")
    if 1 <= n <= 5:
        vm.wait(f"D{n+5}")
        fill += w2_reads((n + 5) % 6, n - 1)
    merge(mf, fill)
    if n in (0, 3, 7):
        fst()
    if n == 9:
        if not NOCONV:
            dn = a.label("SOK")
            vm.wait("SP")
            a(f"v_cmp_ne_u32 vcc, s{sTAG}, v{vP}")
            a("s_nop 1")
            a("s_cmp_eq_u64 vcc, 0")
            a(f"s_cbranch_scc1 {dn}")
            poll_flags(vFL, f"s{sSF}", vP)
            a(f"{dn}:")
        a(f"s_add_u32 s{sT2}, s{sGH}, {8*4096}")
        a(f"buffer_load_dwordx4 {vr(SR,4)}, v{vSO}, s[{S_WS}:{S_WS+3}], s{sGH} offen sc1")
        a(f"buffer_load_dwordx4 {vr(SR+4,4)}, v{vSO}, s[{S_WS}:{S_WS+3}], s{sT2} offen sc1")
        vm.issue("SL", 2)
stamp("g")
a(f"s_setprio {PEPI}")
a(f"v_add_u32 v14, s{sQ}, v{vL16}")
for rp in range(1, 4):
    for ct in range(4):
        a(f"ds_write_b128 v14, {vr(ACC2+(ct*4+rp)*4,4)} offset:{(rp-1)*4096+ct*1024}")
a("v_lshrrev_b32 v14, 3, v0")
a("v_lshlrev_b32 v14, 7, v14")
a("v_and_b32 v15, 3, v0")
a("v_lshl_add_u32 v14, v15, 5, v14")
a("v_bfe_u32 v15, v0, 2, 1")
a("v_lshl_add_u32 v14, v15, 4, v14")
a(f"v_add_u32 v14, s{sRING}, v14")
a("s_waitcnt vmcnt(0)")
a(f"ds_write_b128 v14, {vr(SR,4)}")
a(f"ds_write_b128 v14, {vr(SR+4,4)} offset:1024")
a("v_mov_b32 v14, 1")
lds_arrive(vSYNC, 2, 14)
for rp in range(1, 4):
    a(f"s_xor_b32 s{sT0}, s{sWAVE}, {rp}")
    a(f"s_lshl_b32 s{sT0}, s{sT0}, 14")
    a(f"v_add_u32 v{vH+rp}, s{sT0}, v{vL16}")
a("v_lshrrev_b32 v14, 5, v0")
a(f"v_mul_u32_u24 v14, {RINGB}, v14")
a("v_bfe_u32 v15, v0, 4, 1")
a("v_lshl_add_u32 v14, v15, 10, v14")
a("v_bfe_u32 v15, v0, 2, 2")
a("v_lshl_add_u32 v14, v15, 7, v14")
a("v_and_b32 v15, 3, v0")
a("v_lshl_add_u32 v14, v15, 3, v14")
a(f"s_lshl_b32 s{sT0}, s{sWAVE}, 5")
a(f"s_add_u32 s{sT0}, s{sT0}, {L_RING}")
a(f"v_add_u32 v{vH}, s{sT0}, v14")
lds_wait(vSYNC, 2, 4, 14)
stamp("g")
PR = HFR
for rp in range(1, 4):
    for ct in range(4):
        a(f"ds_read_b128 {vr(PR+16*(rp-1)+4*ct,4)}, v{vH+rp} offset:{(rp-1)*4096+ct*1024}")
O = WR
for sidx in range(3):
    a(f"s_waitcnt lgkmcnt({8-4*sidx})")
    for ct in range(4):
        for hf in range(2):
            src = (ACC2 + ct * 16 + 2 * hf) if sidx == 0 else (O + 4 * ct + 2 * hf)
            a(f"v_pk_add_f32 {vr(O+4*ct+2*hf,2)}, {vr(src,2)}, {vr(PR+16*sidx+4*ct+2*hf,2)}")
for ct in range(4):
    a(f"ds_read_b64_tr_b16 {vr(SR+2*ct,2)}, v{vH} offset:{512*(ct&1)+2*RINGB*(ct>>1)}")
silu_pk(O, O + 16, 16, sNEG)
a("s_waitcnt lgkmcnt(0)")
for ct in range(4):
    for hf in range(2):
        sdw = SR + 2 * ct + hf
        xdw = XT + 2 * ct + hf
        t = O + 16 + 4 * (2 * (ct & 1) + hf)
        a(f"v_lshlrev_b32 v{t}, 16, v{sdw}")
        a(f"v_and_b32 v{t+1}, 0xffff0000, v{sdw}")
        a(f"v_lshlrev_b32 v{t+2}, 16, v{xdw}")
        a(f"v_and_b32 v{t+3}, 0xffff0000, v{xdw}")
        a(f"v_pk_fma_f32 {vr(t,2)}, {vr(t,2)}, {vr(O+4*ct+2*hf,2)}, {vr(t+2,2)}")
        a(f"v_cvt_pk_bf16_f32 v{xdw}, v{t}, v{t+1}")
    if ct & 1:
        hf = ct >> 1
        a(f"buffer_store_dwordx4 {vr(XT+4*hf,4)}, v{vXO}, s[{S_OUT}:{S_OUT+3}], s9 offen offset:{64*hf}")
stamp("g")
dump_stamps("g")
a("s_endpgm")

a("L_conv:")
sCH, sP, sCB, sDT, sDS, sCW = 10, 11, 6, 7, 9, 12
a(f"s_setprio {opt('pc0', 2)}")
a("v_mov_b32 v15, 0")
a("v_lshlrev_b32 v14, 2, v0")
a(f"v_add_u32 v14, {L_SYNC}, v14")
a(f"s_cmp_lg_u32 s{sWAVE}, 4")
a("s_cbranch_scc1 L_nozero")
a("ds_write_b32 v14, v15")
a("L_nozero:")
a(f"s_lshl_b32 s{sT0}, s{sXCD}, 5")
a(f"s_add_u32 s{sT0}, s{sT0}, s{sSLOT}")
a(f"s_lshl_b32 s{sT1}, s{sT0}, 2")
a(f"s_bfe_u32 s{sT2}, s{sWAVE}, 0x10001")
a(f"s_lshl_b32 s{sCH}, s{sT0}, 1")
a(f"s_add_u32 s{sCH}, s{sCH}, s{sT2}")
a(f"s_and_b32 s{sP}, s{sWAVE}, 1")
a(f"s_and_b32 s{sCW}, s{sWAVE}, 3")
a(f"s_mul_i32 s{sCB}, s{sT2}, {CSTR}")
a(f"s_add_u32 s{sCB}, s{sCB}, {L_CONV}")
a(f"s_lshl_b32 s{sT0}, s{sCH}, 8")
a(f"s_lshl_b32 s{sT3}, s{sP}, 7")
a(f"s_add_u32 s{sT0}, s{sT0}, s{sT3}")
a("v_lshlrev_b32 v3, 1, v0")
for k in range(4):
    a(f"s_mov_b32 s{46+4*k}, {512*128*2}")
    a(f"s_mov_b32 s{47+4*k}, 0x00020000")
a("s_waitcnt lgkmcnt(0)")
if DIAG:
    a(f"s_mov_b32 s{STAMP0}, s100")
for k in range(4):
    a(f"s_mov_b32 s{44+4*k}, s{18+2*k}")
    a(f"s_and_b32 s{45+4*k}, s{19+2*k}, 0xffff")
    a(f"buffer_load_ushort v{4+k}, v3, s[{44+4*k}:{47+4*k}], s{sT0} offen")
a("s_barrier")
a(f"s_load_dword s{sDT}, s[26:27], s{sT1}")
a(f"s_load_dword s{sDS}, s[28:29], s{sT1}")
srd(S_WS, 40, WSB)
srd(S_DBG, 38, 256)
vEP, vTGc, PFD = 255, 254, 248
a(f"s_or_b32 s77, s2, s{sCW}")
a("s_cmp_lg_u32 s77, 0")
a("s_cbranch_scc1 L_noepoch")
a(f"buffer_load_dword v{vEP}, v15, s[{S_WS}:{S_WS+3}], 0 offen sc1")
a("L_noepoch:")
def post_tag():
    a("s_cmp_lg_u32 s77, 0")
    a("s_cbranch_scc1 L_noepoch2")
    a(f"v_add_u32 v14, 0x9e3779b8, v{vEP}")
    a("v_or_b32 v14, 1, v14")
    a("s_mov_b64 exec, 1")
    a(f"buffer_store_dword v14, v15, s[{S_DBG}:{S_DBG+3}], 0 offen sc1")
    a(f"buffer_store_dword v14, v15, s[{S_WS}:{S_WS+3}], 0 offen sc1")
    a("s_mov_b64 exec, -1")
    a("L_noepoch2:")
if NOCONV:
    a("s_waitcnt vmcnt(0)")
    post_tag()
    a("s_endpgm")
V, PK, DT, LOF, HIF, SEL, GA, MK = 64, 96, 112, 144, 160, 176, 208, 227
KD = 52
vKA, vUA, vTKa, vTKb, vTK2, vTK0, vKW, vSA = 231, 232, 233, 234, 235, 236, 237, 238
vXT, vXS, vSTA, vM, vQ, vPS = 242, 246, 247, 252, 253, 3
a(f"v_and_b32 v{vM}, 15, v0")
a(f"v_lshrrev_b32 v{vQ}, 4, v0")
a("v_and_b32 v10, 1, v0")
a("v_lshlrev_b32 v10, 4, v10")
a("v_mov_b32 v11, 0x3f80")
a("v_lshlrev_b32 v10, v10, v11")
a("v_lshrrev_b32 v11, 1, v0")
for g in range(8):
    for d in range(4):
        if d & 1:
            a(f"v_cndmask_b32 v{SEL+4*g+d}, 0, v10, s[74:75]")
        else:
            a(f"v_cmp_eq_u32 vcc, {4*g+d}, v11")
            a(f"v_cmp_eq_u32 s[74:75], {4*g+d+1}, v11")
            a("s_nop 0")
            a(f"v_cndmask_b32 v{SEL+4*g+d}, 0, v10, vcc")
a(f"s_lshl_b32 s{sT0}, s{sP}, 2")
a(f"s_add_u32 s{sT0}, s{sT0}, s{sCB}")
a(f"s_add_u32 s{sT0}, s{sT0}, {C_TK}")
a(f"v_lshrrev_b32 v10, 1, v{vQ}")
a("v_lshlrev_b32 v10, 7, v10")
a(f"v_and_b32 v11, 1, v{vQ}")
a("v_lshl_add_u32 v10, v11, 2, v10")
a(f"v_lshl_add_u32 v10, v{vM}, 3, v10")
a(f"v_lshl_add_u32 v{vTK0}, v10, 3, s{sT0}")
a(f"v_lshlrev_b32 v10, 6, v{vQ}")
a(f"v_lshlrev_b32 v11, 1, v{vM}")
a(f"v_cmp_gt_u32 vcc, 2, v{vQ}")
a("v_add_u32 v10, v10, v11")
a("v_add_u32 v10, 256, v10")
a("v_cndmask_b32 v11, 0, v11, vcc")
a("v_add_u32 v10, v10, v11")
a(f"v_lshl_add_u32 v{vTKa}, v10, 3, s{sT0}")
a("v_mov_b32 v11, 256")
a("v_cndmask_b32 v11, v11, 16, vcc")
a(f"v_add_u32 v{vTKb}, v{vTKa}, v11")
a(f"v_lshl_add_u32 v10, v{vQ}, 6, v{vM}")
a("v_add_u32 v10, 512, v10")
a(f"v_lshl_add_u32 v{vTK2}, v10, 3, s{sT0}")
a(f"v_xor_b32 v10, v{vM}, v{vQ}")
a("v_and_b32 v10, 3, v10")
a("v_lshlrev_b32 v10, 4, v10")
a(f"v_lshl_add_u32 v10, v{vM}, 10, v10")
a(f"v_lshrrev_b32 v11, 2, v{vM}")
a("v_lshl_add_u32 v10, v11, 6, v10")
a(f"s_lshl_b32 s{sT0}, s{sCW}, 14")
a(f"v_add_u32 v{vSA}, s{sT0}, v10")
for i in range(1, 4):
    a(f"v_xor_b32 v{vSA+i}, {64*i}, v{vSA}")
a(f"s_lshl_b32 s{sT1}, s{sJ1}, 3")
a(f"v_add_u32 v10, s{sT1}, v{vQ}")
a("v_and_b32 v12, 1, v0")
a("v_lshlrev_b32 v12, 3, v12")
a("v_bfe_u32 v13, v0, 2, 2")
a("v_add_u32 v12, v12, v13")
a("v_bfe_u32 v13, v0, 1, 1")
a(f"v_lshl_add_u32 v13, v13, 3, s{sT0}")
for hh in range(2):
    if hh:
        a("v_add_u32 v12, 4, v12")
    a("v_xor_b32 v11, v12, v10")
    a("v_lshl_add_u32 v11, v11, 4, v13")
    a(f"v_lshl_add_u32 v{vXT+hh}, v12, 10, v11")
    a(f"v_xor_b32 v{vXT+2+hh}, 64, v{vXT+hh}")
a("v_lshrrev_b32 v12, 3, v0")
a("v_lshlrev_b32 v12, 14, v12")
a("v_and_b32 v13, 0x70, v1")
a(f"v_add_u32 v{vXS}, v12, v13")
a("v_bfe_u32 v12, v0, 2, 1")
a(f"s_lshl_b32 s{sT0}, s{sCW}, 7")
a(f"s_add_u32 s76, s{sT0}, {L_STAT}")
a(f"v_lshl_add_u32 v{vSTA}, v12, 6, s76")
a(f"s_lshl_b32 s{sT0}, s{sI1}, 2")
a(f"s_add_u32 s{sT0}, s{sT0}, s{sCW}")
a(f"s_lshl_b32 s{sT1}, s{sJ1}, 18")
a(f"s_lshl_b32 s{sT2}, s{sT0}, 7")
a(f"s_add_u32 s{sT1}, s{sT1}, s{sT2}")
a(f"s_add_u32 s70, s{sT1}, {XNT}")
a(f"s_add_u32 s79, s70, {8*16384}")
a(f"s_lshl_b32 s{sT1}, s{sJ1}, 7")
a(f"s_add_u32 s{sT0}, s{sT0}, s{sT1}")
a(f"s_lshl_b32 s{sT0}, s{sT0}, 4")
a(f"s_add_u32 s71, s{sT0}, {XF}")
a(f"s_bfe_u32 s{sT2}, s{sWAVE}, 0x10001")
a(f"s_lshl_b32 s{sT2}, s{sT2}, 4")
a(f"v_add_u32 v{vPS}, s{sT2}, v2")
stamp("c")
a("s_waitcnt lgkmcnt(0)")
a(f"s_lshr_b32 s{sDT}, s{sDT}, s{sT2}")
a(f"s_lshl_b32 s{sDT}, s{sDT}, 16")
a(f"s_lshr_b32 s{sDS}, s{sDS}, s{sT2}")
a(f"s_lshl_b32 s{sDS}, s{sDS}, 16")
a(f"s_mov_b32 s{sT3}, 0x3fb8aa3b")
a(f"v_mov_b32 v8, s{sDT}")
a(f"v_mul_f32 v8, s{sT3}, v8")
a("v_exp_f32 v8, v8")
a("s_waitcnt vmcnt(0)")
stamp("c")
post_tag()
for k in range(4):
    a(f"v_lshlrev_b32 v{4+k}, 16, v{4+k}")
a("v_cvt_pk_bf16_f32 v8, v8, v8")
a("v_lshlrev_b32 v8, 16, v8")
a(f"v_mul_f32 v4, s{sT3}, v4")
a("v_exp_f32 v4, v4")
a("v_mul_f32 v5, v5, v8")
a("v_cvt_pk_bf16_f32 v4, v4, v4")
a("v_lshlrev_b32 v4, 16, v4")
a("v_mul_f32 v4, v4, v8")
a(f"v_mul_f32 v4, 0xbfb8aa3b, v4")
a("v_mul_f32 v5, 0.15915494, v5")
Y = 20
a("v_add_f32 v8, v8, v8")
a(f"v_mul_f32 v{Y}, v6, v8")
a(f"v_mul_f32 v{Y+1}, v7, v8")
Z1, Z8, Z128, Yn = 24, 22, 40, 50
for (dst, mul) in ((Z8, "0x41000000"), (Z1, None), (Z128, "0x43000000")):
    if mul is None:
        a("v_exp_f32 v10, v4")
        a("v_fract_f32 v11, v5")
    else:
        a(f"v_mul_f32 v10, {mul}, v4")
        a(f"v_mul_f32 v11, {mul}, v5")
        a("v_fract_f32 v11, v11")
        a("v_exp_f32 v10, v10")
    a("v_cos_f32 v12, v11")
    a("v_sin_f32 v13, v11")
    a(f"v_mul_f32 v{dst}, v10, v12")
    a(f"v_mul_f32 v{dst+1}, v10, v13")
ctmp = [42, 44, 46, 48]
cti = [0]


def cmul(d, x, y):
    assert d not in (x, y)
    return (f"v_mul_f32 v{d}, v{x}, v{y}\nv_mul_f32 v{d+1}, v{x}, v{y+1}\n"
            f"v_fma_f32 v{d}, -v{x+1}, v{y+1}, v{d}\nv_fmac_f32 v{d+1}, v{x+1}, v{y}")


def pcmul(d, x, y):
    t = ctmp[cti[0] % 4]; cti[0] += 1
    return (f"v_pk_mul_f32 {vr(t,2)}, {vr(x,2)}, {vr(y,2)} op_sel:[0,0] op_sel_hi:[0,1]\n"
            f"v_pk_fma_f32 {vr(d,2)}, {vr(x,2)}, {vr(y,2)}, {vr(t,2)} op_sel:[1,1,0] op_sel_hi:[1,0,1] neg_lo:[0,1,0]")


def mov2(d, x):
    return f"v_mov_b32 v{d}, v{x}\nv_mov_b32 v{d+1}, v{x+1}"


def Wp(e): return Z1 + 2 * (e - 1)


def pack(neg_im):
    ng = "-" if neg_im else ""
    for i in range(8):
        a(f"v_cvt_pk_bf16_f32 v{PK+i}, v{V+4*i}, v{V+4*i+2}")
        a(f"v_cvt_pk_bf16_f32 v{PK+8+i}, {ng}v{V+4*i+1}, {ng}v{V+4*i+3}")


def transpose_mfmas():
    L = []
    for h in range(2):
        for q0 in range(4):
            for part in range(2):
                d = DT + 8 * q0 + 4 * part
                L.append(f"v_mfma_f32_16x16x32_bf16 {vr(d,4)}, {vr(PK+8*part+4*h,4)}, {vr(SEL+4*(2*q0+h),4)}, {'0' if h == 0 else vr(d,4)}")
    return L


def frags(dst):
    for q0 in range(4):
        for i in range(4):
            a(f"v_cvt_pk_bf16_f32 v{dst+4*q0+i}, v{DT+8*q0+2*i}, v{DT+8*q0+2*i+1}")


def contract(t):
    return [f"v_mfma_f32_16x16x32_bf16 {vr(KD+4*t,4)}, {vr(HIF+4*ks,4)}, {vr(LOF+4*ks,4)}, {'0' if ks == 0 else vr(KD+4*t,4)}" for ks in range(4)]


a(f"v_mov_b32 v{V}, 1.0")
a(f"v_mov_b32 v{V+1}, 0")
a(mov2(V + 2, Z8))
a(pcmul(V + 4, Z8, Z8))
a(pcmul(Wp(2), Z1, Z1))
for j in range(3, 16):
    a(pcmul(V + 2 * j, V + 2 * (j - 2), V + 4))
    if j <= 7:
        a(pcmul(Wp(j), Wp(j - 2), Wp(2)))
a(pcmul(Yn, Y, Z128))
pack(True)
t0 = []
for i, yy in enumerate((Y, Yn)):
    t0.append(mov2(V + 16 * i, yy))
    t0 += [cmul(V + 16 * i + 2 * e, yy, Wp(e)) for e in range(1, 8)]
merge(transpose_mfmas(), t0)
pack(False)
frags(LOF)
t1 = [cmul(V + 0, Yn, Z128), cmul(V + 8, V + 0, Z128), cmul(V + 16, V + 8, Z128)]
t1 += [cmul(V + 2 * e, V + 0, Wp(2 * e)) for e in range(1, 4)]
t1 += [cmul(V + 20, V + 16, Z128)]
t1 += [cmul(V + 8 + 2 * e, V + 8, Wp(2 * e)) for e in range(1, 4)]
t1 += [cmul(V + 24, V + 20, Z128), cmul(V + 18, V + 16, Wp(4)), cmul(V + 28, V + 24, Z128), cmul(V + 22, V + 20, Wp(4)),
       cmul(Yn, V + 28, Z128), cmul(V + 26, V + 24, Wp(4)), cmul(V + 30, V + 28, Wp(4))]
merge(transpose_mfmas(), t1)
pack(False)
frags(HIF)
t2 = [mov2(V, Yn), cmul(Y, Z128, Z128), cmul(V + 2, Yn, Z128)]
t2 += [cmul(V + 2 * i, V + 2 * (i - 2), Y) for i in range(2, 10)]
merge(contract(0) + transpose_mfmas(), t2)
pack(False)
frags(HIF)
merge(contract(1) + transpose_mfmas(), [f"ds_write_b32 v{vTK0}, v{KD+rho} offset:{8*rho}" for rho in range(4)], first=2, every=3)
for rho in range(4):
    a(f"ds_write_b32 v{vTKb if rho >> 1 else vTKa}, v{KD+4+rho} offset:{8*(rho&1)}")
frags(HIF)
emit(contract(2))
ON, SM, SQ, RW, UP, SF0 = 128, 132, 136, 140, 148, 64
for i in range(4):
    a(f"v_mov_b32 v{ON+i}, 0x3f803f80")
a("v_mov_b32 v14, 1")
a(f"s_lshl_b32 s{sT0}, s{sCW}, 2")
a(f"v_add_u32 v12, s{sT0}, v2")
for rho in range(4):
    a(f"ds_write_b32 v{vTK2}, v{KD+8+rho} offset:{128*rho}")
lds_arrive(vPS, 4, 14)
stamp("c")
a(f"s_setprio {PSTAT}")
lds_wait(12, 20, 1, 13)
stamp("c")
for ks in range(16):
    a(f"ds_read_b128 {vr(SF0+4*ks,4)}, v{vSA+(ks&3)} offset:{256*(ks>>2)}")
for ks in range(16):
    if ks % 4 == 0:
        a(f"s_waitcnt lgkmcnt({12-ks})")
    a(f"v_mfma_f32_16x16x32_bf16 {vr(SM,4)}, {vr(SF0+4*ks,4)}, {vr(ON,4)}, {'0' if ks == 0 else vr(SM,4)}")
    a(f"v_mfma_f32_16x16x32_bf16 {vr(SQ,4)}, {vr(SF0+4*ks,4)}, {vr(SF0+4*ks,4)}, {'0' if ks == 0 else vr(SQ,4)}")
for inst in range(2):
    for hh in range(2):
        a(f"ds_read_b64_tr_b16 {vr(RW+4*inst+2*hh,2)}, v{vXT+2*inst+hh}")
a(f"buffer_load_dword v{vTGc}, v15, s[{S_DBG}:{S_DBG+3}], 0 offen sc1")
a(f"v_and_b32 v10, 3, v{vM}")
a(f"v_lshl_add_u32 v11, v{vM}, 3, s76")
for r in range(1, 4):
    a(f"v_cmp_eq_u32 vcc, {r}, v10")
    a(f"v_cndmask_b32 v{SM}, v{SM}, v{SM+r}, vcc")
    a(f"v_cndmask_b32 v{SQ}, v{SQ}, v{SQ+r}, vcc")
a(f"v_mul_f32 v{SM}, 0x3b000000, v{SM}")
a(f"v_mul_f32 v{SQ}, 0x3b000000, v{SQ}")
a(f"v_fma_f32 v{SQ}, -v{SM}, v{SM}, v{SQ}")
a(f"v_max_f32 v{SQ}, 0, v{SQ}")
a(f"v_cvt_pk_bf16_f32 v{SM}, v{SM}, v{SQ}")
a(f"v_and_b32 v{SQ}, 0xffff0000, v{SM}")
a(f"v_add_f32 v{SQ}, 0x3727c5ac, v{SQ}")
a(f"v_cvt_pk_bf16_f32 v{SQ}, v{SQ}, v{SQ}")
a(f"v_lshlrev_b32 v{SQ}, 16, v{SQ}")
a(f"v_sqrt_f32 v{SQ}, v{SQ}")
a(f"v_lshlrev_b32 v{SM}, 16, v{SM}")
a(f"v_cvt_pk_bf16_f32 v{SQ}, v{SQ}, v{SQ}")
a(f"v_lshlrev_b32 v{SQ}, 16, v{SQ}")
a(f"v_rcp_f32 v{SM+2}, v{SQ}")
a(f"v_lshrrev_b32 v10, 2, v{vM}")
a(f"v_cmp_eq_u32 vcc, v10, v{vQ}")
a(f"v_mul_f32 v{SM+3}, v{SM}, v{SM+2}")
a("s_and_saveexec_b64 s[72:73], vcc")
a(f"ds_write_b64 v11, {vr(SM+2,2)}")
lds_arrive(2, 3, 14)
for k in range(4):
    a(f"ds_read_b128 {vr(SF0+4*k,4)}, v{vSTA} offset:{16*k}")
a("s_waitcnt lgkmcnt(6)")
for i in range(8):
    a(f"v_lshlrev_b32 v{UP+2*i}, 16, v{RW+i}")
    a(f"v_and_b32 v{UP+1+2*i}, 0xffff0000, v{RW+i}")
a("s_waitcnt lgkmcnt(0)")
for inst in range(2):
    for i in range(8):
        a(f"v_fma_f32 v{UP+8*inst+i}, v{UP+8*inst+i}, v{SF0+2*i}, -v{SF0+1+2*i}")
    for i in range(4 * inst, 4 * inst + 4):
        a(f"v_cvt_pk_bf16_f32 v{RW+i}, v{UP+2*i}, v{UP+1+2*i}")
    a(f"buffer_store_dwordx4 {vr(RW+4*inst,4)}, v{vXS}, s[{S_WS}:{S_WS+3}], s{79 if inst else 70} offen sc1")
a(f"s_setprio {PCONV}")
stamp("c")
a(f"v_lshlrev_b32 v10, 3, v{vQ}")
a(f"v_sub_u32 v10, v{vM}, v10")
a(f"s_mul_i32 s{sT0}, s{sP}, 100")
a(f"s_add_u32 s{sT0}, s{sT0}, 16")
a(f"v_add_u32 v10, s{sT0}, v10")
a("v_mov_b32 v12, 0xffff")
a("v_mov_b32 v13, 0xffff0000")
for d in range(4):
    a(f"v_cmp_le_i32 vcc, {2*d}, v10")
    a(f"v_cmp_le_i32 s[72:73], {2*d+1}, v10")
    a(f"v_cndmask_b32 v{MK+d}, 0, v12, vcc")
    a("v_cndmask_b32 v11, 0, v13, s[72:73]")
    a(f"v_or_b32 v{MK+d}, v{MK+d}, v11")
a(f"v_and_b32 v10, 3, v{vM}")
a(f"v_mul_u32_u24 v10, {KCS}, v10")
a(f"v_lshrrev_b32 v11, 2, v{vM}")
a("v_lshlrev_b32 v11, 3, v11")
a("v_sub_u32 v10, v10, v11")
a(f"v_lshl_add_u32 v10, v{vQ}, 4, v10")
a(f"s_lshl_b32 s{sT0}, s{sP}, 8")
a(f"s_sub_u32 s{sT0}, s{sCB}, s{sT0}")
a(f"s_add_u32 s{sT1}, s{sT0}, 24")
a(f"v_add_u32 v{vKA}, s{sT1}, v10")
a(f"v_lshlrev_b32 v10, 5, v{vM}")
a(f"v_lshl_add_u32 v10, v{vQ}, 4, v10")
a(f"s_add_u32 s{sT1}, s{sT0}, {C_UL}")
a(f"v_add_u32 v{vUA}, s{sT1}, v10")
a(f"s_add_u32 s{sT0}, s{sCB}, {C_UL}")
a(f"v_add_u32 v10, s{sT0}, v1")
for i in range(4):
    a(f"v_mov_b32 v{16+i}, 0")
a("v_cmp_gt_u32 vcc, 30, v0")
a("s_and_saveexec_b64 s[72:73], vcc")
a("ds_write_b128 v10, v[16:19]")
a("s_mov_b64 exec, -1")
a(f"s_lshl_b32 s{sT0}, s{sP}, 6")
a(f"v_add_u32 v12, s{sT0}, v0")
a(f"v_lshl_add_u32 v{vKW}, v12, 5, s{sCB}")
a("v_lshlrev_b32 v13, 4, v12")
a("v_sub_u32 v13, 0x7ff, v13")
a("v_cvt_f32_u32 v16, v13")
a(f"s_add_u32 s{sT1}, s{sCB}, {C_TK}")
a(f"v_lshl_add_u32 v17, v13, 3, s{sT1}")
a(f"s_add_u32 s{sT0}, s{sT1}, {8*127}")
a(f"v_mov_b32 v18, s{sT0}")
a(f"s_sub_u32 s{sT0}, s{sT1}, {8*0x4280}")
for s in range(0, 19, 2):
    a(f"v_subrev_f32 v10, {float(s)}, v16" if s else "v_mov_b32 v10, v16")
    a(f"v_subrev_f32 v11, {float(s+1)}, v16")
    a("v_cvt_pk_bf16_f32 v10, v10, v11")
    for k in range(2):
        if s + k > 18:
            continue
        a("v_and_b32 v11, 0x7fff, v10" if k == 0 else "v_bfe_u32 v11, v10, 16, 15")
        a(f"v_lshl_add_u32 v11, v11, 3, s{sT0}")
        a(f"v_subrev_u32 v12, {8*(s+k)}, v17")
        a(f"v_med3_i32 v12, v12, s{sT1}, v18")
        a(f"v_max_i32 v{GA+s+k}, v11, v12")
a("s_waitcnt vmcnt(0)")
get_tag(vTGc, 15)
publish("s71", 14, 15)
stamp("c")
a(f"s_lshl_b32 s{sT0}, s{sXCD}, 11")
a(f"s_add_u32 s74, s{sT0}, {XF}")
a(f"s_lshr_b32 s{sT0}, s{sCH}, 2")
a(f"s_lshl_b32 s{sT0}, s{sT0}, 14")
a(f"s_and_b32 s{sT1}, s{sCH}, 2")
a(f"s_lshl_b32 s{sT1}, s{sT1}, 4")
a(f"s_add_u32 s{sT0}, s{sT0}, s{sT1}")
a(f"s_lshl_b32 s{sT1}, s{sCW}, 12")
a(f"s_add_u32 s{sT0}, s{sT0}, s{sT1}")
a(f"s_add_u32 s75, s{sT0}, {XNT}")
a(f"s_lshl_b32 s{sT1}, s{sCW}, 9")
a(f"s_add_u32 s74, s74, s{sT1}")
a("v_and_b32 v7, 0x1ff, v1")
a("v_lshrrev_b32 v10, 1, v0")
a("v_and_b32 v11, 1, v0")
a("v_lshlrev_b32 v9, 6, v10")
a("v_lshl_add_u32 v9, v11, 4, v9")
a(f"v_mul_u32_u24 v11, {CSTR}, v11")
a("v_lshl_add_u32 v10, v10, 4, v11")
a(f"s_lshl_b32 s{sT0}, s{sCW}, 10")
a(f"s_add_u32 s{sT0}, s{sT0}, {L_CONV+C_UL+480}")
a(f"v_add_u32 v8, s{sT0}, v10")
GV, KP = 64, 112
lds_wait(vPS, 4, 2, 13)
for s in range(19):
    a(f"ds_read_b64 {vr(GV+2*s,2)}, v{GA+s}")
a("s_waitcnt lgkmcnt(0)")
for s in range(19):
    a(f"v_add_f32 v{GV+2*s}, v{GV+2*s}, v{GV+2*s+1}")
for kap in range(4):
    for d in range(8):
        s0 = 3 - kap + 2 * d
        a(f"v_cvt_pk_bf16_f32 v{KP+8*kap+d}, v{GV+2*s0}, v{GV+2*(s0+1)}")
def k_copies():
    for kap in range(4):
        for hq in range(2):
            a(f"ds_write_b128 v{vKW}, {vr(KP+8*kap+4*hq,4)} offset:{kap*KCS+16*hq}")
LATEW = opt("latew", 1)
if not LATEW:
    k_copies()
stamp("c")
poll_flags(7, "s74", 13, sleep=4)
for i in range(2):
    a(f"buffer_load_dwordx4 {vr(16+4*i,4)}, v9, s[{S_WS}:{S_WS+3}], s75 offen offset:{2048*i} sc1")
a(f"s_lshl_b32 s{sT0}, s{sCW}, 2")
a(f"v_add_u32 v12, s{sT0}, v2")
a("v_mov_b32 v14, 1")
stamp("c")
srd(44, 34, 512 * 1376 * 2)
a(f"s_lshl_b32 s{sT0}, s{sSLOT}, 2")
a(f"s_add_u32 s{sT0}, s{sT0}, s{sCW}")
a(f"s_mul_i32 s{sT0}, s{sT0}, 43")
a(f"s_lshr_b32 s{sT0}, s{sT0}, 2")
a(f"s_lshl_b32 s{sT0}, s{sT0}, 10")
a(f"s_and_b32 s{sT1}, s{sXCD}, 1")
a(f"s_lshl_b32 s{sT1}, s{sT1}, 9")
a(f"s_add_u32 s78, s{sT0}, s{sT1}")
a("v_lshrrev_b32 v10, 5, v0")
a("v_and_b32 v11, 0x1f0, v1")
a("v_lshl_add_u32 v10, v10, 10, v11")
lds_wait(2, 30, 4, 13)
NT = 6 if opt("touch", 1) else 0
for k in range(NT):
    if k and k % 2 == 0:
        a("s_add_u32 s78, s78, 4096")
    a(f"buffer_load_dwordx4 {vr(PFD,4)}, v10, s[44:47], s78 offen offset:{2048*(k%2)}")
if LATEW:
    lds_wait(2, 1, 4, 13)
    k_copies()
a(f"s_waitcnt vmcnt({NT})")
for i in range(2):
    a(f"ds_write_b128 v8, {vr(16+4*i,4)} offset:{512*i}")
lds_arrive(2, 12, 14)
a(f"s_setprio {PCM}")
lds_wait(2, 12, 4, 13)
stamp("c")
if opt("gate", 1):
    lds_wait(12, 16, 1, 13)
stamp("c")
CA = 16
FR = [48, 112]


def conv_reads(rho, b):
    f = FR[b]
    L = []
    for s in range(8):
        L.append(f"ds_read_b128 {vr(f+32+4*s,4)}, v{vUA} offset:{512*s+64*(7-rho)}")
        for hh in range(2):
            L.append(f"ds_read_b64 {vr(f+4*s+2*hh,2)}, v{vKA} offset:{64*(63-8*s-rho)+8*hh}")
    return L


emit(conv_reads(0, 0))
for rho in range(4):
    f = FR[rho & 1]
    a("s_waitcnt lgkmcnt(0)")
    if rho == 0:
        for d in range(4):
            a(f"v_and_b32 v{f+d}, v{f+d}, v{MK+d}")
    mf = []
    seen = set()
    for s in range(8):
        for w in range(8 - s):
            t = s + w
            c = "0" if (rho == 0 and t not in seen) else vr(CA + 4 * t, 4)
            seen.add(t)
            mf.append(f"v_mfma_f32_16x16x32_bf16 {vr(CA+4*t,4)}, {vr(f+4*s,4)}, {vr(f+32+4*w,4)}, {c}")
    if rho < 3:
        merge(mf, conv_reads(rho + 1, (rho + 1) & 1))
    else:
        tail = [f"s_add_u32 s{sT0}, s{sCB}, {C_TK}", f"s_lshl_b32 s{sT1}, s{sP}, 12", f"s_add_u32 s{sT2}, s{sT0}, s{sT1}",
                f"v_add_u32 v12, s{sT2}, v1", f"s_xor_b32 s{sT1}, s{sT1}, 4096", f"s_add_u32 s{sT2}, s{sT0}, s{sT1}",
                f"v_add_u32 v11, s{sT2}, v1",
                f"v_lshlrev_b32 v10, 5, v{vM}", f"v_lshl_add_u32 v10, v{vQ}, 3, v10",
                f"s_lshl_b32 s{sT0}, s{sP}, 11", f"s_add_u32 s{sT0}, s{sT0}, s{sCB}", f"s_add_u32 s{sT0}, s{sT0}, {C_UL+480}",
                f"v_add_u32 v10, s{sT0}, v10"]
        tail += [f"ds_read_b64 {vr(48+2*i,2)}, v10 offset:{512*i}" for i in range(4)]
        tail += [f"s_lshl_b32 s{sT0}, s{sCH}, 12", f"s_lshl_b32 s{sT1}, s{sP}, 11", f"s_add_u32 s{sT0}, s{sT0}, s{sT1}",
                 f"s_add_u32 s70, s{sT0}, {ST}",
                 f"s_lshl_b32 s{sT0}, s{sXCD}, 1", f"s_add_u32 s{sT0}, s{sT0}, s{sP}", f"s_lshl_b32 s{sT0}, s{sT0}, 10",
                 f"s_and_b32 s{sT1}, s{sCH}, 63", f"s_lshl_b32 s{sT1}, s{sT1}, 4", f"s_add_u32 s{sT0}, s{sT0}, s{sT1}",
                 f"s_add_u32 s71, s{sT0}, {SF}", "v_mov_b32 v14, 1"]
        merge(mf, tail)
stamp("c")
a(f"s_cmp_eq_u32 s{sP}, 0")
a("s_cbranch_scc0 L_xp1")
for i in range(4):
    a(f"ds_write_b128 v12, {vr(CA+16+4*i,4)} offset:{1024*i}")
lds_arrive(vPS, 6, 14)
a("s_branch L_xdone")
a("L_xp1:")
a("s_nop 7")
for i in range(4):
    a(f"ds_write_b128 v12, {vr(CA+4*i,4)} offset:{1024*i}")
lds_arrive(vPS, 6, 14)
for i in range(16):
    a(f"v_mov_b32 v{CA+i}, v{CA+16+i}")
a("L_xdone:")
a("s_waitcnt lgkmcnt(5)")
for i in range(4):
    for hf in range(2):
        a(f"v_lshlrev_b32 v{72+4*i+2*hf}, 16, v{48+2*i+hf}")
        a(f"v_and_b32 v{72+4*i+2*hf+1}, 0xffff0000, v{48+2*i+hf}")
for i in range(16):
    a(f"v_fma_f32 v{CA+i}, v{72+i}, s{sDS}, v{CA+i}")
lds_wait(vPS, 6, 2, 13)
for i in range(4):
    a(f"ds_read_b128 {vr(48+4*i,4)}, v11 offset:{1024*i}")
for pr in range(2):
    a(f"s_waitcnt lgkmcnt({2-2*pr})")
    for i in range(8 * pr, 8 * pr + 8):
        a(f"v_add_f32 v{CA+i}, v{CA+i}, v{48+i}")
    for i in range(4 * pr, 4 * pr + 4):
        a(f"v_cvt_pk_bf16_f32 v{64+i}, v{CA+2*i}, v{CA+2*i+1}")
    for hf in range(2):
        a(f"v_permlane16_swap_b32 v{64+4*pr+hf}, v{64+4*pr+2+hf}")
    a(f"buffer_store_dwordx4 {vr(64+4*pr,4)}, v1, s[{S_WS}:{S_WS+3}], s70 offen offset:{1024*pr} sc1")
a("s_waitcnt vmcnt(0)")
publish("s71", 14, 15)
stamp("c")
dump_stamps("c")
a("L_end:")
a("s_endpgm")
a("L_code_end:")
a.raw('.section .rodata,"a"\n.p2align 6')
a.raw(kernel_desc(KN, 256, 102, 256))
open(OUT, "w").write(a.text())
print("nops inserted:", a.nnop, "instrs:", sum(1 for i in a.items if not isinstance(i, str)), "lds", LDS_BYTES)
```

```python
import sys
from asmlib import *

DIAG = "--diag" in sys.argv
NOCONV = "--noconv" in sys.argv
CYC = "--cyc" in sys.argv
MAP48 = "--map48" in sys.argv
OUT = [x for x in sys.argv[1:] if not x.startswith("--")][0]


def opt(name, default):
    for x in sys.argv:
        if x.startswith(f"--{name}="):
            return int(x.split("=")[1])
    return default


PCONV, PSTAT, PG1, PEPI, PCM = opt("pconv", 0), opt("pstat", 2), opt("pg1", 1), opt("pepi", 3), opt("pcm", 2)

XF, SF, HF = 0x1000, 0x5000, 0x9000
XNT, ST, HB = 0x20000, 0x220000, 0x420000
STAMP, WSB, OOB = 0x1000000, 0x10000000, 0x40000000
L_RING, RINGB = 65536, 9216
L_CONV = L_RING + 4 * RINGB
KCS = 4160
C_TK = 4 * KCS
C_UL = C_TK + 8192
CSTR = C_UL + 4608
L_SYNC = L_CONV + 2 * CSTR
L_STAT = L_SYNC + 256
LDS_BYTES = L_STAT + 512
W1RS = 2752
SPIN = 1 << 18

a = Asm()
sWAVE, sI1, sJ1, sI2, sJ2, sTAG = 3, 4, 5, 6, 7, 8
sG, sK, sRING, sGH, sPEND, sQ = 10, 11, 12, 13, 14, 15
S_X, S_W1, S_W2, S_OUT, S_WS, S_DBG = 44, 48, 52, 56, 60, 64
sT0, sT1, sT2, sT3 = 42, 43, 68, 69
sKS = 70
sXCD, sSLOT, sSPIN = 81, 82, 83
sHF, sHH = 0, 1
STAMP0 = 84
nstamp = {"g": 0, "c": 0}


def srd_l(d, base, nbytes):
    return [f"s_mov_b32 s{d}, s{base}", f"s_and_b32 s{d+1}, s{base+1}, 0xffff",
            f"s_mov_b32 s{d+2}, {nbytes}", f"s_mov_b32 s{d+3}, 0x00020000"]


def emit(L):
    for t in L:
        a(t)


def srd(d, base, nbytes):
    emit(srd_l(d, base, nbytes))


WST = "--wst" in sys.argv
_phase = [0]
def fst():
    if WST:
        _phase[0] = 1
        stamp("g", True)
def stamp(role, fine=False):
    if not DIAG:
        return
    if WST and role == "g" and not fine and nstamp["g"] >= 1 and not _phase[0]:
        return
    k = nstamp[role]; nstamp[role] += 1
    assert k < 16
    a("s_memtime s[100:101]" if CYC else "s_memrealtime s[100:101]")
    a("s_waitcnt lgkmcnt(0)")
    a(f"s_mov_b32 s{STAMP0+k}, s100")


def dump_stamps(role):
    if not DIAG:
        return
    a(f"s_lshl_b32 s{sT0}, s2, 3")
    a(f"s_add_u32 s{sT0}, s{sT0}, s{sWAVE}")
    a(f"s_lshl_b32 s{sT0}, s{sT0}, 6")
    a(f"s_add_u32 s{sT0}, s{sT0}, {STAMP}")
    a("v_mov_b32 v14, 0")
    for k in range(nstamp[role]):
        a(f"v_mov_b32 v15, s{STAMP0+k}")
        a(f"buffer_store_dword v15, v14, s[{S_WS}:{S_WS+3}], s{sT0} offen offset:{4*k}")
    a("s_waitcnt vmcnt(0)")


class VM:
    def __init__(self):
        self.q = []
    def issue(self, tag, n=1):
        self.q += [tag] * n
    def wait(self, tag):
        if tag not in self.q:
            return
        idx = max(i for i, t in enumerate(self.q) if t == tag)
        a(f"s_waitcnt vmcnt({min(len(self.q) - 1 - idx, 63)})")
        self.q = self.q[idx + 1:]
    def drain(self):
        self.q = []


def lds_arrive(vsync, word, vone):
    a("s_mov_b64 exec, 1")
    a(f"ds_add_u32 v{vsync}, v{vone} offset:{4*word}")
    a("s_mov_b64 exec, -1")


def lds_wait(vsync, word, n, vtmp):
    lp, dn = a.label("LW"), a.label("LWD")
    a(f"s_mov_b32 s{sSPIN}, 0")
    a(f"{lp}:")
    a(f"ds_read_b32 v{vtmp}, v{vsync} offset:{4*word}")
    a(f"s_add_u32 s{sSPIN}, s{sSPIN}, 1")
    a("s_waitcnt lgkmcnt(0)")
    a(f"v_readfirstlane_b32 s{sT0}, v{vtmp}")
    a(f"s_cmp_gt_u32 s{sSPIN}, {SPIN*8}")
    a(f"s_cbranch_scc1 {dn}")
    a(f"s_cmp_ge_u32 s{sT0}, {n}")
    a(f"s_cbranch_scc1 {dn}")
    a(f"s_sleep {opt('lsleep', 1)}")
    a(f"s_branch {lp}")
    a(f"{dn}:")


def poll_flags(voff, soff, vtmp, sleep=1):
    lp, dn = a.label("PF"), a.label("PFD")
    a(f"s_mov_b32 s{sSPIN}, 0")
    a(f"{lp}:")
    a(f"buffer_load_dword v{vtmp}, v{voff}, s[{S_WS}:{S_WS+3}], {soff} offen sc1")
    a(f"s_add_u32 s{sSPIN}, s{sSPIN}, 1")
    a("s_waitcnt vmcnt(0)")
    a(f"v_cmp_ne_u32 vcc, s{sTAG}, v{vtmp}")
    a(f"s_cmp_gt_u32 s{sSPIN}, {SPIN}")
    a(f"s_cbranch_scc1 {dn}")
    a("s_cmp_eq_u64 vcc, 0")
    a(f"s_cbranch_scc1 {dn}")
    a(f"s_sleep {sleep}")
    a(f"s_branch {lp}")
    a(f"{dn}:")


def get_tag(vtmp, vzero):
    lp, dn = a.label("GT"), a.label("GTD")
    a(f"s_mov_b32 s{sSPIN}, 0")
    a(f"{lp}:")
    a(f"v_readfirstlane_b32 s{sTAG}, v{vtmp}")
    a(f"s_add_u32 s{sSPIN}, s{sSPIN}, 1")
    a(f"s_cmp_gt_u32 s{sSPIN}, {SPIN}")
    a(f"s_cbranch_scc1 {dn}")
    a(f"s_cmp_lg_u32 s{sTAG}, 0")
    a(f"s_cbranch_scc1 {dn}")
    a("s_sleep 1")
    a(f"buffer_load_dword v{vtmp}, v{vzero}, s[{S_DBG}:{S_DBG+3}], 0 offen sc1")
    a("s_waitcnt vmcnt(0)")
    a(f"s_branch {lp}")
    a(f"{dn}:")


def publish(soff, vtmp, vzero):
    a(f"v_mov_b32 v{vtmp}, s{sTAG}")
    a("s_mov_b64 exec, 1")
    a(f"buffer_store_dword v{vtmp}, v{vzero}, s[{S_WS}:{S_WS+3}], {soff} offen sc1")
    a("s_mov_b64 exec, -1")


def merge(main, fill, first=0, every=1):
    fill = list(fill)
    for i, m in enumerate(main):
        a(m)
        if i >= first and (i - first) % every == 0 and fill:
            a(fill.pop(0))
    for f in fill:
        a(f)


def silu_pk(src, tmp, n, sneg, drip=lambda k: None):
    for i in range(0, n, 2):
        a(f"v_pk_mul_f32 {vr(tmp+i,2)}, {vr(src+i,2)}, s[{sneg}:{sneg+1}]")
    for i in range(n):
        a(f"v_exp_f32 v{tmp+i}, v{tmp+i}")
    drip(2)
    for i in range(0, n, 2):
        a(f"v_pk_add_f32 {vr(tmp+i,2)}, {vr(tmp+i,2)}, 1.0 op_sel_hi:[1,0]")
    for i in range(n):
        a(f"v_rcp_f32 v{tmp+i}, v{tmp+i}")
    for i in range(0, n, 2):
        a(f"v_pk_mul_f32 {vr(src+i,2)}, {vr(src+i,2)}, {vr(tmp+i,2)}")


def klist_code(dst, count, srot, t0, stbl, t1):
    L = []
    for n in range(count):
        L += [f"s_add_u32 s{t0}, s{srot}, {n}", f"s_and_b32 s{t0}, s{t0}, 7", f"s_mul_i32 s{t0}, s{t0}, 43",
              f"s_add_u32 s{t1}, s{t0}, 35", f"s_lshr_b32 s{t0}, s{t0}, 3", f"s_lshr_b32 s{t1}, s{t1}, 3",
              f"s_add_u32 s{t0}, s{t0}, s{stbl}", f"s_min_u32 s{dst+n}, s{t0}, s{t1}"]
    return L


a.raw(open("recurrent_scan__ssm_conv_s4d__dense_activation_silu__prompt.s.ref").read().split("; Override")[0].rstrip())
a.raw(f"; @launch grid=(256,1,1) block=(512,1,1) lds={LDS_BYTES}")
a.raw('.amdgcn_target "amdgcn-amd-amdhsa--gfx950"')
a.raw(".text")
a.raw(f".globl {KN}\n.p2align 8\n.type {KN},@function\n{KN}:")
a("s_cmp_ge_u32 s2, 256")
a("s_cbranch_scc1 L_end")
a("s_load_dwordx16 s[16:31], s[0:1], 0")
a("s_load_dwordx8 s[32:39], s[0:1], 64")
a("s_load_dwordx2 s[40:41], s[0:1], 96")
if DIAG:
    a("s_memtime s[100:101]" if CYC else "s_memrealtime s[100:101]")
    nstamp["g"] = nstamp["c"] = 1
a("s_getpc_b64 s[64:65]")
a("L_pc:")
a("s_and_b32 s65, s65, 0xffff")
a("s_mov_b32 s66, L_code_end-L_pc")
a("s_mov_b32 s67, 0x00020000")
a("v_lshlrev_b32 v1, 7, v0")
a("buffer_load_dword v254, v1, s[64:67], 0 offen")
a("v_lshrrev_b32 v1, 6, v0")
a("v_and_b32 v0, 63, v0")
a(f"v_readfirstlane_b32 s{sWAVE}, v1")
a("v_lshlrev_b32 v1, 4, v0")
a(f"s_and_b32 s{sXCD}, s2, 7")
a(f"s_lshr_b32 s{sSLOT}, s2, 3")
if MAP48:
    a(f"s_lshl_b32 s{sT0}, s{sXCD}, 2")
    a(f"s_and_b32 s{sI1}, s{sSLOT}, 3")
    a(f"s_add_u32 s{sI1}, s{sI1}, s{sT0}")
    a(f"s_lshr_b32 s{sJ1}, s{sSLOT}, 2")
else:
    a(f"s_lshr_b32 s{sT0}, s{sXCD}, 1")
    a(f"s_lshl_b32 s{sT0}, s{sT0}, 3")
    a(f"s_and_b32 s{sI1}, s{sSLOT}, 7")
    a(f"s_add_u32 s{sI1}, s{sI1}, s{sT0}")
    a(f"s_and_b32 s{sT0}, s{sXCD}, 1")
    a(f"s_lshl_b32 s{sT0}, s{sT0}, 2")
    a(f"s_lshr_b32 s{sJ1}, s{sSLOT}, 3")
    a(f"s_add_u32 s{sJ1}, s{sJ1}, s{sT0}")
a(f"v_mov_b32 v2, {L_SYNC}")
a(f"s_cmp_ge_u32 s{sWAVE}, 4")
a("s_cbranch_scc1 L_conv")

vL16, vSYNC = 1, 2
vX, vD0, vD1, vD2, vA0, vT0, vT1, vT2, vW2, vB0, vB1 = 3, 4, 5, 6, 7, 8, 9, 10, 11, 12, 13
ACC1, CS, F0, F1, TMP, WR = 16, 64, 76, 104, 132, 160
FB = [F0, F1]
ONES, vA, vFA, vFB = TMP, TMP + 4, TMP + 5, TMP + 6
vTG = TMP + 27
vm = VM()
vm.issue("PF")
a("v_lshrrev_b32 v14, 4, v0")
a("v_and_b32 v14, 2, v14")
a("v_xor_b32 v14, v14, v0")
a("v_and_b32 v14, 3, v14")
a("v_lshrrev_b32 v15, 2, v0")
a(f"v_mul_u32_u24 v{vD0}, {W1RS}, v15")
a(f"v_lshl_add_u32 v{vD0}, v14, 4, v{vD0}")
a(f"v_add_u32 v{vD1}, {16*W1RS-1024}, v{vD0}")
a("v_bfe_u32 v14, v0, 1, 2")
a("v_lshrrev_b32 v15, 5, v0")
a("v_lshl_add_u32 v14, v15, 2, v14")
a("v_bfe_u32 v15, v0, 3, 2")
a("v_lshl_add_u32 v14, v15, 3, v14")
a(f"v_mul_u32_u24 v14, {W1RS}, v14")
a("v_and_b32 v15, 1, v0")
a(f"v_lshl_add_u32 v{vD2}, v15, 4, v14")
a(f"s_mul_i32 s{sT0}, s{sJ1}, 43")
a(f"s_add_u32 s{sT1}, s{sT0}, 35")
a(f"s_lshr_b32 s{sT0}, s{sT0}, 3")
a(f"s_lshr_b32 s{sT1}, s{sT1}, 3")
a(f"s_sub_u32 s{sT1}, s{sT1}, s{sT0}")
a(f"s_lshl_b32 s{sT2}, s{sWAVE}, 3")
a(f"s_lshr_b32 s{sT2}, 0x05030200, s{sT2}")
a(f"s_and_b32 s{sT2}, s{sT2}, 7")
a(f"s_min_u32 s{sT2}, s{sT2}, s{sT1}")
a(f"s_add_u32 s{sHF}, s{sT0}, s{sT2}")
a(f"s_lshl_b32 s{sG}, s{sHF}, 6")
a(f"s_lshr_b32 s{sT2}, s{sWAVE}, 1")
a(f"s_mul_i32 s{sT2}, s{sT2}, 3")
a(f"s_add_u32 s{sT2}, s{sT2}, 1")
a(f"s_add_u32 s{sHH}, s{sT0}, s{sT2}")
a(f"s_cmp_lt_u32 s{sT2}, s{sT1}")
a(f"s_cselect_b32 s9, 0, {OOB}")
a(f"s_lshl_b32 s{sGH}, s{sHH}, 1")
a(f"s_and_b32 s{sT2}, s{sWAVE}, 1")
a(f"s_add_u32 s{sGH}, s{sGH}, s{sT2}")
a(f"s_lshl_b32 s{sGH}, s{sGH}, 5")
a(f"s_add_u32 s{sGH}, s{sGH}, s9")
if MAP48:
    a(f"s_and_b32 s{sT0}, s{sSLOT}, 3")
    a(f"s_lshl_b32 s{sT0}, s{sT0}, 1")
else:
    a(f"s_and_b32 s{sT0}, s{sSLOT}, 7")
a(f"s_mul_i32 s{sK}, s{sT0}, {2*32*W1RS}")
sKX = sI2
a(f"s_lshl_b32 s{sKX}, s{sT0}, 7")
a(f"s_mul_i32 s{sRING}, s{sWAVE}, {RINGB}")
a(f"s_add_u32 s{sRING}, s{sRING}, {L_RING}")


def w1_refill(slot, tag):
    vm.issue(tag, 3)
    return [
        f"s_add_u32 m0, s{sRING}, {slot*3072}\ns_add_u32 s{sT1}, s{sG}, s{sK}\n"
        f"buffer_load_dwordx4 v{vD0}, s[{S_W1}:{S_W1+3}], s{sT1} offen lds",
        f"s_add_u32 s{sT2}, s{sGH}, s{sK}\n"
        f"buffer_load_dwordx4 v{vD1}, s[{S_W1}:{S_W1+3}], s{sT1} offen offset:1024 lds",
        f"s_add_u32 m0, s{sRING}, {slot*3072+2048}\ns_add_u32 s{sK}, s{sK}, {32*W1RS}\n"
        f"buffer_load_dwordx4 v{vD2}, s[{S_W1}:{S_W1+3}], s{sT2} offen lds\n"
        f"s_cmp_eq_u32 s{sK}, {512*W1RS}\ns_cselect_b32 s{sK}, 0, s{sK}",
    ]


a("v_and_b32 v14, 15, v0")
a(f"v_lshrrev_b32 v{vFA}, 4, v0")
a(f"v_xor_b32 v15, v14, v{vFA}")
a("v_and_b32 v15, 3, v15")
a("v_lshlrev_b32 v15, 4, v15")
a("v_lshl_add_u32 v15, v14, 10, v15")
a("v_lshrrev_b32 v14, 2, v14")
a(f"v_lshl_add_u32 v{vA0}, v14, 6, v15")
a(f"v_lshl_add_u32 v15, v{vFA}, 3, v14")
a("v_lshlrev_b32 v15, 6, v15")
a(f"v_and_b32 v{vT0}, 1, v{vFA}")
a(f"v_lshl_add_u32 v15, v{vT0}, 5, v15")
a(f"v_and_b32 v{vT0}, 3, v0")
a(f"v_lshl_add_u32 v15, v{vT0}, 3, v15")
a(f"v_add_u32 v{vT0}, s{sRING}, v15")
a(f"v_xor_b32 v{vT1}, 32, v{vT0}")
a(f"v_lshlrev_b32 v{vT2}, 3, v0")
a(f"v_add_u32 v{vT2}, s{sRING}, v{vT2}")
for i in range(4):
    a(f"v_mov_b32 v{ONES+i}, 0x3f803f80")
sXR, sXB = 72, 73
a(f"s_lshl_b32 s{sQ}, s{sWAVE}, 14")
a(f"s_lshl_b32 s{sXB}, s{sI1}, 16")
a(f"s_lshl_b32 s{sXR}, s{sJ1}, 12")
XO = WR
for k in range(4):
    a(f"s_add_u32 s{sT1}, s{sJ1}, {k}")
    a(f"s_and_b32 s{sT1}, s{sT1}, 3")
    a(f"s_lshl_b32 s{sT3}, s{sT1}, 6")
    a(f"v_xor_b32 v{XO+4*k}, s{sT3}, v{vL16}")
    for r in range(1, 4):
        a(f"v_xor_b32 v{XO+4*k+r}, {16*r}, v{XO+4*k}")
    a(f"s_lshl_b32 s{sT1}, s{sT1}, 12")
    a(f"s_add_u32 s{74+k}, s{sT1}, s{sQ}")
a("s_mov_b32 s46, 2097152")
a("s_mov_b32 s47, 0x00020000")
a(f"s_mov_b32 s50, {512*1376*2}")
a("s_mov_b32 s51, 0x00020000")
a("s_waitcnt lgkmcnt(0)")
if DIAG:
    a(f"s_mov_b32 s{STAMP0}, s100")
a("s_barrier")
a("s_mov_b32 s44, s16")
a("s_and_b32 s45, s17, 0xffff")
a("s_mov_b32 s48, s32")
a("s_and_b32 s49, s33, 0xffff")
W1FIRST = opt("w1first", 0)
def x_group(k):
    a(f"s_mov_b32 m0, s{74+k}")
    a(f"s_add_u32 s{sT1}, s{74+k}, s{sXB}")
    for r in range(4):
        a(f"buffer_load_dwordx4 v{XO+4*k+r}, s[{S_X}:{S_X+3}], s{sT1} offen offset:{1024*r} lds")
    vm.issue("X", 4)
if W1FIRST == 1:
    for k in range(4):
        x_group(k)
        if k < 3:
            emit(w1_refill(k, f"W{k}"))
elif W1FIRST == 3:
    for sl in range(2):
        emit(w1_refill(sl, f"W{sl}"))
    for k in range(4):
        x_group(k)
    emit(w1_refill(2, "W2"))
elif W1FIRST == 4:
    x_group(0)
    for sl in range(2):
        emit(w1_refill(sl, f"W{sl}"))
    for k in range(1, 4):
        x_group(k)
    emit(w1_refill(2, "W2"))
elif W1FIRST == 2:
    for sl in range(3):
        emit(w1_refill(sl, f"W{sl}"))
    for k in range(4):
        x_group(k)
else:
    for k in range(4):
        x_group(k)
    for sl in range(3):
        emit(w1_refill(sl, f"W{sl}"))
stamp("g")
a("s_setprio 3")
vPW = TMP + 8
a("v_mov_b32 v14, 1")
a(f"s_lshl_b32 s{sT0}, s{sWAVE}, 2")
a(f"v_add_u32 v{vPW}, s{sT0}, v{vSYNC}")
vm.wait("X")
a("s_mov_b64 exec, 1")
a(f"ds_add_u32 v{vSYNC}, v14")
a(f"ds_add_u32 v{vPW}, v14 offset:80")
a("s_mov_b64 exec, -1")
stamp("g")

u0, u1, u2 = 34, 35, 36
late = []
sOWN = 29
late += [f"s_mov_b32 s{sOWN}, s{sHF}"]
late += srd_l(S_WS, 40, WSB) + srd_l(S_DBG, 38, 256) + srd_l(S_W2, 34, 512 * 1376 * 2) + srd_l(S_OUT, 36, 2048 * 512 * 2)
late += [f"v_mov_b32 v{vFB}, 0",
         f"buffer_load_dword v{vTG}, v{vFB}, s[{S_DBG}:{S_DBG+3}], 0 offen sc1",
         f"s_mov_b32 s{sJ2}, s{sJ1}",
         f"s_mul_i32 s{u0}, s{sI1}, 43", f"s_add_u32 s{sHF}, s{sHF}, s{u0}", f"s_lshl_b32 s{sHF}, s{sHF}, 12",
         f"s_add_u32 s{sHF}, s{sHF}, {HB}", f"s_add_u32 s{sHH}, s{sHH}, s{u0}", f"s_lshl_b32 s{sHH}, s{sHH}, 12",
         f"s_add_u32 s{sHH}, s{sHH}, s9", f"s_and_b32 s{u1}, s{sWAVE}, 1", f"s_lshl_b32 s{u1}, s{u1}, 11",
         f"s_add_u32 s{u1}, s{u1}, {HB}", f"s_add_u32 s{sHH}, s{sHH}, s{u1}",
         f"s_lshl_b32 s{u0}, s{sI1}, 3", f"s_add_u32 s{u0}, s{u0}, s{sJ1}", f"s_lshl_b32 s{u0}, s{u0}, 2",
         f"s_add_u32 s{u0}, s{u0}, s{sWAVE}", f"s_lshl_b32 s{u0}, s{u0}, 4", f"s_add_u32 s{sPEND}, s{u0}, {HF}",
         f"v_bfe_u32 v{vFB}, v0, 2, 2", f"v_lshl_add_u32 v{vB0}, v{vFA}, 2, v{vFB}", f"v_lshlrev_b32 v{vB0}, 7, v{vB0}",
         f"v_lshrrev_b32 v{vFB}, 1, v{vFB}", f"v_lshl_add_u32 v{vB0}, v{vFB}, 6, v{vB0}", f"v_and_b32 v{vFB}, 3, v0",
         f"v_lshl_add_u32 v{vB0}, v{vFB}, 4, v{vB0}",
         f"v_add_u32 v{vX}, s{sRING}, v{vB0}", f"v_add_u32 v{vB0}, s{sQ}, v{vB0}", f"v_xor_b32 v{vB1}, 64, v{vB0}",
         f"v_lshrrev_b32 v{vW2}, 2, v0", f"v_and_b32 v{vW2}, 4, v{vW2}", f"v_xor_b32 v{vW2}, v{vW2}, v0",
         f"v_and_b32 v{vW2}, 7, v{vW2}", f"v_lshlrev_b32 v{vW2}, 4, v{vW2}", f"v_lshrrev_b32 v{vFB}, 3, v0",
         f"v_lshl_add_u32 v{vW2}, v{vFB}, 10, v{vW2}",
         f"s_lshl_b32 s{u1}, s{sJ2}, 7", f"v_add_u32 v{vW2}, s{u1}, v{vW2}",
         f"v_and_b32 v{vFB}, 15, v0", f"v_lshlrev_b32 v{vFB}, 3, v{vFB}", f"v_add_u32 v{vFB}, {L_STAT}, v{vFB}",
         f"s_mov_b32 s32, 0xbfb8aa3b", f"s_mov_b32 s33, 0xbfb8aa3b",
         f"s_add_u32 s{u0}, s{sJ2}, 1",
         f"s_lshl_b32 s{u2}, s{sWAVE}, 3", f"s_lshr_b32 s{u2}, 0x05030200, s{u2}", f"s_and_b32 s{u2}, s{u2}, 7"]
late += [f"s_mov_b32 s{sKS}, s{sOWN}", f"s_and_b32 s28, s{sJ2}, 3"]
for n in range(7):
    late += [f"s_add_u32 s{u1}, s28, {n}\ns_sub_u32 s37, s{u1}, 7\ns_cmp_ge_u32 s{u1}, 7\ns_cselect_b32 s{u1}, s37, s{u1}",
             f"s_add_u32 s{u1}, s{u1}, s{u0}", f"s_and_b32 s{u1}, s{u1}, 7", f"s_mul_i32 s{u1}, s{u1}, 43",
             f"s_add_u32 s37, s{u1}, 35", f"s_lshr_b32 s{u1}, s{u1}, 3", f"s_lshr_b32 s37, s37, 3",
             f"s_add_u32 s{u1}, s{u1}, s{u2}", f"s_min_u32 s{sKS+1+n}, s{u1}, s37"]
for m in range(2):
    late += [f"s_add_u32 s{u1}, s{u0}, s{sWAVE}", f"s_add_u32 s{u1}, s{u1}, {4*m}", f"s_and_b32 s{u1}, s{u1}, 7",
             f"s_mul_i32 s{u1}, s{u1}, 43", f"s_lshr_b32 s{u1}, s{u1}, 3", f"s_add_u32 s{sKS+8+m}, s{u1}, 1"]
late += [f"s_lshl_b32 s{u1}, s{sWAVE}, 4", f"s_add_u32 s{u1}, s{u1}, 14", f"s_min_u32 s{u1}, s{u1}, 41",
         f"s_cmp_eq_u32 s{sWAVE}, 3\ns_cselect_b32 s{sKS+10}, 0x10000, s{u1}"]
sNEG = 32
lds_wait(vSYNC, 0, 4, 14)
stamp("g")


def g1_reads(b, slot):
    f = FB[b]
    L = [f"v_xor_b32 v{vA}, s{sKX}, v{vA0}\n"
         f"ds_read_b64_tr_b16 {vr(f,2)}, v{vT0} offset:{slot*3072}",
         f"ds_read_b64_tr_b16 {vr(f+2,2)}, v{vT0} offset:{slot*3072+256}",
         f"ds_read_b128 {vr(f+12,4)}, v{vA}",
         f"ds_read_b128 {vr(f+16,4)}, v{vA} offset:16384"]
    for hh in range(2):
        L.append(f"ds_read_b64_tr_b16 {vr(f+4+2*hh,2)}, v{vT1} offset:{slot*3072+256*hh}")
    L.append(f"ds_read_b128 {vr(f+20,4)}, v{vA} offset:32768")
    L.append(f"ds_read_b128 {vr(f+24,4)}, v{vA} offset:49152\ns_add_u32 s{sKX}, s{sKX}, 64\ns_and_b32 s{sKX}, s{sKX}, 0x3c0")
    for hh in range(2):
        L.append(f"ds_read_b64_tr_b16 {vr(f+8+2*hh,2)}, v{vT2} offset:{slot*3072+2048+512*hh}")
    return L


a(f"s_setprio {PG1}")
vm.wait("W0")
emit(g1_reads(0, 0))
for n in range(16):
    f = FB[n & 1]
    mf = []
    for ct in range(3):
        for rt in range(4):
            ac = ACC1 + (ct * 4 + rt) * 4
            mf.append(f"v_mfma_f32_16x16x32_bf16 {vr(ac,4)}, {vr(f+4*ct,4)}, {vr(f+12+4*rt,4)}, {'0' if n == 0 else vr(ac,4)}")
        mf.append(f"v_mfma_f32_16x16x32_bf16 {vr(CS+4*ct,4)}, {vr(f+4*ct,4)}, {vr(ONES,4)}, {'0' if n == 0 else vr(CS+4*ct,4)}")
    a("s_waitcnt lgkmcnt(0)")
    head = w1_refill(n % 3, f"W{n+3}") if n + 3 < 16 else []
    merge(mf[:3], head)
    if n == 0:
        a("v_mov_b32 v14, 1")
    if n == opt("tstep", 12):
        lds_arrive(vSYNC, 30, 14)
    if n == opt("pstep", 9) and opt("umode", 1) == 2:
        lds_arrive(vSYNC, 31, 14)
    fill = []
    if n + 1 < 16:
        vm.wait(f"W{n+1}")
        fill = g1_reads((n + 1) & 1, (n + 1) % 3)
    for i, m in enumerate(mf[3:]):
        a(m)
        if fill:
            a(fill.pop(0))
        for _ in range(1 if n < 8 else 2):
            if late and n >= 1:
                t = late.pop(0)
                a(t)
                if "buffer_load" in t:
                    vm.issue("TG")
    if n in (3, 7, 11):
        stamp("g")
assert not late, len(late)
stamp("g")


def area_base(ar):
    return (sRING, 4096 * ar) if ar < 2 else (sQ, 4096 * (ar - 2))


def w2_dma(n, ar):
    sb, off = area_base(ar)
    L = [f"s_add_u32 m0, s{sb}, {off}\ns_lshl_b32 s{sT1}, s{sKS+n}, 15\n"
         f"buffer_load_dwordx4 v{vW2}, s[{S_W2}:{S_W2+3}], s{sT1} offen lds"]
    for u in range(1, 4):
        L.append(f"s_add_u32 s{sT2}, s{sT1}, {7168*u}\n"
                 f"buffer_load_dwordx4 v{vW2}, s[{S_W2}:{S_W2+3}], s{sT2} offen offset:{1024*u} lds")
    vm.issue(f"D{n}", 4)
    return L


vBR0, vBR1, vBQ0, vBQ1 = vX, vD0, vB0, vB1
def w2_reads(ws, ar):
    w = WR + 16 * ws
    b0, b1 = (vBR0, vBR1) if ar < 2 else (vBQ0, vBQ1)
    off = area_base(ar)[1]
    return [f"ds_read_b64_tr_b16 {vr(w+4*ct+2*hh,2)}, v{b1 if ct >> 1 else b0} offset:{off+8*(ct&1)+2048*hh}"
            for ct in range(4) for hh in range(2)]


a(f"s_setprio {PEPI}")
STR = F0
early = []
if not NOCONV:
    lds_wait(vSYNC, 3, 4, 14)
for rt in range(4):
    a(f"ds_read_b64 {vr(STR+2*rt,2)}, v{vFB} offset:{128*rt}")
XT = 148
a(f"s_lshl_b32 s{sT0}, s{sJ1}, 7")
a(f"s_add_u32 s{sT0}, s{sT0}, s{sQ}")
a(f"v_xor_b32 v{vA}, s{sT0}, v{vA0}")
a(f"v_xor_b32 v{vFA}, 64, v{vA}")
a(f"ds_read_b128 {vr(XT,4)}, v{vA}")
a(f"ds_read_b128 {vr(XT+4,4)}, v{vFA}")
a("v_mov_b32 v14, 1")
lds_arrive(vSYNC, 1, 14)
a(f"v_xor_b32 v{vBR1}, 64, v{vBR0}")
a("s_waitcnt lgkmcnt(0)")
T, PKR = F0 + 8, F0 + 24
HOWN = 240
for rt in range(4):
    rs = STR + 2 * rt
    for ct in range(3):
        for hf in range(2):
            ac = ACC1 + (ct * 4 + rt) * 4 + 2 * hf
            a(f"v_pk_mul_f32 {vr(ac,2)}, {vr(ac,2)}, {vr(rs,2)} op_sel_hi:[1,0]")
            a(f"v_pk_fma_f32 {vr(PKR+8+4*ct+2*hf,2)}, {vr(CS+4*ct+2*hf,2)}, {vr(rs,2)}, {vr(ac,2)} op_sel:[0,1,0] op_sel_hi:[1,1,1] neg_lo:[0,1,0] neg_hi:[0,1,0]")
    if early:
        a(early.pop(0))
    silu_pk(PKR + 8, T, 12, sNEG)
    if early:
        a(early.pop(0))
    pk = HOWN + 4 * rt
    hq = PKR + 28 + (0 if rt < 2 else 12)
    hq = 120 if rt < 2 else 124
    for i in range(4):
        a(f"v_cvt_pk_bf16_f32 v{pk+i}, v{PKR+8+2*i}, v{PKR+8+2*i+1}")
    for i in range(2):
        a(f"v_cvt_pk_bf16_f32 v{hq+2*(rt&1)+i}, v{PKR+16+2*i}, v{PKR+16+2*i+1}")
    a(f"buffer_store_dwordx4 {vr(pk,4)}, v{vL16}, s[{S_WS}:{S_WS+3}], s{sHF} offen offset:{1024*rt} sc1")
    if rt & 1:
        a(f"buffer_store_dwordx4 {vr(hq,4)}, v{vL16}, s[{S_WS}:{S_WS+3}], s{sHH} offen offset:{1024*(rt>>1)} sc1")
    DUP = opt("dup", 0)
    if DUP:
        fl = ["", "", "nt", "sc0"][DUP]
        a(f"buffer_store_dwordx4 {vr(pk,4)}, v{vL16}, s[{S_WS}:{S_WS+3}], s{sHF} offen offset:{1024*rt} {fl}")
        if rt & 1:
            a(f"buffer_store_dwordx4 {vr(hq,4)}, v{vL16}, s[{S_WS}:{S_WS+3}], s{sHH} offen offset:{1024*(rt>>1)} {fl}")
assert not early
vm.issue("S", 6)
a("v_mov_b32 v14, 1")
lds_arrive(vPW, 16, 14)
stamp("g")
a("v_mov_b32 v15, 0")
get_tag(vTG, 15)
fst_on = True
fst()
lds_wait(vSYNC, 1, 4, 14)
FF = opt("flagfirst", 0)
if not FF:
    emit(w2_dma(0, 0) + w2_dma(1, 1))
fst()
ACC2, HFR = 16, 80
SR = 128
vH, vXO, vSO, vFL, vP = 5, 9, 10, 14, 15
a(f"s_mov_b32 s{sI2}, s{sI1}")
for rp in range(4):
    a(f"s_xor_b32 s{sT0}, s{sWAVE}, {rp}")
    a(f"s_lshl_b32 s{sT0}, s{sT0}, 10")
    a(f"v_add_u32 v{vH+rp}, s{sT0}, v{vL16}")
a(f"s_lshl_b32 s{sG}, s{sI2}, 9")
a(f"s_add_u32 s{sG}, s{sG}, {HF}")
a(f"s_mul_i32 s{sK}, s{sI2}, {43*4096}")
a(f"s_add_u32 s{sK}, s{sK}, {HB}")
sSF = sHF
a("v_and_b32 v14, 15, v0")
a("v_lshrrev_b32 v15, 4, v0")
a("v_lshlrev_b32 v15, 4, v15")
a(f"v_lshl_add_u32 v{vXO}, v14, 10, v15")
a(f"s_lshl_b32 s9, s{sI2}, 16")
a(f"s_add_u32 s9, s9, s{sQ}")
a(f"s_lshl_b32 s{sT1}, s{sJ2}, 7")
a(f"s_add_u32 s9, s9, s{sT1}")
a("v_lshrrev_b32 v14, 3, v0")
a("v_bfe_u32 v15, v0, 2, 1")
a("v_lshlrev_b32 v15, 9, v15")
a(f"v_lshl_add_u32 v{vSO}, v14, 12, v15")
a("v_and_b32 v14, 3, v0")
a(f"v_lshl_add_u32 v{vSO}, v14, 4, v{vSO}")
a(f"s_lshr_b32 s{sT1}, s{sI2}, 3")
a(f"s_lshl_b32 s{sT1}, s{sT1}, 10")
a(f"s_bfe_u32 s{sT2}, s{sI2}, 0x10002")
a(f"s_lshl_b32 s{sT2}, s{sT2}, 8")
a(f"s_add_u32 s{sT1}, s{sT1}, s{sT2}")
a(f"s_and_b32 s{sT0}, s{sI2}, 3")
a(f"s_lshl_b32 s{sT0}, s{sT0}, 6")
a(f"s_add_u32 s{sT1}, s{sT1}, s{sT0}")
a(f"s_lshl_b32 s{sT0}, s{sJ2}, 18")
a(f"s_add_u32 s{sT1}, s{sT1}, s{sT0}")
a(f"s_lshl_b32 s{sT0}, s{sWAVE}, 16")
a(f"s_add_u32 s{sT1}, s{sT1}, s{sT0}")
a(f"s_add_u32 s{sGH}, s{sT1}, {ST}")
a(f"s_lshl_b32 s{sT0}, s{sJ2}, 1")
a(f"s_lshr_b32 s{sT1}, s{sI2}, 4")
a(f"s_add_u32 s{sT0}, s{sT0}, s{sT1}")
a(f"s_lshl_b32 s{sT0}, s{sT0}, 10")
a(f"s_lshl_b32 s{sT1}, s{sWAVE}, 8")
a(f"s_add_u32 s{sT0}, s{sT0}, s{sT1}")
a(f"s_add_u32 s{sSF}, s{sT0}, {SF}")
a("v_mov_b32 v15, 0")
vm.wait("S")
publish(f"s{sPEND}", 14, 15)
vm.issue("F")
stamp("g")
a(f"s_setprio {PG1}")
for n in range(0 if FF else 2, 6):
    emit(w2_dma(n, n))
a(f"v_and_b32 v{vFL}, 0x1ff, v{vL16}")
fst()
def h_loads(n):
    hs = n % 4
    L = []
    for rp in range(4):
        pre = f"s_lshl_b32 s{sT1}, s{sKS+n}, 12\ns_add_u32 s{sT1}, s{sT1}, s{sK}\n" if rp == 0 else ""
        if n == 8 and rp == 0:
            pre += (f"s_lshl_b32 s{sT0}, s{sWAVE}, 1\ns_lshr_b32 s{sT2}, s{sWAVE}, 1\ns_or_b32 s{sT0}, s{sT0}, s{sT2}\n"
                    f"s_and_b32 s{sT0}, s{sT0}, 3\ns_lshl_b32 s{sT0}, s{sT0}, 10\nv_add_u32 v{vH}, s{sT0}, v{vL16}\n")
            for i in range(1, 4):
                pre += f"v_xor_b32 v{vH+i}, {1024*i}, v{vH}\n"
        src = vH + rp if n < 8 else vH + 2 * (rp & 1) + (rp >> 1)
        L.append(pre + f"buffer_load_dwordx4 {vr(HFR+16*hs+4*rp,4)}, v{src}, s[{S_WS}:{S_WS+3}], s{sT1} offen sc1")
    vm.issue(f"H{n}", 4)
    return L


def h_fix(n):
    b = HFR + 16 * (n % 4)
    od, dn = a.label("HO"), a.label("HD")
    a(f"s_bitcmp1_b32 s{sWAVE}, 0")
    a(f"s_cbranch_scc1 {od}")
    for pp in range(2):
        for i in range(2):
            a(f"v_swap_b32 v{b+8*pp+2+i}, v{b+8*pp+4+i}")
    a(f"s_branch {dn}")
    a(f"{od}:")
    for pp in range(2):
        for i in range(2):
            a(f"v_swap_b32 v{b+8*pp+i}, v{b+8*pp+6+i}")
    a(f"{dn}:")
    a("s_nop 1")


PPOS, HPOS = opt("ppos", 3), opt("hpos", 5)
for n in range(6):
    vm.wait(f"D{n}")
    emit(w2_reads(n, n))
    if n >= 1:
        a("s_waitcnt lgkmcnt(8)")
        emit(w2_dma(5 + n, n - 1))
    if n == 1:
        labs = [a.label("OW") for _ in range(5)]
        for v in range(1, 4):
            a(f"s_cmp_eq_u32 s{sWAVE}, {v}")
            a(f"s_cbranch_scc1 {labs[v]}")
        for v in range(4):
            a(f"{labs[v]}:")
            for rt in range(4):
                for ct in range(4):
                    ac = ACC2 + (ct * 4 + (rt ^ v)) * 4
                    a(f"v_mfma_f32_16x16x32_bf16 {vr(ac,4)}, {vr(WR+4*ct,4)}, {vr(HOWN+4*rt,4)}, 0")
            if v < 3:
                a(f"s_branch {labs[4]}")
        a(f"{labs[4]}:")
    if n == PPOS:
        a(f"buffer_load_dword v{vP}, v{vFL}, s[{S_WS}:{S_WS+3}], s{sG} offen sc1")
        vm.issue("HP")
    if n == HPOS:
        stamp("g")
        dn = a.label("HOK")
        vm.wait("HP")
        a(f"v_cmp_ne_u32 vcc, s{sTAG}, v{vP}")
        a("s_nop 1")
        a("s_cmp_eq_u64 vcc, 0")
        a(f"s_cbranch_scc1 {dn}")
        poll_flags(vFL, f"s{sG}", vP)
        a(f"{dn}:")
        stamp("g")
        for k in range(1, 4):
            emit(h_loads(k))
a(f"v_and_b32 v{vFL}, 0xff, v{vL16}")
vRW, vSW2 = 156, 157
a(f"v_add_u32 v{vRW}, s{sQ}, v{vL16}")
a(f"v_lshrrev_b32 v{vSW2}, 3, v0")
a(f"v_lshlrev_b32 v{vSW2}, 7, v{vSW2}")
a("v_and_b32 v158, 3, v0")
a(f"v_lshl_add_u32 v{vSW2}, v158, 5, v{vSW2}")
a("v_bfe_u32 v158, v0, 2, 1")
a(f"v_lshl_add_u32 v{vSW2}, v158, 4, v{vSW2}")
a(f"v_add_u32 v{vSW2}, s{sRING}, v{vSW2}")
a("v_lshrrev_b32 v158, 5, v0")
a(f"v_mul_u32_u24 v158, {RINGB}, v158")
a("v_bfe_u32 v159, v0, 4, 1")
a("v_lshl_add_u32 v158, v159, 10, v158")
a("v_bfe_u32 v159, v0, 2, 2")
a("v_lshl_add_u32 v158, v159, 7, v158")
a("v_and_b32 v159, 3, v0")
a("v_lshl_add_u32 v158, v159, 3, v158")
a(f"s_lshl_b32 s{sT0}, s{sWAVE}, 5")
a(f"s_add_u32 s{sT0}, s{sT0}, {L_RING}")
a(f"v_add_u32 v158, s{sT0}, v158")
a("v_mov_b32 v159, 1")
for n in range(1, 11):
    ws, hs = n % 6, n % 4
    mf = []
    for rp in (1, 2, 3, 0):
        for ct in range(4):
            ac = ACC2 + (ct * 4 + rp) * 4
            mf.append(f"v_mfma_f32_16x16x32_bf16 {vr(ac,4)}, {vr(WR+16*ws+4*ct,4)}, {vr(HFR+16*hs+4*rp,4)}, {vr(ac,4)}")
    vm.wait(f"H{n}")
    if n >= 8:
        h_fix(n)
    if n == 1 or n >= 6:
        a("s_waitcnt lgkmcnt(0)")
    if 1 <= n <= 5:
        vm.wait(f"D{n+5}")
    fill = h_loads(n + 3) if n + 3 < 11 else []
    if n == 8 and not NOCONV:
        fill = [f"buffer_load_dword v{vP}, v{vFL}, s[{S_WS}:{S_WS+3}], s{sSF} offen sc1"]
        vm.issue("SP")
    if 1 <= n <= 5:
        vm.wait(f"D{n+5}")
        fill += w2_reads((n + 5) % 6, n - 1)
    if n == 9:
        for rp in range(1, 4):
            fill += [f"s_xor_b32 s{sT0}, s{sWAVE}, {rp}\ns_lshl_b32 s{sT0}, s{sT0}, 14\nv_add_u32 v{vH+rp}, s{sT0}, v{vL16}"]
    if n == 10:
        emit(mf[:7])
        wr = [f"ds_write_b128 v{vRW}, {vr(ACC2+(ct*4+rp)*4,4)} offset:{(rp-1)*4096+ct*1024}" for rp in range(1, 4) for ct in range(4)]
        merge(mf[7:], wr)
    else:
        merge(mf, fill)
    if n in (1, 3, 5, 7, 8):
        fst()
    if n == 9:
        if not NOCONV:
            dn = a.label("SOK")
            vm.wait("SP")
            a(f"v_cmp_ne_u32 vcc, s{sTAG}, v{vP}")
            a("s_nop 1")
            a("s_cmp_eq_u64 vcc, 0")
            a(f"s_cbranch_scc1 {dn}")
            poll_flags(vFL, f"s{sSF}", vP)
            a(f"{dn}:")
        a(f"s_add_u32 s{sT2}, s{sGH}, {8*4096}")
        a(f"buffer_load_dwordx4 {vr(SR,4)}, v{vSO}, s[{S_WS}:{S_WS+3}], s{sGH} offen sc1")
        a(f"buffer_load_dwordx4 {vr(SR+4,4)}, v{vSO}, s[{S_WS}:{S_WS+3}], s{sT2} offen sc1")
        vm.issue("SL", 2)
stamp("g")
a(f"s_setprio {PEPI}")
a("s_waitcnt vmcnt(0)")
a(f"ds_write_b128 v{vSW2}, {vr(SR,4)}")
a(f"ds_write_b128 v{vSW2}, {vr(SR+4,4)} offset:1024")
lds_arrive(vSYNC, 2, 159)
lds_wait(vSYNC, 2, 4, 14)
stamp("g")
PR = HFR
for rp in range(1, 4):
    for ct in range(4):
        a(f"ds_read_b128 {vr(PR+16*(rp-1)+4*ct,4)}, v{vH+rp} offset:{(rp-1)*4096+ct*1024}")
O = WR
for sidx in range(3):
    a(f"s_waitcnt lgkmcnt({8-4*sidx})")
    for ct in range(4):
        for hf in range(2):
            src = (ACC2 + ct * 16 + 2 * hf) if sidx == 0 else (O + 4 * ct + 2 * hf)
            a(f"v_pk_add_f32 {vr(O+4*ct+2*hf,2)}, {vr(src,2)}, {vr(PR+16*sidx+4*ct+2*hf,2)}")
for ct in range(4):
    a(f"ds_read_b64_tr_b16 {vr(SR+2*ct,2)}, v158 offset:{512*(ct&1)+2*RINGB*(ct>>1)}")
silu_pk(O, O + 16, 16, sNEG)
a("s_waitcnt lgkmcnt(0)")
for ct in range(4):
    for hf in range(2):
        sdw = SR + 2 * ct + hf
        xdw = XT + 2 * ct + hf
        t = O + 16 + 4 * (2 * (ct & 1) + hf)
        a(f"v_lshlrev_b32 v{t}, 16, v{sdw}")
        a(f"v_and_b32 v{t+1}, 0xffff0000, v{sdw}")
        a(f"v_lshlrev_b32 v{t+2}, 16, v{xdw}")
        a(f"v_and_b32 v{t+3}, 0xffff0000, v{xdw}")
        a(f"v_pk_fma_f32 {vr(t,2)}, {vr(t,2)}, {vr(O+4*ct+2*hf,2)}, {vr(t+2,2)}")
        a(f"v_cvt_pk_bf16_f32 v{xdw}, v{t}, v{t+1}")
    if ct & 1:
        hf = ct >> 1
        a(f"buffer_store_dwordx4 {vr(XT+4*hf,4)}, v{vXO}, s[{S_OUT}:{S_OUT+3}], s9 offen offset:{64*hf} sc1")
stamp("g")
dump_stamps("g")
a("s_endpgm")

a("L_conv:")
sCH, sP, sCB, sDT, sDS, sCW = 10, 11, 6, 7, 9, 12
a(f"s_setprio {opt('pc0', 2)}")
a("v_mov_b32 v15, 0")
a("v_lshlrev_b32 v14, 2, v0")
a(f"v_add_u32 v14, {L_SYNC}, v14")
a(f"s_cmp_lg_u32 s{sWAVE}, 4")
a("s_cbranch_scc1 L_nozero")
a("ds_write_b32 v14, v15")
a("L_nozero:")
a(f"s_lshl_b32 s{sT0}, s{sXCD}, 5")
a(f"s_add_u32 s{sT0}, s{sT0}, s{sSLOT}")
a(f"s_lshl_b32 s{sT1}, s{sT0}, 2")
a(f"s_bfe_u32 s{sT2}, s{sWAVE}, 0x10001")
a(f"s_lshl_b32 s{sCH}, s{sT0}, 1")
a(f"s_add_u32 s{sCH}, s{sCH}, s{sT2}")
a(f"s_and_b32 s{sP}, s{sWAVE}, 1")
a(f"s_and_b32 s{sCW}, s{sWAVE}, 3")
a(f"s_mul_i32 s{sCB}, s{sT2}, {CSTR}")
a(f"s_add_u32 s{sCB}, s{sCB}, {L_CONV}")
a(f"s_lshl_b32 s{sT0}, s{sCH}, 8")
a(f"s_lshl_b32 s{sT3}, s{sP}, 7")
a(f"s_add_u32 s{sT0}, s{sT0}, s{sT3}")
a("v_lshlrev_b32 v3, 1, v0")
for k in range(4):
    a(f"s_mov_b32 s{46+4*k}, {512*128*2}")
    a(f"s_mov_b32 s{47+4*k}, 0x00020000")
a("s_waitcnt lgkmcnt(0)")
if DIAG:
    a(f"s_mov_b32 s{STAMP0}, s100")
for k in range(4):
    a(f"s_mov_b32 s{44+4*k}, s{18+2*k}")
    a(f"s_and_b32 s{45+4*k}, s{19+2*k}, 0xffff")
    a(f"buffer_load_ushort v{4+k}, v3, s[{44+4*k}:{47+4*k}], s{sT0} offen")
a("s_barrier")
a(f"s_load_dword s{sDT}, s[26:27], s{sT1}")
a(f"s_load_dword s{sDS}, s[28:29], s{sT1}")
srd(S_WS, 40, WSB)
srd(S_DBG, 38, 256)
vEP, vTGc, PFD = 255, 254, 248
a(f"s_or_b32 s77, s2, s{sCW}")
a("s_cmp_lg_u32 s77, 0")
a("s_cbranch_scc1 L_noepoch")
a(f"buffer_load_dword v{vEP}, v15, s[{S_WS}:{S_WS+3}], 0 offen sc1")
a("L_noepoch:")
def post_tag():
    a("s_cmp_lg_u32 s77, 0")
    a("s_cbranch_scc1 L_noepoch2")
    a(f"v_add_u32 v14, 0x9e3779b8, v{vEP}")
    a("v_or_b32 v14, 1, v14")
    a("s_mov_b64 exec, 1")
    a(f"buffer_store_dword v14, v15, s[{S_DBG}:{S_DBG+3}], 0 offen sc1")
    a(f"buffer_store_dword v14, v15, s[{S_WS}:{S_WS+3}], 0 offen sc1")
    a("s_mov_b64 exec, -1")
    a("L_noepoch2:")
if NOCONV:
    a("s_waitcnt vmcnt(0)")
    post_tag()
    a("s_endpgm")
V, PK, DT, LOF, HIF, SEL, GA, MK = 64, 96, 112, 144, 160, 176, 208, 227
KD = 52
vKA, vUA, vTKa, vTKb, vTK2, vTK0, vKW, vSA = 231, 232, 233, 234, 235, 236, 237, 238
vXT, vXS, vSTA, vM, vQ, vPS = 242, 246, 247, 252, 253, 3
a(f"v_and_b32 v{vM}, 15, v0")
a(f"v_lshrrev_b32 v{vQ}, 4, v0")
a("v_and_b32 v10, 1, v0")
a("v_lshlrev_b32 v10, 4, v10")
a("v_mov_b32 v11, 0x3f80")
a("v_lshlrev_b32 v10, v10, v11")
a("v_lshrrev_b32 v11, 1, v0")
for g in range(8):
    for d in range(4):
        if d & 1:
            a(f"v_cndmask_b32 v{SEL+4*g+d}, 0, v10, s[74:75]")
        else:
            a(f"v_cmp_eq_u32 vcc, {4*g+d}, v11")
            a(f"v_cmp_eq_u32 s[74:75], {4*g+d+1}, v11")
            a("s_nop 0")
            a(f"v_cndmask_b32 v{SEL+4*g+d}, 0, v10, vcc")
a(f"s_lshl_b32 s{sT0}, s{sP}, 2")
a(f"s_add_u32 s{sT0}, s{sT0}, s{sCB}")
a(f"s_add_u32 s{sT0}, s{sT0}, {C_TK}")
a(f"v_lshrrev_b32 v10, 1, v{vQ}")
a("v_lshlrev_b32 v10, 7, v10")
a(f"v_and_b32 v11, 1, v{vQ}")
a("v_lshl_add_u32 v10, v11, 2, v10")
a(f"v_lshl_add_u32 v10, v{vM}, 3, v10")
a(f"v_lshl_add_u32 v{vTK0}, v10, 3, s{sT0}")
a(f"v_lshlrev_b32 v10, 6, v{vQ}")
a(f"v_lshlrev_b32 v11, 1, v{vM}")
a(f"v_cmp_gt_u32 vcc, 2, v{vQ}")
a("v_add_u32 v10, v10, v11")
a("v_add_u32 v10, 256, v10")
a("v_cndmask_b32 v11, 0, v11, vcc")
a("v_add_u32 v10, v10, v11")
a(f"v_lshl_add_u32 v{vTKa}, v10, 3, s{sT0}")
a("v_mov_b32 v11, 256")
a("v_cndmask_b32 v11, v11, 16, vcc")
a(f"v_add_u32 v{vTKb}, v{vTKa}, v11")
a(f"v_lshl_add_u32 v10, v{vQ}, 6, v{vM}")
a("v_add_u32 v10, 512, v10")
a(f"v_lshl_add_u32 v{vTK2}, v10, 3, s{sT0}")
ADDR_LATE = opt('addrlate', 1)
def addr_b():
    a(f"v_xor_b32 v10, v{vM}, v{vQ}")
    a("v_and_b32 v10, 3, v10")
    a("v_lshlrev_b32 v10, 4, v10")
    a(f"v_lshl_add_u32 v10, v{vM}, 10, v10")
    a(f"v_lshrrev_b32 v11, 2, v{vM}")
    a("v_lshl_add_u32 v10, v11, 6, v10")
    a(f"s_lshl_b32 s{sT0}, s{sCW}, 14")
    a(f"v_add_u32 v{vSA}, s{sT0}, v10")
    for i in range(1, 4):
        a(f"v_xor_b32 v{vSA+i}, {64*i}, v{vSA}")
    a(f"s_lshl_b32 s{sT1}, s{sJ1}, 3")
    a(f"v_add_u32 v10, s{sT1}, v{vQ}")
    a("v_and_b32 v12, 1, v0")
    a("v_lshlrev_b32 v12, 3, v12")
    a("v_bfe_u32 v13, v0, 2, 2")
    a("v_add_u32 v12, v12, v13")
    a("v_bfe_u32 v13, v0, 1, 1")
    a(f"v_lshl_add_u32 v13, v13, 3, s{sT0}")
    for hh in range(2):
        if hh:
            a("v_add_u32 v12, 4, v12")
        a("v_xor_b32 v11, v12, v10")
        a("v_lshl_add_u32 v11, v11, 4, v13")
        a(f"v_lshl_add_u32 v{vXT+hh}, v12, 10, v11")
        a(f"v_xor_b32 v{vXT+2+hh}, 64, v{vXT+hh}")
    a("v_lshrrev_b32 v12, 3, v0")
    a("v_lshlrev_b32 v12, 14, v12")
    a("v_and_b32 v13, 0x70, v1")
    a(f"v_add_u32 v{vXS}, v12, v13")
    a("v_bfe_u32 v12, v0, 2, 1")
    a(f"s_lshl_b32 s{sT0}, s{sCW}, 7")
    a(f"s_add_u32 s76, s{sT0}, {L_STAT}")
    a(f"v_lshl_add_u32 v{vSTA}, v12, 6, s76")
    a(f"s_lshl_b32 s{sT0}, s{sI1}, 2")
    a(f"s_add_u32 s{sT0}, s{sT0}, s{sCW}")
    a(f"s_lshl_b32 s{sT1}, s{sJ1}, 18")
    a(f"s_lshl_b32 s{sT2}, s{sT0}, 7")
    a(f"s_add_u32 s{sT1}, s{sT1}, s{sT2}")
    a(f"s_add_u32 s70, s{sT1}, {XNT}")
    a(f"s_add_u32 s79, s70, {8*16384}")
    a(f"s_lshl_b32 s{sT1}, s{sJ1}, 7")
    a(f"s_add_u32 s{sT0}, s{sT0}, s{sT1}")
    a(f"s_lshl_b32 s{sT0}, s{sT0}, 4")
    a(f"s_add_u32 s71, s{sT0}, {XF}")
if not ADDR_LATE:
    addr_b()
a(f"s_bfe_u32 s{sT2}, s{sWAVE}, 0x10001")
a(f"s_lshl_b32 s{sT2}, s{sT2}, 4")
a(f"v_add_u32 v{vPS}, s{sT2}, v2")
stamp("c")
a("s_waitcnt lgkmcnt(0)")
a(f"s_lshr_b32 s{sDT}, s{sDT}, s{sT2}")
a(f"s_lshl_b32 s{sDT}, s{sDT}, 16")
a(f"s_lshr_b32 s{sDS}, s{sDS}, s{sT2}")
a(f"s_lshl_b32 s{sDS}, s{sDS}, 16")
a(f"s_mov_b32 s{sT3}, 0x3fb8aa3b")
a(f"v_mov_b32 v8, s{sDT}")
a(f"v_mul_f32 v8, s{sT3}, v8")
a("v_exp_f32 v8, v8")
a("s_waitcnt vmcnt(0)")
stamp("c")
post_tag()
for k in range(4):
    a(f"v_lshlrev_b32 v{4+k}, 16, v{4+k}")
a("v_cvt_pk_bf16_f32 v8, v8, v8")
a("v_lshlrev_b32 v8, 16, v8")
a(f"v_mul_f32 v4, s{sT3}, v4")
a("v_exp_f32 v4, v4")
a("v_mul_f32 v5, v5, v8")
a("v_cvt_pk_bf16_f32 v4, v4, v4")
a("v_lshlrev_b32 v4, 16, v4")
a("v_mul_f32 v4, v4, v8")
a(f"v_mul_f32 v4, 0xbfb8aa3b, v4")
a("v_mul_f32 v5, 0.15915494, v5")
Y = 20
a("v_add_f32 v8, v8, v8")
a(f"v_mul_f32 v{Y}, v6, v8")
a(f"v_mul_f32 v{Y+1}, v7, v8")
Z1, Z8, Z128, Yn = 24, 22, 40, 50
for (dst, mul) in ((Z8, "0x41000000"), (Z1, None), (Z128, "0x43000000")):
    if mul is None:
        a("v_exp_f32 v10, v4")
        a("v_fract_f32 v11, v5")
    else:
        a(f"v_mul_f32 v10, {mul}, v4")
        a(f"v_mul_f32 v11, {mul}, v5")
        a("v_fract_f32 v11, v11")
        a("v_exp_f32 v10, v10")
    a("v_cos_f32 v12, v11")
    a("v_sin_f32 v13, v11")
    a(f"v_mul_f32 v{dst}, v10, v12")
    a(f"v_mul_f32 v{dst+1}, v10, v13")
ctmp = [42, 44, 46, 48]
cti = [0]


def cmul(d, x, y):
    assert d not in (x, y)
    return (f"v_mul_f32 v{d}, v{x}, v{y}\nv_mul_f32 v{d+1}, v{x}, v{y+1}\n"
            f"v_fma_f32 v{d}, -v{x+1}, v{y+1}, v{d}\nv_fmac_f32 v{d+1}, v{x+1}, v{y}")


def pcmul(d, x, y):
    t = ctmp[cti[0] % 4]; cti[0] += 1
    return (f"v_pk_mul_f32 {vr(t,2)}, {vr(x,2)}, {vr(y,2)} op_sel:[0,0] op_sel_hi:[0,1]\n"
            f"v_pk_fma_f32 {vr(d,2)}, {vr(x,2)}, {vr(y,2)}, {vr(t,2)} op_sel:[1,1,0] op_sel_hi:[1,0,1] neg_lo:[0,1,0]")


def mov2(d, x):
    return f"v_mov_b32 v{d}, v{x}\nv_mov_b32 v{d+1}, v{x+1}"


def Wp(e): return Z1 + 2 * (e - 1)


def pack(neg_im):
    ng = "-" if neg_im else ""
    for i in range(8):
        a(f"v_cvt_pk_bf16_f32 v{PK+i}, v{V+4*i}, v{V+4*i+2}")
        a(f"v_cvt_pk_bf16_f32 v{PK+8+i}, {ng}v{V+4*i+1}, {ng}v{V+4*i+3}")


def transpose_mfmas():
    L = []
    for h in range(2):
        for q0 in range(4):
            for part in range(2):
                d = DT + 8 * q0 + 4 * part
                L.append(f"v_mfma_f32_16x16x32_bf16 {vr(d,4)}, {vr(PK+8*part+4*h,4)}, {vr(SEL+4*(2*q0+h),4)}, {'0' if h == 0 else vr(d,4)}")
    return L


def frags(dst):
    for q0 in range(4):
        for i in range(4):
            a(f"v_cvt_pk_bf16_f32 v{dst+4*q0+i}, v{DT+8*q0+2*i}, v{DT+8*q0+2*i+1}")


def contract(t):
    return [f"v_mfma_f32_16x16x32_bf16 {vr(KD+4*t,4)}, {vr(HIF+4*ks,4)}, {vr(LOF+4*ks,4)}, {'0' if ks == 0 else vr(KD+4*t,4)}" for ks in range(4)]


a(f"v_mov_b32 v{V}, 1.0")
a(f"v_mov_b32 v{V+1}, 0")
a(mov2(V + 2, Z8))
a(pcmul(V + 4, Z8, Z8))
a(pcmul(Wp(2), Z1, Z1))
for j in range(3, 16):
    a(pcmul(V + 2 * j, V + 2 * (j - 2), V + 4))
    if j <= 7:
        a(pcmul(Wp(j), Wp(j - 2), Wp(2)))
a(pcmul(Yn, Y, Z128))
pack(True)
KM = opt("kmode", 1)
cm = pcmul if KM else cmul


def tr_block(extra, dst, before):
    L = list(before)
    for q0 in range(4):
        for h in range(2):
            for part in range(2):
                d = DT + 8 * q0 + 4 * part
                L.append(f"v_mfma_f32_16x16x32_bf16 {vr(d,4)}, {vr(PK+8*part+4*h,4)}, {vr(SEL+4*(2*q0+h),4)}, {'0' if h == 0 else vr(d,4)}")
    cv = [f"v_cvt_pk_bf16_f32 v{dst+4*q0+i}, v{DT+8*q0+2*i}, v{DT+8*q0+2*i+1}" for q0 in range(4) for i in range(4)]
    nb = len(before)
    for i, m in enumerate(L):
        a(m)
        k = i - nb
        if k >= 8 and cv:
            a(cv.pop(0))
        elif extra:
            a(extra.pop(0))
    emit(cv)
    emit(extra)


t0 = []
for i, yy in enumerate((Y, Yn)):
    t0.append(mov2(V + 16 * i, yy))
    t0 += [cm(V + 16 * i + 2 * e, yy, Wp(e)) for e in range(1, 8)]
t1 = [cm(V + 0, Yn, Z128), cm(V + 8, V + 0, Z128), cm(V + 16, V + 8, Z128)]
t1 += [cm(V + 2 * e, V + 0, Wp(2 * e)) for e in range(1, 4)]
t1 += [cm(V + 20, V + 16, Z128)]
t1 += [cm(V + 8 + 2 * e, V + 8, Wp(2 * e)) for e in range(1, 4)]
t1 += [cm(V + 24, V + 20, Z128), cm(V + 18, V + 16, Wp(4)), cm(V + 28, V + 24, Z128), cm(V + 22, V + 20, Wp(4)),
       cm(Yn, V + 28, Z128), cm(V + 26, V + 24, Wp(4)), cm(V + 30, V + 28, Wp(4))]
t2 = [mov2(V, Yn), cmul(Y, Z128, Z128), cmul(V + 2, Yn, Z128)]
t2 += [cmul(V + 2 * i, V + 2 * (i - 2), Y) for i in range(2, 9)]
if KM:
    emit(t0)
    tr_block([], LOF, [])
    pack(False)
    emit(t1)
    tr_block([], HIF, [])
    pack(False)
    tr_block(t2, HIF, contract(0))
    pack(False)
    tr_block([f"ds_write_b32 v{vTK0}, v{KD+rho} offset:{8*rho}" for rho in range(4)], HIF, contract(1))
    for rho in range(4):
        a(f"ds_write_b32 v{vTKb if rho >> 1 else vTKa}, v{KD+4+rho} offset:{8*(rho&1)}")
    emit(contract(2))
else:
    merge(transpose_mfmas(), t0)
    pack(False)
    frags(LOF)
    merge(transpose_mfmas(), t1)
    pack(False)
    frags(HIF)
    merge(contract(0) + transpose_mfmas(), t2)
    pack(False)
    frags(HIF)
if not KM:
    merge(contract(1) + transpose_mfmas(), [f"ds_write_b32 v{vTK0}, v{KD+rho} offset:{8*rho}" for rho in range(4)], first=2, every=3)
    for rho in range(4):
        a(f"ds_write_b32 v{vTKb if rho >> 1 else vTKa}, v{KD+4+rho} offset:{8*(rho&1)}")
    frags(HIF)
    emit(contract(2))
if ADDR_LATE:
    addr_b()
ON, SM, SQ, RW, UP, SF0 = 128, 132, 136, 140, 148, 64
for i in range(4):
    a(f"v_mov_b32 v{ON+i}, 0x3f803f80")
a("v_mov_b32 v14, 1")
a(f"s_lshl_b32 s{sT0}, s{sCW}, 2")
a(f"v_add_u32 v12, s{sT0}, v2")
for rho in range(4):
    a(f"ds_write_b32 v{vTK2}, v{KD+8+rho} offset:{128*rho}")
lds_arrive(vPS, 4, 14)
stamp("c")
a(f"s_setprio {PSTAT}")
lds_wait(12, 20, 1, 13)
stamp("c")
for ks in range(16):
    a(f"ds_read_b128 {vr(SF0+4*ks,4)}, v{vSA+(ks&3)} offset:{256*(ks>>2)}")
for ks in range(16):
    if ks % 4 == 0:
        a(f"s_waitcnt lgkmcnt({12-ks})")
    a(f"v_mfma_f32_16x16x32_bf16 {vr(SM,4)}, {vr(SF0+4*ks,4)}, {vr(ON,4)}, {'0' if ks == 0 else vr(SM,4)}")
    a(f"v_mfma_f32_16x16x32_bf16 {vr(SQ,4)}, {vr(SF0+4*ks,4)}, {vr(SF0+4*ks,4)}, {'0' if ks == 0 else vr(SQ,4)}")
for inst in range(2):
    for hh in range(2):
        a(f"ds_read_b64_tr_b16 {vr(RW+4*inst+2*hh,2)}, v{vXT+2*inst+hh}")
a(f"buffer_load_dword v{vTGc}, v15, s[{S_DBG}:{S_DBG+3}], 0 offen sc1")
a(f"v_and_b32 v10, 3, v{vM}")
a(f"v_lshl_add_u32 v11, v{vM}, 3, s76")
for r in range(1, 4):
    a(f"v_cmp_eq_u32 vcc, {r}, v10")
    a(f"v_cndmask_b32 v{SM}, v{SM}, v{SM+r}, vcc")
    a(f"v_cndmask_b32 v{SQ}, v{SQ}, v{SQ+r}, vcc")
a(f"v_mul_f32 v{SM}, 0x3b000000, v{SM}")
a(f"v_mul_f32 v{SQ}, 0x3b000000, v{SQ}")
a(f"v_fma_f32 v{SQ}, -v{SM}, v{SM}, v{SQ}")
a(f"v_max_f32 v{SQ}, 0, v{SQ}")
a(f"v_cvt_pk_bf16_f32 v{SM}, v{SM}, v{SQ}")
a(f"v_and_b32 v{SQ}, 0xffff0000, v{SM}")
a(f"v_add_f32 v{SQ}, 0x3727c5ac, v{SQ}")
a(f"v_cvt_pk_bf16_f32 v{SQ}, v{SQ}, v{SQ}")
a(f"v_lshlrev_b32 v{SQ}, 16, v{SQ}")
a(f"v_sqrt_f32 v{SQ}, v{SQ}")
a(f"v_lshlrev_b32 v{SM}, 16, v{SM}")
a(f"v_cvt_pk_bf16_f32 v{SQ}, v{SQ}, v{SQ}")
a(f"v_lshlrev_b32 v{SQ}, 16, v{SQ}")
a(f"v_rcp_f32 v{SM+2}, v{SQ}")
a(f"v_lshrrev_b32 v10, 2, v{vM}")
a(f"v_cmp_eq_u32 vcc, v10, v{vQ}")
a(f"v_mul_f32 v{SM+3}, v{SM}, v{SM+2}")
a("s_and_saveexec_b64 s[72:73], vcc")
a(f"ds_write_b64 v11, {vr(SM+2,2)}")
lds_arrive(2, 3, 14)
for k in range(4):
    a(f"ds_read_b128 {vr(SF0+4*k,4)}, v{vSTA} offset:{16*k}")
a("s_waitcnt lgkmcnt(6)")
for i in range(8):
    a(f"v_lshlrev_b32 v{UP+2*i}, 16, v{RW+i}")
    a(f"v_and_b32 v{UP+1+2*i}, 0xffff0000, v{RW+i}")
a("s_waitcnt lgkmcnt(0)")
for inst in range(2):
    for i in range(8):
        a(f"v_fma_f32 v{UP+8*inst+i}, v{UP+8*inst+i}, v{SF0+2*i}, -v{SF0+1+2*i}")
    for i in range(4 * inst, 4 * inst + 4):
        a(f"v_cvt_pk_bf16_f32 v{RW+i}, v{UP+2*i}, v{UP+1+2*i}")
    a(f"buffer_store_dwordx4 {vr(RW+4*inst,4)}, v{vXS}, s[{S_WS}:{S_WS+3}], s{79 if inst else 70} offen sc1")
a(f"s_setprio {PCONV}")
stamp("c")
a(f"v_lshlrev_b32 v10, 3, v{vQ}")
a(f"v_sub_u32 v10, v{vM}, v10")
a(f"s_mul_i32 s{sT0}, s{sP}, 100")
a(f"s_add_u32 s{sT0}, s{sT0}, 16")
a(f"v_add_u32 v10, s{sT0}, v10")
a("v_mov_b32 v12, 0xffff")
a("v_mov_b32 v13, 0xffff0000")
for d in range(4):
    a(f"v_cmp_le_i32 vcc, {2*d}, v10")
    a(f"v_cmp_le_i32 s[72:73], {2*d+1}, v10")
    a(f"v_cndmask_b32 v{MK+d}, 0, v12, vcc")
    a("v_cndmask_b32 v11, 0, v13, s[72:73]")
    a(f"v_or_b32 v{MK+d}, v{MK+d}, v11")
a(f"v_and_b32 v10, 3, v{vM}")
a(f"v_mul_u32_u24 v10, {KCS}, v10")
a(f"v_lshrrev_b32 v11, 2, v{vM}")
a("v_lshlrev_b32 v11, 3, v11")
a("v_sub_u32 v10, v10, v11")
a(f"v_lshl_add_u32 v10, v{vQ}, 4, v10")
a(f"s_lshl_b32 s{sT0}, s{sP}, 8")
a(f"s_sub_u32 s{sT0}, s{sCB}, s{sT0}")
a(f"s_add_u32 s{sT1}, s{sT0}, 24")
a(f"v_add_u32 v{vKA}, s{sT1}, v10")
a(f"v_lshlrev_b32 v10, 5, v{vM}")
a(f"v_lshl_add_u32 v10, v{vQ}, 4, v10")
a(f"s_add_u32 s{sT1}, s{sT0}, {C_UL}")
a(f"v_add_u32 v{vUA}, s{sT1}, v10")
a(f"s_add_u32 s{sT0}, s{sCB}, {C_UL}")
a(f"v_add_u32 v10, s{sT0}, v1")
for i in range(4):
    a(f"v_mov_b32 v{16+i}, 0")
a("v_cmp_gt_u32 vcc, 30, v0")
a("s_and_saveexec_b64 s[72:73], vcc")
a("ds_write_b128 v10, v[16:19]")
a("s_mov_b64 exec, -1")
a(f"s_lshl_b32 s{sT0}, s{sP}, 6")
a(f"v_add_u32 v12, s{sT0}, v0")
a(f"v_lshl_add_u32 v{vKW}, v12, 5, s{sCB}")
a("v_lshlrev_b32 v13, 4, v12")
a("v_sub_u32 v13, 0x7ff, v13")
a("v_cvt_f32_u32 v16, v13")
a(f"s_add_u32 s{sT1}, s{sCB}, {C_TK}")
a(f"v_lshl_add_u32 v17, v13, 3, s{sT1}")
a(f"s_add_u32 s{sT0}, s{sT1}, {8*127}")
a(f"v_mov_b32 v18, s{sT0}")
a(f"s_sub_u32 s{sT0}, s{sT1}, {8*0x4280}")
for s in range(0, 19, 2):
    a(f"v_subrev_f32 v10, {float(s)}, v16" if s else "v_mov_b32 v10, v16")
    a(f"v_subrev_f32 v11, {float(s+1)}, v16")
    a("v_cvt_pk_bf16_f32 v10, v10, v11")
    for k in range(2):
        if s + k > 18:
            continue
        a("v_and_b32 v11, 0x7fff, v10" if k == 0 else "v_bfe_u32 v11, v10, 16, 15")
        a(f"v_lshl_add_u32 v11, v11, 3, s{sT0}")
        a(f"v_subrev_u32 v12, {8*(s+k)}, v17")
        a(f"v_med3_i32 v12, v12, s{sT1}, v18")
        a(f"v_max_i32 v{GA+s+k}, v11, v12")
a("s_waitcnt vmcnt(0)")
get_tag(vTGc, 15)
publish("s71", 14, 15)
stamp("c")
a(f"s_lshl_b32 s{sT0}, s{sXCD}, 11")
a(f"s_add_u32 s74, s{sT0}, {XF}")
a(f"s_lshr_b32 s{sT0}, s{sCH}, 2")
a(f"s_lshl_b32 s{sT0}, s{sT0}, 14")
a(f"s_and_b32 s{sT1}, s{sCH}, 2")
a(f"s_lshl_b32 s{sT1}, s{sT1}, 4")
a(f"s_add_u32 s{sT0}, s{sT0}, s{sT1}")
a(f"s_lshl_b32 s{sT1}, s{sCW}, 12")
a(f"s_add_u32 s{sT0}, s{sT0}, s{sT1}")
a(f"s_add_u32 s75, s{sT0}, {XNT}")
a(f"s_lshl_b32 s{sT1}, s{sCW}, 9")
a(f"s_add_u32 s74, s74, s{sT1}")
a("v_and_b32 v7, 0x1ff, v1")
a("v_lshrrev_b32 v10, 1, v0")
a("v_and_b32 v11, 1, v0")
a("v_lshlrev_b32 v9, 6, v10")
a("v_lshl_add_u32 v9, v11, 4, v9")
a(f"v_mul_u32_u24 v11, {CSTR}, v11")
a("v_lshl_add_u32 v10, v10, 4, v11")
a(f"s_lshl_b32 s{sT0}, s{sCW}, 10")
a(f"s_add_u32 s{sT0}, s{sT0}, {L_CONV+C_UL+480}")
a(f"v_add_u32 v8, s{sT0}, v10")
GV, KP = 64, 112
lds_wait(vPS, 4, 2, 13)
for s in range(19):
    a(f"ds_read_b64 {vr(GV+2*s,2)}, v{GA+s}")
a("s_waitcnt lgkmcnt(0)")
for s in range(19):
    a(f"v_add_f32 v{GV+2*s}, v{GV+2*s}, v{GV+2*s+1}")
for kap in range(4):
    for d in range(8):
        s0 = 3 - kap + 2 * d
        a(f"v_cvt_pk_bf16_f32 v{KP+8*kap+d}, v{GV+2*s0}, v{GV+2*(s0+1)}")
def k_copies():
    for kap in range(4):
        for hq in range(2):
            a(f"ds_write_b128 v{vKW}, {vr(KP+8*kap+4*hq,4)} offset:{kap*KCS+16*hq}")
a(f"s_lshl_b32 s{sT0}, s{sCW}, 2")
a(f"v_add_u32 v12, s{sT0}, v2")
a("v_mov_b32 v14, 1")
srd(44, 34, 512 * 1376 * 2)
a(f"s_lshl_b32 s{sT0}, s{sSLOT}, 2")
a(f"s_add_u32 s{sT0}, s{sT0}, s{sCW}")
a(f"s_mul_i32 s{sT0}, s{sT0}, 43")
a(f"s_lshr_b32 s{sT0}, s{sT0}, 2")
a(f"s_lshl_b32 s{sT0}, s{sT0}, 10")
a(f"s_and_b32 s{sT1}, s{sXCD}, 1")
a(f"s_lshl_b32 s{sT1}, s{sT1}, 9")
a(f"s_add_u32 s78, s{sT0}, s{sT1}")
a("v_lshrrev_b32 v10, 5, v0")
a("v_and_b32 v11, 0x1f0, v1")
a("v_lshl_add_u32 v10, v10, 10, v11")
stamp("c")
def u_loads():
    for i in range(2):
        a(f"buffer_load_dwordx4 {vr(16+4*i,4)}, v9, s[{S_WS}:{S_WS+3}], s75 offen offset:{2048*i} sc1")
def touch():
    for k in range(6):
        if k and k % 2 == 0:
            a("s_add_u32 s78, s78, 4096")
        a(f"buffer_load_dwordx4 {vr(PFD,4)}, v10, s[44:47], s78 offen offset:{2048*(k%2)}")
UM = opt("umode", 1)
if UM == 0:
    poll_flags(7, "s74", 13, sleep=4)
    u_loads()
if UM == 2:
    lds_wait(2, 31, 4, 13)
    poll_flags(7, "s74", 13, sleep=4)
lds_wait(2, 30, 4, 13)
if UM == 1:
    a(f"buffer_load_dword v13, v7, s[{S_WS}:{S_WS+3}], s74 offen sc1")
if UM == 2:
    u_loads()
touch()
if UM == 1:
    dn = a.label("XOK")
    a("s_waitcnt vmcnt(6)")
    a(f"v_cmp_ne_u32 vcc, s{sTAG}, v13")
    a("s_nop 1")
    a("s_cmp_eq_u64 vcc, 0")
    a(f"s_cbranch_scc1 {dn}")
    poll_flags(7, "s74", 13, sleep=2)
    a(f"{dn}:")
    u_loads()
stamp("c")
k_copies()
a(f"s_waitcnt vmcnt({0 if UM == 1 else 6})")
for i in range(2):
    a(f"ds_write_b128 v8, {vr(16+4*i,4)} offset:{512*i}")
lds_arrive(2, 12, 14)
a(f"s_setprio {PCM}")
lds_wait(2, 12, 4, 13)
stamp("c")
if opt("gate", 1):
    lds_wait(12, 16, 1, 13)
stamp("c")
CA = 16
FR = [48, 112]


def conv_reads(rho, b):
    f = FR[b]
    L = []
    for s in range(8):
        L.append(f"ds_read_b128 {vr(f+32+4*s,4)}, v{vUA} offset:{512*s+64*(7-rho)}")
        for hh in range(2):
            L.append(f"ds_read_b64 {vr(f+4*s+2*hh,2)}, v{vKA} offset:{64*(63-8*s-rho)+8*hh}")
    return L


emit(conv_reads(0, 0))
for rho in range(4):
    f = FR[rho & 1]
    a("s_waitcnt lgkmcnt(0)")
    if rho == 0:
        for d in range(4):
            a(f"v_and_b32 v{f+d}, v{f+d}, v{MK+d}")
    mf = []
    seen = set()
    for s in range(8):
        for w in range(8 - s):
            t = s + w
            c = "0" if (rho == 0 and t not in seen) else vr(CA + 4 * t, 4)
            seen.add(t)
            mf.append(f"v_mfma_f32_16x16x32_bf16 {vr(CA+4*t,4)}, {vr(f+4*s,4)}, {vr(f+32+4*w,4)}, {c}")
    if rho < 3:
        merge(mf, conv_reads(rho + 1, (rho + 1) & 1))
    else:
        tail = [f"s_add_u32 s{sT0}, s{sCB}, {C_TK}", f"s_lshl_b32 s{sT1}, s{sP}, 12", f"s_add_u32 s{sT2}, s{sT0}, s{sT1}",
                f"v_add_u32 v12, s{sT2}, v1", f"s_xor_b32 s{sT1}, s{sT1}, 4096", f"s_add_u32 s{sT2}, s{sT0}, s{sT1}",
                f"v_add_u32 v11, s{sT2}, v1",
                f"v_lshlrev_b32 v10, 5, v{vM}", f"v_lshl_add_u32 v10, v{vQ}, 3, v10",
                f"s_lshl_b32 s{sT0}, s{sP}, 11", f"s_add_u32 s{sT0}, s{sT0}, s{sCB}", f"s_add_u32 s{sT0}, s{sT0}, {C_UL+480}",
                f"v_add_u32 v10, s{sT0}, v10"]
        tail += [f"ds_read_b64 {vr(48+2*i,2)}, v10 offset:{512*i}" for i in range(4)]
        tail += [f"s_lshl_b32 s{sT0}, s{sCH}, 12", f"s_lshl_b32 s{sT1}, s{sP}, 11", f"s_add_u32 s{sT0}, s{sT0}, s{sT1}",
                 f"s_add_u32 s70, s{sT0}, {ST}",
                 f"s_lshl_b32 s{sT0}, s{sXCD}, 1", f"s_add_u32 s{sT0}, s{sT0}, s{sP}", f"s_lshl_b32 s{sT0}, s{sT0}, 10",
                 f"s_and_b32 s{sT1}, s{sCH}, 63", f"s_lshl_b32 s{sT1}, s{sT1}, 4", f"s_add_u32 s{sT0}, s{sT0}, s{sT1}",
                 f"s_add_u32 s71, s{sT0}, {SF}", "v_mov_b32 v14, 1"]
        merge(mf, tail)
stamp("c")
a(f"s_cmp_eq_u32 s{sP}, 0")
a("s_cbranch_scc0 L_xp1")
for i in range(4):
    a(f"ds_write_b128 v12, {vr(CA+16+4*i,4)} offset:{1024*i}")
lds_arrive(vPS, 6, 14)
a("s_branch L_xdone")
a("L_xp1:")
a("s_nop 7")
for i in range(4):
    a(f"ds_write_b128 v12, {vr(CA+4*i,4)} offset:{1024*i}")
lds_arrive(vPS, 6, 14)
for i in range(16):
    a(f"v_mov_b32 v{CA+i}, v{CA+16+i}")
a("L_xdone:")
a("s_waitcnt lgkmcnt(5)")
for i in range(4):
    for hf in range(2):
        a(f"v_lshlrev_b32 v{72+4*i+2*hf}, 16, v{48+2*i+hf}")
        a(f"v_and_b32 v{72+4*i+2*hf+1}, 0xffff0000, v{48+2*i+hf}")
for i in range(16):
    a(f"v_fma_f32 v{CA+i}, v{72+i}, s{sDS}, v{CA+i}")
lds_wait(vPS, 6, 2, 13)
for i in range(4):
    a(f"ds_read_b128 {vr(48+4*i,4)}, v11 offset:{1024*i}")
for pr in range(2):
    a(f"s_waitcnt lgkmcnt({2-2*pr})")
    for i in range(8 * pr, 8 * pr + 8):
        a(f"v_add_f32 v{CA+i}, v{CA+i}, v{48+i}")
    for i in range(4 * pr, 4 * pr + 4):
        a(f"v_cvt_pk_bf16_f32 v{64+i}, v{CA+2*i}, v{CA+2*i+1}")
    for hf in range(2):
        a(f"v_permlane16_swap_b32 v{64+4*pr+hf}, v{64+4*pr+2+hf}")
    a(f"buffer_store_dwordx4 {vr(64+4*pr,4)}, v1, s[{S_WS}:{S_WS+3}], s70 offen offset:{1024*pr} sc1")
a("s_waitcnt vmcnt(0)")
publish("s71", 14, 15)
stamp("c")
dump_stamps("c")
a("L_end:")
a("s_endpgm")
a("L_code_end:")
a.raw('.section .rodata,"a"\n.p2align 6')
a.raw(kernel_desc(KN, 256, 102, 256))
open(OUT, "w").write(a.text())
print("nops inserted:", a.nnop, "instrs:", sum(1 for i in a.items if not isinstance(i, str)), "lds", LDS_BYTES)
```

```python
import sys
from asmlib import *

DIAG = "--diag" in sys.argv
NOCONV = "--noconv" in sys.argv
CYC = "--cyc" in sys.argv
MAP48 = "--map48" in sys.argv
OUT = [x for x in sys.argv[1:] if not x.startswith("--")][0]


def opt(name, default):
    for x in sys.argv:
        if x.startswith(f"--{name}="):
            return int(x.split("=")[1])
    return default


PCONV, PSTAT, PG1, PEPI, PCM = opt("pconv", 0), opt("pstat", 2), opt("pg1", 1), opt("pepi", 3), opt("pcm", 2)

XF, SF, HF = 0x1000, 0x5000, 0x9000
XNT, ST, HB = 0x20000, 0x220000, 0x420000
STAMP, WSB, OOB = 0x1000000, 0x10000000, 0x40000000
L_RING, RINGB = 65536, 9216
L_CONV = L_RING + 4 * RINGB
KCS = 4160
C_TK = 4 * KCS
C_UL = C_TK + 8192
CSTR = C_UL + 4608
L_SYNC = L_CONV + 2 * CSTR
L_STAT = L_SYNC + 256
LDS_BYTES = L_STAT + 512
W1RS = 2752
SPIN = 1 << 18

a = Asm()
sWAVE, sI1, sJ1, sI2, sJ2, sTAG = 3, 4, 5, 6, 7, 8
sG, sK, sRING, sGH, sPEND, sQ = 10, 11, 12, 13, 14, 15
S_X, S_W1, S_W2, S_OUT, S_WS, S_DBG = 44, 48, 52, 56, 60, 64
sT0, sT1, sT2, sT3 = 42, 43, 68, 69
sKS = 70
sXCD, sSLOT, sSPIN = 81, 82, 83
sHF, sHH = 0, 1
STAMP0 = 84
nstamp = {"g": 0, "c": 0}


def srd_l(d, base, nbytes):
    return [f"s_mov_b32 s{d}, s{base}", f"s_and_b32 s{d+1}, s{base+1}, 0xffff",
            f"s_mov_b32 s{d+2}, {nbytes}", f"s_mov_b32 s{d+3}, 0x00020000"]


def emit(L):
    for t in L:
        a(t)


def srd(d, base, nbytes):
    emit(srd_l(d, base, nbytes))


WST = "--wst" in sys.argv
_phase = [0]
def fst():
    if WST:
        _phase[0] = 1
        stamp("g", True)
def stamp(role, fine=False):
    if not DIAG:
        return
    if WST and role == "g" and not fine and nstamp["g"] >= 1 and not _phase[0]:
        return
    k = nstamp[role]; nstamp[role] += 1
    assert k < 16
    a("s_memtime s[100:101]" if CYC else "s_memrealtime s[100:101]")
    a("s_waitcnt lgkmcnt(0)")
    a(f"s_mov_b32 s{STAMP0+k}, s100")


def dump_stamps(role):
    if not DIAG:
        return
    if "--dbg" in sys.argv:
        wv = opt("dbgwave", 0)
        if (role == "g") != (wv < 4):
            return
        lab = a.label("DB")
        a(f"s_cmp_lg_u32 s2, {opt('dbgwg', 77)}")
        a(f"s_cbranch_scc1 {lab}")
        a(f"s_cmp_lg_u32 s{sWAVE}, {wv}")
        a(f"s_cbranch_scc1 {lab}")
        a("v_mov_b32 v14, 0")
        for k in range(1, nstamp[role]):
            a(f"s_sub_u32 s{STAMP0+k}, s{STAMP0+k}, s{STAMP0}")
            a(f"v_mov_b32 v15, s{STAMP0+k}")
            a(f"buffer_store_dword v15, v14, s[{S_DBG}:{S_DBG+3}], 0 offen offset:{4*k}")
        a("s_waitcnt vmcnt(0)")
        a(f"{lab}:")
        return
    a(f"s_lshl_b32 s{sT0}, s2, 3")
    a(f"s_add_u32 s{sT0}, s{sT0}, s{sWAVE}")
    a(f"s_lshl_b32 s{sT0}, s{sT0}, 6")
    a(f"s_add_u32 s{sT0}, s{sT0}, {STAMP}")
    a("v_mov_b32 v14, 0")
    for k in range(nstamp[role]):
        a(f"v_mov_b32 v15, s{STAMP0+k}")
        a(f"buffer_store_dword v15, v14, s[{S_WS}:{S_WS+3}], s{sT0} offen offset:{4*k}")
    a("s_waitcnt vmcnt(0)")


class VM:
    def __init__(self):
        self.q = []
    def issue(self, tag, n=1):
        self.q += [tag] * n
    def wait(self, tag):
        if tag not in self.q:
            return
        idx = max(i for i, t in enumerate(self.q) if t == tag)
        a(f"s_waitcnt vmcnt({min(len(self.q) - 1 - idx, 63)})")
        self.q = self.q[idx + 1:]
    def drain(self):
        self.q = []


def lds_arrive(vsync, word, vone):
    a("s_mov_b64 exec, 1")
    a(f"ds_add_u32 v{vsync}, v{vone} offset:{4*word}")
    a("s_mov_b64 exec, -1")


def lds_wait(vsync, word, n, vtmp):
    lp, dn = a.label("LW"), a.label("LWD")
    a(f"s_mov_b32 s{sSPIN}, 0")
    a(f"{lp}:")
    a(f"ds_read_b32 v{vtmp}, v{vsync} offset:{4*word}")
    a(f"s_add_u32 s{sSPIN}, s{sSPIN}, 1")
    a("s_waitcnt lgkmcnt(0)")
    a(f"v_readfirstlane_b32 s{sT0}, v{vtmp}")
    a(f"s_cmp_gt_u32 s{sSPIN}, {SPIN*8}")
    a(f"s_cbranch_scc1 {dn}")
    a(f"s_cmp_ge_u32 s{sT0}, {n}")
    a(f"s_cbranch_scc1 {dn}")
    a(f"s_sleep {opt('lsleep', 1)}")
    a(f"s_branch {lp}")
    a(f"{dn}:")


def poll_flags(voff, soff, vtmp, sleep=1):
    lp, dn = a.label("PF"), a.label("PFD")
    a(f"s_mov_b32 s{sSPIN}, 0")
    a(f"{lp}:")
    a(f"buffer_load_dword v{vtmp}, v{voff}, s[{S_WS}:{S_WS+3}], {soff} offen sc1")
    a(f"s_add_u32 s{sSPIN}, s{sSPIN}, 1")
    a("s_waitcnt vmcnt(0)")
    a(f"v_cmp_ne_u32 vcc, s{sTAG}, v{vtmp}")
    a(f"s_cmp_gt_u32 s{sSPIN}, {SPIN}")
    a(f"s_cbranch_scc1 {dn}")
    a("s_cmp_eq_u64 vcc, 0")
    a(f"s_cbranch_scc1 {dn}")
    a(f"s_sleep {sleep}")
    a(f"s_branch {lp}")
    a(f"{dn}:")


def get_tag(vtmp, vzero):
    lp, dn = a.label("GT"), a.label("GTD")
    a(f"s_mov_b32 s{sSPIN}, 0")
    a(f"{lp}:")
    a(f"v_readfirstlane_b32 s{sTAG}, v{vtmp}")
    a(f"s_add_u32 s{sSPIN}, s{sSPIN}, 1")
    a(f"s_cmp_gt_u32 s{sSPIN}, {SPIN}")
    a(f"s_cbranch_scc1 {dn}")
    a(f"s_cmp_lg_u32 s{sTAG}, 0")
    a(f"s_cbranch_scc1 {dn}")
    a("s_sleep 1")
    a(f"buffer_load_dword v{vtmp}, v{vzero}, s[{S_DBG}:{S_DBG+3}], 0 offen sc1")
    a("s_waitcnt vmcnt(0)")
    a(f"s_branch {lp}")
    a(f"{dn}:")


def publish(soff, vtmp, vzero):
    a(f"v_mov_b32 v{vtmp}, s{sTAG}")
    a("s_mov_b64 exec, 1")
    a(f"buffer_store_dword v{vtmp}, v{vzero}, s[{S_WS}:{S_WS+3}], {soff} offen sc1")
    a("s_mov_b64 exec, -1")


def merge(main, fill, first=0, every=1):
    fill = list(fill)
    for i, m in enumerate(main):
        a(m)
        if i >= first and (i - first) % every == 0 and fill:
            a(fill.pop(0))
    for f in fill:
        a(f)


def silu_pk(src, tmp, n, sneg, drip=lambda k: None):
    for i in range(0, n, 2):
        a(f"v_pk_mul_f32 {vr(tmp+i,2)}, {vr(src+i,2)}, s[{sneg}:{sneg+1}]")
    for i in range(n):
        a(f"v_exp_f32 v{tmp+i}, v{tmp+i}")
    drip(2)
    for i in range(0, n, 2):
        a(f"v_pk_add_f32 {vr(tmp+i,2)}, {vr(tmp+i,2)}, 1.0 op_sel_hi:[1,0]")
    for i in range(n):
        a(f"v_rcp_f32 v{tmp+i}, v{tmp+i}")
    for i in range(0, n, 2):
        a(f"v_pk_mul_f32 {vr(src+i,2)}, {vr(src+i,2)}, {vr(tmp+i,2)}")


def klist_code(dst, count, srot, t0, stbl, t1):
    L = []
    for n in range(count):
        L += [f"s_add_u32 s{t0}, s{srot}, {n}", f"s_and_b32 s{t0}, s{t0}, 7", f"s_mul_i32 s{t0}, s{t0}, 43",
              f"s_add_u32 s{t1}, s{t0}, 35", f"s_lshr_b32 s{t0}, s{t0}, 3", f"s_lshr_b32 s{t1}, s{t1}, 3",
              f"s_add_u32 s{t0}, s{t0}, s{stbl}", f"s_min_u32 s{dst+n}, s{t0}, s{t1}"]
    return L


a.raw(open("recurrent_scan__ssm_conv_s4d__dense_activation_silu__prompt.s.ref").read().split("; Override")[0].rstrip())
a.raw(f"; @launch grid=(256,1,1) block=(512,1,1) lds={LDS_BYTES}")
a.raw('.amdgcn_target "amdgcn-amd-amdhsa--gfx950"')
a.raw(".text")
a.raw(f".globl {KN}\n.p2align 8\n.type {KN},@function\n{KN}:")
a("s_cmp_ge_u32 s2, 256")
a("s_cbranch_scc1 L_end")
a("s_load_dwordx16 s[16:31], s[0:1], 0")
a("s_load_dwordx8 s[32:39], s[0:1], 64")
a("s_load_dwordx2 s[40:41], s[0:1], 96")
if DIAG:
    a("s_memtime s[100:101]" if CYC else "s_memrealtime s[100:101]")
    nstamp["g"] = nstamp["c"] = 1
a("s_getpc_b64 s[64:65]")
a("L_pc:")
a("s_and_b32 s65, s65, 0xffff")
a("s_mov_b32 s66, L_code_end-L_pc")
a("s_mov_b32 s67, 0x00020000")
a("v_lshlrev_b32 v1, 7, v0")
a("buffer_load_dword v254, v1, s[64:67], 0 offen")
a("v_lshrrev_b32 v1, 6, v0")
a("v_and_b32 v0, 63, v0")
a(f"v_readfirstlane_b32 s{sWAVE}, v1")
a("v_lshlrev_b32 v1, 4, v0")
a(f"s_and_b32 s{sXCD}, s2, 7")
a(f"s_lshr_b32 s{sSLOT}, s2, 3")
if MAP48:
    a(f"s_lshl_b32 s{sT0}, s{sXCD}, 2")
    a(f"s_and_b32 s{sI1}, s{sSLOT}, 3")
    a(f"s_add_u32 s{sI1}, s{sI1}, s{sT0}")
    a(f"s_lshr_b32 s{sJ1}, s{sSLOT}, 2")
else:
    a(f"s_lshr_b32 s{sT0}, s{sXCD}, 1")
    a(f"s_lshl_b32 s{sT0}, s{sT0}, 3")
    a(f"s_and_b32 s{sI1}, s{sSLOT}, 7")
    a(f"s_add_u32 s{sI1}, s{sI1}, s{sT0}")
    a(f"s_and_b32 s{sT0}, s{sXCD}, 1")
    a(f"s_lshl_b32 s{sT0}, s{sT0}, 2")
    a(f"s_lshr_b32 s{sJ1}, s{sSLOT}, 3")
    a(f"s_add_u32 s{sJ1}, s{sJ1}, s{sT0}")
a(f"v_mov_b32 v2, {L_SYNC}")
a(f"s_cmp_ge_u32 s{sWAVE}, 4")
a("s_cbranch_scc1 L_conv")

vL16, vSYNC = 1, 2
vX, vD0, vD1, vD2, vA0, vT0, vT1, vT2, vW2, vB0, vB1 = 3, 4, 5, 6, 7, 8, 9, 10, 11, 12, 13
ACC1, CS, F0, F1, TMP, WR = 16, 64, 76, 104, 132, 160
FB = [F0, F1]
ONES, vA, vFA, vFB = TMP, TMP + 4, TMP + 5, TMP + 6
vTG = TMP + 27
vm = VM()
vm.issue("PF")
a("v_lshrrev_b32 v14, 4, v0")
a("v_and_b32 v14, 2, v14")
a("v_xor_b32 v14, v14, v0")
a("v_and_b32 v14, 3, v14")
a("v_lshrrev_b32 v15, 2, v0")
a(f"v_mul_u32_u24 v{vD0}, {W1RS}, v15")
a(f"v_lshl_add_u32 v{vD0}, v14, 4, v{vD0}")
a(f"v_add_u32 v{vD1}, {16*W1RS-1024}, v{vD0}")
a("v_bfe_u32 v14, v0, 1, 2")
a("v_lshrrev_b32 v15, 5, v0")
a("v_lshl_add_u32 v14, v15, 2, v14")
a("v_bfe_u32 v15, v0, 3, 2")
a("v_lshl_add_u32 v14, v15, 3, v14")
a(f"v_mul_u32_u24 v14, {W1RS}, v14")
a("v_and_b32 v15, 1, v0")
a(f"v_lshl_add_u32 v{vD2}, v15, 4, v14")
a(f"s_mul_i32 s{sT0}, s{sJ1}, 43")
a(f"s_add_u32 s{sT1}, s{sT0}, 35")
a(f"s_lshr_b32 s{sT0}, s{sT0}, 3")
a(f"s_lshr_b32 s{sT1}, s{sT1}, 3")
a(f"s_sub_u32 s{sT1}, s{sT1}, s{sT0}")
a(f"s_lshl_b32 s{sT2}, s{sWAVE}, 3")
a(f"s_lshr_b32 s{sT2}, 0x05030200, s{sT2}")
a(f"s_and_b32 s{sT2}, s{sT2}, 7")
a(f"s_min_u32 s{sT2}, s{sT2}, s{sT1}")
a(f"s_add_u32 s{sHF}, s{sT0}, s{sT2}")
a(f"s_lshl_b32 s{sG}, s{sHF}, 6")
a(f"s_lshr_b32 s{sT2}, s{sWAVE}, 1")
a(f"s_mul_i32 s{sT2}, s{sT2}, 3")
a(f"s_add_u32 s{sT2}, s{sT2}, 1")
a(f"s_add_u32 s{sHH}, s{sT0}, s{sT2}")
a(f"s_cmp_lt_u32 s{sT2}, s{sT1}")
a(f"s_cselect_b32 s9, 0, {OOB}")
a(f"s_lshl_b32 s{sGH}, s{sHH}, 1")
a(f"s_and_b32 s{sT2}, s{sWAVE}, 1")
a(f"s_add_u32 s{sGH}, s{sGH}, s{sT2}")
a(f"s_lshl_b32 s{sGH}, s{sGH}, 5")
a(f"s_add_u32 s{sGH}, s{sGH}, s9")
if MAP48:
    a(f"s_and_b32 s{sT0}, s{sSLOT}, 3")
    a(f"s_lshl_b32 s{sT0}, s{sT0}, 1")
else:
    a(f"s_and_b32 s{sT0}, s{sSLOT}, 7")
a(f"s_mul_i32 s{sK}, s{sT0}, {2*32*W1RS}")
sKX = sI2
a(f"s_lshl_b32 s{sKX}, s{sT0}, 7")
a(f"s_mul_i32 s{sRING}, s{sWAVE}, {RINGB}")
a(f"s_add_u32 s{sRING}, s{sRING}, {L_RING}")


def w1_refill(slot, tag):
    vm.issue(tag, 3)
    return [
        f"s_add_u32 m0, s{sRING}, {slot*3072}\ns_add_u32 s{sT1}, s{sG}, s{sK}\n"
        f"buffer_load_dwordx4 v{vD0}, s[{S_W1}:{S_W1+3}], s{sT1} offen lds",
        f"s_add_u32 s{sT2}, s{sGH}, s{sK}\n"
        f"buffer_load_dwordx4 v{vD1}, s[{S_W1}:{S_W1+3}], s{sT1} offen offset:1024 lds",
        f"s_add_u32 m0, s{sRING}, {slot*3072+2048}\ns_add_u32 s{sK}, s{sK}, {32*W1RS}\n"
        f"buffer_load_dwordx4 v{vD2}, s[{S_W1}:{S_W1+3}], s{sT2} offen lds\n"
        f"s_cmp_eq_u32 s{sK}, {512*W1RS}\ns_cselect_b32 s{sK}, 0, s{sK}",
    ]


a("v_and_b32 v14, 15, v0")
a(f"v_lshrrev_b32 v{vFA}, 4, v0")
a(f"v_xor_b32 v15, v14, v{vFA}")
a("v_and_b32 v15, 3, v15")
a("v_lshlrev_b32 v15, 4, v15")
a("v_lshl_add_u32 v15, v14, 10, v15")
a("v_lshrrev_b32 v14, 2, v14")
a(f"v_lshl_add_u32 v{vA0}, v14, 6, v15")
a(f"v_lshl_add_u32 v15, v{vFA}, 3, v14")
a("v_lshlrev_b32 v15, 6, v15")
a(f"v_and_b32 v{vT0}, 1, v{vFA}")
a(f"v_lshl_add_u32 v15, v{vT0}, 5, v15")
a(f"v_and_b32 v{vT0}, 3, v0")
a(f"v_lshl_add_u32 v15, v{vT0}, 3, v15")
a(f"v_add_u32 v{vT0}, s{sRING}, v15")
a(f"v_xor_b32 v{vT1}, 32, v{vT0}")
a(f"v_lshlrev_b32 v{vT2}, 3, v0")
a(f"v_add_u32 v{vT2}, s{sRING}, v{vT2}")
for i in range(4):
    a(f"v_mov_b32 v{ONES+i}, 0x3f803f80")
sXR, sXB = 72, 73
a(f"s_lshl_b32 s{sQ}, s{sWAVE}, 14")
a(f"s_lshl_b32 s{sXB}, s{sI1}, 16")
a(f"s_lshl_b32 s{sXR}, s{sJ1}, 12")
XO = WR
for k in range(4):
    a(f"s_add_u32 s{sT1}, s{sJ1}, {k}")
    a(f"s_and_b32 s{sT1}, s{sT1}, 3")
    a(f"s_lshl_b32 s{sT3}, s{sT1}, 6")
    a(f"v_xor_b32 v{XO+4*k}, s{sT3}, v{vL16}")
    for r in range(1, 4):
        a(f"v_xor_b32 v{XO+4*k+r}, {16*r}, v{XO+4*k}")
    a(f"s_lshl_b32 s{sT1}, s{sT1}, 12")
    a(f"s_add_u32 s{74+k}, s{sT1}, s{sQ}")
a("s_mov_b32 s46, 2097152")
a("s_mov_b32 s47, 0x00020000")
a(f"s_mov_b32 s50, {512*1376*2}")
a("s_mov_b32 s51, 0x00020000")
a("s_waitcnt lgkmcnt(0)")
if DIAG:
    a(f"s_mov_b32 s{STAMP0}, s100")
a("s_barrier")
a("s_mov_b32 s44, s16")
a("s_and_b32 s45, s17, 0xffff")
a("s_mov_b32 s48, s32")
a("s_and_b32 s49, s33, 0xffff")
W1FIRST = opt("w1first", 0)
def x_group(k):
    a(f"s_mov_b32 m0, s{74+k}")
    a(f"s_add_u32 s{sT1}, s{74+k}, s{sXB}")
    for r in range(4):
        a(f"buffer_load_dwordx4 v{XO+4*k+r}, s[{S_X}:{S_X+3}], s{sT1} offen offset:{1024*r} lds")
    vm.issue("X", 4)
if W1FIRST == 1:
    for k in range(4):
        x_group(k)
        if k < 3:
            emit(w1_refill(k, f"W{k}"))
elif W1FIRST == 3:
    for sl in range(2):
        emit(w1_refill(sl, f"W{sl}"))
    for k in range(4):
        x_group(k)
    emit(w1_refill(2, "W2"))
elif W1FIRST == 4:
    x_group(0)
    for sl in range(2):
        emit(w1_refill(sl, f"W{sl}"))
    for k in range(1, 4):
        x_group(k)
    emit(w1_refill(2, "W2"))
elif W1FIRST == 2:
    for sl in range(3):
        emit(w1_refill(sl, f"W{sl}"))
    for k in range(4):
        x_group(k)
else:
    for k in range(4):
        x_group(k)
    for sl in range(3):
        emit(w1_refill(sl, f"W{sl}"))
stamp("g")
a("s_setprio 3")
vPW = TMP + 8
a("v_mov_b32 v14, 1")
a(f"s_lshl_b32 s{sT0}, s{sWAVE}, 2")
a(f"v_add_u32 v{vPW}, s{sT0}, v{vSYNC}")
vm.wait("X")
a("s_mov_b64 exec, 1")
a(f"ds_add_u32 v{vSYNC}, v14")
a(f"ds_add_u32 v{vPW}, v14 offset:80")
a("s_mov_b64 exec, -1")
stamp("g")

u0, u1, u2 = 34, 35, 36
late = []
sOWN = 29
late += [f"s_mov_b32 s{sOWN}, s{sHF}"]
late += srd_l(S_WS, 40, WSB) + srd_l(S_DBG, 38, 256) + srd_l(S_W2, 34, 512 * 1376 * 2) + srd_l(S_OUT, 36, 2048 * 512 * 2)
late += [f"v_mov_b32 v{vFB}, 0",
         f"buffer_load_dword v{vTG}, v{vFB}, s[{S_DBG}:{S_DBG+3}], 0 offen sc1",
         f"s_mov_b32 s{sJ2}, s{sJ1}",
         f"s_mul_i32 s{u0}, s{sI1}, 43", f"s_add_u32 s{sHF}, s{sHF}, s{u0}", f"s_lshl_b32 s{sHF}, s{sHF}, 12",
         f"s_add_u32 s{sHF}, s{sHF}, {HB}", f"s_add_u32 s{sHH}, s{sHH}, s{u0}", f"s_lshl_b32 s{sHH}, s{sHH}, 12",
         f"s_add_u32 s{sHH}, s{sHH}, s9", f"s_and_b32 s{u1}, s{sWAVE}, 1", f"s_lshl_b32 s{u1}, s{u1}, 11",
         f"s_add_u32 s{u1}, s{u1}, {HB}", f"s_add_u32 s{sHH}, s{sHH}, s{u1}",
         f"s_lshl_b32 s{u0}, s{sI1}, 3", f"s_add_u32 s{u0}, s{u0}, s{sJ1}", f"s_lshl_b32 s{u0}, s{u0}, 2",
         f"s_add_u32 s{u0}, s{u0}, s{sWAVE}", f"s_lshl_b32 s{u0}, s{u0}, 4", f"s_add_u32 s{sPEND}, s{u0}, {HF}",
         f"v_bfe_u32 v{vFB}, v0, 2, 2", f"v_lshl_add_u32 v{vB0}, v{vFA}, 2, v{vFB}", f"v_lshlrev_b32 v{vB0}, 7, v{vB0}",
         f"v_lshrrev_b32 v{vFB}, 1, v{vFB}", f"v_lshl_add_u32 v{vB0}, v{vFB}, 6, v{vB0}", f"v_and_b32 v{vFB}, 3, v0",
         f"v_lshl_add_u32 v{vB0}, v{vFB}, 4, v{vB0}",
         f"v_add_u32 v{vX}, s{sRING}, v{vB0}", f"v_add_u32 v{vB0}, s{sQ}, v{vB0}", f"v_xor_b32 v{vB1}, 64, v{vB0}",
         f"v_lshrrev_b32 v{vW2}, 2, v0", f"v_and_b32 v{vW2}, 4, v{vW2}", f"v_xor_b32 v{vW2}, v{vW2}, v0",
         f"v_and_b32 v{vW2}, 7, v{vW2}", f"v_lshlrev_b32 v{vW2}, 4, v{vW2}", f"v_lshrrev_b32 v{vFB}, 3, v0",
         f"v_lshl_add_u32 v{vW2}, v{vFB}, 10, v{vW2}",
         f"s_lshl_b32 s{u1}, s{sJ2}, 7", f"v_add_u32 v{vW2}, s{u1}, v{vW2}",
         f"v_and_b32 v{vFB}, 15, v0", f"v_lshlrev_b32 v{vFB}, 3, v{vFB}", f"v_add_u32 v{vFB}, {L_STAT}, v{vFB}",
         f"s_mov_b32 s32, 0xbfb8aa3b", f"s_mov_b32 s33, 0xbfb8aa3b",
         f"s_add_u32 s{u0}, s{sJ2}, 1",
         f"s_lshl_b32 s{u2}, s{sWAVE}, 3", f"s_lshr_b32 s{u2}, 0x05030200, s{u2}", f"s_and_b32 s{u2}, s{u2}, 7"]
late += [f"s_mov_b32 s{sKS}, s{sOWN}", f"s_and_b32 s28, s{sJ2}, 3"]
for n in range(7):
    late += [f"s_add_u32 s{u1}, s28, {n}\ns_sub_u32 s37, s{u1}, 7\ns_cmp_ge_u32 s{u1}, 7\ns_cselect_b32 s{u1}, s37, s{u1}",
             f"s_add_u32 s{u1}, s{u1}, s{u0}", f"s_and_b32 s{u1}, s{u1}, 7", f"s_mul_i32 s{u1}, s{u1}, 43",
             f"s_add_u32 s37, s{u1}, 35", f"s_lshr_b32 s{u1}, s{u1}, 3", f"s_lshr_b32 s37, s37, 3",
             f"s_add_u32 s{u1}, s{u1}, s{u2}", f"s_min_u32 s{sKS+1+n}, s{u1}, s37"]
for m in range(2):
    late += [f"s_add_u32 s{u1}, s{u0}, s{sWAVE}", f"s_add_u32 s{u1}, s{u1}, {4*m}", f"s_and_b32 s{u1}, s{u1}, 7",
             f"s_mul_i32 s{u1}, s{u1}, 43", f"s_lshr_b32 s{u1}, s{u1}, 3", f"s_add_u32 s{sKS+8+m}, s{u1}, 1"]
late += [f"s_lshl_b32 s{u1}, s{sWAVE}, 4", f"s_add_u32 s{u1}, s{u1}, 14", f"s_min_u32 s{u1}, s{u1}, 41",
         f"s_cmp_eq_u32 s{sWAVE}, 3\ns_cselect_b32 s{sKS+10}, 0x10000, s{u1}"]
sNEG = 32
lds_wait(vSYNC, 0, 4, 14)
stamp("g")


def g1_reads(b, slot):
    f = FB[b]
    L = [f"v_xor_b32 v{vA}, s{sKX}, v{vA0}\n"
         f"ds_read_b64_tr_b16 {vr(f,2)}, v{vT0} offset:{slot*3072}",
         f"ds_read_b64_tr_b16 {vr(f+2,2)}, v{vT0} offset:{slot*3072+256}",
         f"ds_read_b128 {vr(f+12,4)}, v{vA}",
         f"ds_read_b128 {vr(f+16,4)}, v{vA} offset:16384"]
    for hh in range(2):
        L.append(f"ds_read_b64_tr_b16 {vr(f+4+2*hh,2)}, v{vT1} offset:{slot*3072+256*hh}")
    L.append(f"ds_read_b128 {vr(f+20,4)}, v{vA} offset:32768")
    L.append(f"ds_read_b128 {vr(f+24,4)}, v{vA} offset:49152\ns_add_u32 s{sKX}, s{sKX}, 64\ns_and_b32 s{sKX}, s{sKX}, 0x3c0")
    for hh in range(2):
        L.append(f"ds_read_b64_tr_b16 {vr(f+8+2*hh,2)}, v{vT2} offset:{slot*3072+2048+512*hh}")
    return L


a(f"s_setprio {PG1}")
vm.wait("W0")
emit(g1_reads(0, 0))
for n in range(16):
    f = FB[n & 1]
    mf = []
    for ct in range(3):
        for rt in range(4):
            ac = ACC1 + (ct * 4 + rt) * 4
            mf.append(f"v_mfma_f32_16x16x32_bf16 {vr(ac,4)}, {vr(f+4*ct,4)}, {vr(f+12+4*rt,4)}, {'0' if n == 0 else vr(ac,4)}")
        mf.append(f"v_mfma_f32_16x16x32_bf16 {vr(CS+4*ct,4)}, {vr(f+4*ct,4)}, {vr(ONES,4)}, {'0' if n == 0 else vr(CS+4*ct,4)}")
    a("s_waitcnt lgkmcnt(0)")
    head = w1_refill(n % 3, f"W{n+3}") if n + 3 < 16 else []
    merge(mf[:3], head)
    if n == 0:
        a("v_mov_b32 v14, 1")
    if n == opt("tstep", 12):
        lds_arrive(vSYNC, 30, 14)
    if n == opt("pstep", 9) and opt("umode", 1) == 2:
        lds_arrive(vSYNC, 31, 14)
    fill = []
    if n + 1 < 16:
        vm.wait(f"W{n+1}")
        fill = g1_reads((n + 1) & 1, (n + 1) % 3)
    for i, m in enumerate(mf[3:]):
        a(m)
        if fill:
            a(fill.pop(0))
        for _ in range(1 if n < 8 else 2):
            if late and n >= 1:
                t = late.pop(0)
                a(t)
                if "buffer_load" in t:
                    vm.issue("TG")
    if n in (3, 7, 11):
        stamp("g")
assert not late, len(late)
stamp("g")


def area_base(ar):
    return (sRING, 4096 * ar) if ar < 2 else (sQ, 4096 * (ar - 2))


def w2_dma(n, ar):
    sb, off = area_base(ar)
    L = [f"s_add_u32 m0, s{sb}, {off}\ns_lshl_b32 s{sT1}, s{sKS+n}, 15\n"
         f"buffer_load_dwordx4 v{vW2}, s[{S_W2}:{S_W2+3}], s{sT1} offen lds"]
    for u in range(1, 4):
        L.append(f"s_add_u32 s{sT2}, s{sT1}, {7168*u}\n"
                 f"buffer_load_dwordx4 v{vW2}, s[{S_W2}:{S_W2+3}], s{sT2} offen offset:{1024*u} lds")
    vm.issue(f"D{n}", 4)
    return L


vBR0, vBR1, vBQ0, vBQ1 = vX, vD0, vB0, vB1
def w2_reads(ws, ar):
    w = WR + 16 * ws
    b0, b1 = (vBR0, vBR1) if ar < 2 else (vBQ0, vBQ1)
    off = area_base(ar)[1]
    return [f"ds_read_b64_tr_b16 {vr(w+4*ct+2*hh,2)}, v{b1 if ct >> 1 else b0} offset:{off+8*(ct&1)+2048*hh}"
            for ct in range(4) for hh in range(2)]


a(f"s_setprio {PEPI}")
STR = F0
early = []
if not NOCONV:
    lds_wait(vSYNC, 3, 4, 14)
for rt in range(4):
    a(f"ds_read_b64 {vr(STR+2*rt,2)}, v{vFB} offset:{128*rt}")
XT = 148
a(f"s_lshl_b32 s{sT0}, s{sJ1}, 7")
a(f"s_add_u32 s{sT0}, s{sT0}, s{sQ}")
a(f"v_xor_b32 v{vA}, s{sT0}, v{vA0}")
a(f"v_xor_b32 v{vFA}, 64, v{vA}")
a(f"ds_read_b128 {vr(XT,4)}, v{vA}")
a(f"ds_read_b128 {vr(XT+4,4)}, v{vFA}")
a("v_mov_b32 v14, 1")
lds_arrive(vSYNC, 1, 14)
a(f"v_xor_b32 v{vBR1}, 64, v{vBR0}")
a("s_waitcnt lgkmcnt(0)")
T, PKR = F0 + 8, F0 + 24
HOWN = 240
for rt in range(4):
    rs = STR + 2 * rt
    for ct in range(3):
        for hf in range(2):
            ac = ACC1 + (ct * 4 + rt) * 4 + 2 * hf
            a(f"v_pk_mul_f32 {vr(ac,2)}, {vr(ac,2)}, {vr(rs,2)} op_sel_hi:[1,0]")
            a(f"v_pk_fma_f32 {vr(PKR+8+4*ct+2*hf,2)}, {vr(CS+4*ct+2*hf,2)}, {vr(rs,2)}, {vr(ac,2)} op_sel:[0,1,0] op_sel_hi:[1,1,1] neg_lo:[0,1,0] neg_hi:[0,1,0]")
    if early:
        a(early.pop(0))
    silu_pk(PKR + 8, T, 12, sNEG)
    if early:
        a(early.pop(0))
    pk = HOWN + 4 * rt
    hq = PKR + 28 + (0 if rt < 2 else 12)
    hq = 120 if rt < 2 else 124
    for i in range(4):
        a(f"v_cvt_pk_bf16_f32 v{pk+i}, v{PKR+8+2*i}, v{PKR+8+2*i+1}")
    for i in range(2):
        a(f"v_cvt_pk_bf16_f32 v{hq+2*(rt&1)+i}, v{PKR+16+2*i}, v{PKR+16+2*i+1}")
    a(f"buffer_store_dwordx4 {vr(pk,4)}, v{vL16}, s[{S_WS}:{S_WS+3}], s{sHF} offen offset:{1024*rt} sc1")
    if rt & 1:
        a(f"buffer_store_dwordx4 {vr(hq,4)}, v{vL16}, s[{S_WS}:{S_WS+3}], s{sHH} offen offset:{1024*(rt>>1)} sc1")
    DUP = opt("dup", 0)
    if DUP:
        fl = ["", "", "nt", "sc0"][DUP]
        a(f"buffer_store_dwordx4 {vr(pk,4)}, v{vL16}, s[{S_WS}:{S_WS+3}], s{sHF} offen offset:{1024*rt} {fl}")
        if rt & 1:
            a(f"buffer_store_dwordx4 {vr(hq,4)}, v{vL16}, s[{S_WS}:{S_WS+3}], s{sHH} offen offset:{1024*(rt>>1)} {fl}")
assert not early
vm.issue("S", 6)
a("v_mov_b32 v14, 1")
lds_arrive(vPW, 16, 14)
stamp("g")
a("v_mov_b32 v15, 0")
get_tag(vTG, 15)
fst_on = True
fst()
lds_wait(vSYNC, 1, 4, 14)
FF = opt("flagfirst", 0)
if not FF:
    emit(w2_dma(0, 0) + w2_dma(1, 1))
fst()
ACC2, HFR = 16, 80
SR = 128
vH, vXO, vSO, vFL, vP = 5, 9, 10, 14, 15
a(f"s_mov_b32 s{sI2}, s{sI1}")
for rp in range(4):
    a(f"s_xor_b32 s{sT0}, s{sWAVE}, {rp}")
    a(f"s_lshl_b32 s{sT0}, s{sT0}, 10")
    a(f"v_add_u32 v{vH+rp}, s{sT0}, v{vL16}")
a(f"s_lshl_b32 s{sG}, s{sI2}, 9")
a(f"s_add_u32 s{sG}, s{sG}, {HF}")
a(f"s_mul_i32 s{sK}, s{sI2}, {43*4096}")
a(f"s_add_u32 s{sK}, s{sK}, {HB}")
sSF = sHF
a("v_and_b32 v14, 15, v0")
a("v_lshrrev_b32 v15, 4, v0")
a("v_lshlrev_b32 v15, 4, v15")
a(f"v_lshl_add_u32 v{vXO}, v14, 10, v15")
a(f"s_lshl_b32 s9, s{sI2}, 16")
a(f"s_add_u32 s9, s9, s{sQ}")
a(f"s_lshl_b32 s{sT1}, s{sJ2}, 7")
a(f"s_add_u32 s9, s9, s{sT1}")
a("v_lshrrev_b32 v14, 3, v0")
a("v_bfe_u32 v15, v0, 2, 1")
a("v_lshlrev_b32 v15, 9, v15")
a(f"v_lshl_add_u32 v{vSO}, v14, 12, v15")
a("v_and_b32 v14, 3, v0")
a(f"v_lshl_add_u32 v{vSO}, v14, 4, v{vSO}")
a(f"s_lshr_b32 s{sT1}, s{sI2}, 3")
a(f"s_lshl_b32 s{sT1}, s{sT1}, 10")
a(f"s_bfe_u32 s{sT2}, s{sI2}, 0x10002")
a(f"s_lshl_b32 s{sT2}, s{sT2}, 8")
a(f"s_add_u32 s{sT1}, s{sT1}, s{sT2}")
a(f"s_and_b32 s{sT0}, s{sI2}, 3")
a(f"s_lshl_b32 s{sT0}, s{sT0}, 6")
a(f"s_add_u32 s{sT1}, s{sT1}, s{sT0}")
a(f"s_lshl_b32 s{sT0}, s{sJ2}, 18")
a(f"s_add_u32 s{sT1}, s{sT1}, s{sT0}")
a(f"s_lshl_b32 s{sT0}, s{sWAVE}, 16")
a(f"s_add_u32 s{sT1}, s{sT1}, s{sT0}")
a(f"s_add_u32 s{sGH}, s{sT1}, {ST}")
a(f"s_lshl_b32 s{sT0}, s{sJ2}, 1")
a(f"s_lshr_b32 s{sT1}, s{sI2}, 4")
a(f"s_add_u32 s{sT0}, s{sT0}, s{sT1}")
a(f"s_lshl_b32 s{sT0}, s{sT0}, 10")
a(f"s_lshl_b32 s{sT1}, s{sWAVE}, 8")
a(f"s_add_u32 s{sT0}, s{sT0}, s{sT1}")
a(f"s_add_u32 s{sSF}, s{sT0}, {SF}")
a("v_mov_b32 v15, 0")
vm.wait("S")
publish(f"s{sPEND}", 14, 15)
vm.issue("F")
stamp("g")
a(f"s_setprio {PG1}")
for n in range(0 if FF else 2, 6):
    emit(w2_dma(n, n))
a(f"v_and_b32 v{vFL}, 0x1ff, v{vL16}")
fst()
def h_loads(n):
    hs = n % 4
    L = []
    for rp in range(4):
        pre = f"s_lshl_b32 s{sT1}, s{sKS+n}, 12\ns_add_u32 s{sT1}, s{sT1}, s{sK}\n" if rp == 0 else ""
        if n == 8 and rp == 0:
            pre += (f"s_lshl_b32 s{sT0}, s{sWAVE}, 1\ns_lshr_b32 s{sT2}, s{sWAVE}, 1\ns_or_b32 s{sT0}, s{sT0}, s{sT2}\n"
                    f"s_and_b32 s{sT0}, s{sT0}, 3\ns_lshl_b32 s{sT0}, s{sT0}, 10\nv_add_u32 v{vH}, s{sT0}, v{vL16}\n")
            for i in range(1, 4):
                pre += f"v_xor_b32 v{vH+i}, {1024*i}, v{vH}\n"
        src = vH + rp if n < 8 else vH + 2 * (rp & 1) + (rp >> 1)
        L.append(pre + f"buffer_load_dwordx4 {vr(HFR+16*hs+4*rp,4)}, v{src}, s[{S_WS}:{S_WS+3}], s{sT1} offen sc1")
    vm.issue(f"H{n}", 4)
    return L


def h_fix(n):
    b = HFR + 16 * (n % 4)
    od, dn = a.label("HO"), a.label("HD")
    a(f"s_bitcmp1_b32 s{sWAVE}, 0")
    a(f"s_cbranch_scc1 {od}")
    for pp in range(2):
        for i in range(2):
            a(f"v_swap_b32 v{b+8*pp+2+i}, v{b+8*pp+4+i}")
    a(f"s_branch {dn}")
    a(f"{od}:")
    for pp in range(2):
        for i in range(2):
            a(f"v_swap_b32 v{b+8*pp+i}, v{b+8*pp+6+i}")
    a(f"{dn}:")
    a("s_nop 1")


PPOS, HPOS = opt("ppos", 3), opt("hpos", 5)
for n in range(6):
    vm.wait(f"D{n}")
    emit(w2_reads(n, n))
    if n >= 1:
        a("s_waitcnt lgkmcnt(8)")
        emit(w2_dma(5 + n, n - 1))
    if n == 1:
        labs = [a.label("OW") for _ in range(5)]
        for v in range(1, 4):
            a(f"s_cmp_eq_u32 s{sWAVE}, {v}")
            a(f"s_cbranch_scc1 {labs[v]}")
        for v in range(4):
            a(f"{labs[v]}:")
            for rt in range(4):
                for ct in range(4):
                    ac = ACC2 + (ct * 4 + (rt ^ v)) * 4
                    a(f"v_mfma_f32_16x16x32_bf16 {vr(ac,4)}, {vr(WR+4*ct,4)}, {vr(HOWN+4*rt,4)}, 0")
            if v < 3:
                a(f"s_branch {labs[4]}")
        a(f"{labs[4]}:")
    if n == PPOS:
        a(f"buffer_load_dword v{vP}, v{vFL}, s[{S_WS}:{S_WS+3}], s{sG} offen sc1")
        vm.issue("HP")
    if n == HPOS:
        stamp("g")
        dn = a.label("HOK")
        vm.wait("HP")
        a(f"v_cmp_ne_u32 vcc, s{sTAG}, v{vP}")
        a("s_nop 1")
        a("s_cmp_eq_u64 vcc, 0")
        a(f"s_cbranch_scc1 {dn}")
        poll_flags(vFL, f"s{sG}", vP)
        a(f"{dn}:")
        stamp("g")
        for k in range(1, 4):
            emit(h_loads(k))
a(f"v_and_b32 v{vFL}, 0xff, v{vL16}")
vRW, vSW2 = 156, 157
a(f"v_add_u32 v{vRW}, s{sQ}, v{vL16}")
a(f"v_lshrrev_b32 v{vSW2}, 3, v0")
a(f"v_lshlrev_b32 v{vSW2}, 7, v{vSW2}")
a("v_and_b32 v158, 3, v0")
a(f"v_lshl_add_u32 v{vSW2}, v158, 5, v{vSW2}")
a("v_bfe_u32 v158, v0, 2, 1")
a(f"v_lshl_add_u32 v{vSW2}, v158, 4, v{vSW2}")
a(f"v_add_u32 v{vSW2}, s{sRING}, v{vSW2}")
a("v_lshrrev_b32 v158, 5, v0")
a(f"v_mul_u32_u24 v158, {RINGB}, v158")
a("v_bfe_u32 v159, v0, 4, 1")
a("v_lshl_add_u32 v158, v159, 10, v158")
a("v_bfe_u32 v159, v0, 2, 2")
a("v_lshl_add_u32 v158, v159, 7, v158")
a("v_and_b32 v159, 3, v0")
a("v_lshl_add_u32 v158, v159, 3, v158")
a(f"s_lshl_b32 s{sT0}, s{sWAVE}, 5")
a(f"s_add_u32 s{sT0}, s{sT0}, {L_RING}")
a(f"v_add_u32 v158, s{sT0}, v158")
a("v_mov_b32 v159, 1")
for n in range(1, 11):
    ws, hs = n % 6, n % 4
    mf = []
    for rp in (1, 2, 3, 0):
        for ct in range(4):
            ac = ACC2 + (ct * 4 + rp) * 4
            mf.append(f"v_mfma_f32_16x16x32_bf16 {vr(ac,4)}, {vr(WR+16*ws+4*ct,4)}, {vr(HFR+16*hs+4*rp,4)}, {vr(ac,4)}")
    vm.wait(f"H{n}")
    if n >= 8:
        h_fix(n)
    if n == 1 or n >= 6:
        a("s_waitcnt lgkmcnt(0)")
    if 1 <= n <= 5:
        vm.wait(f"D{n+5}")
    fill = h_loads(n + 3) if n + 3 < 11 else []
    if n == 8 and not NOCONV:
        fill = [f"buffer_load_dword v{vP}, v{vFL}, s[{S_WS}:{S_WS+3}], s{sSF} offen sc1"]
        vm.issue("SP")
    if 1 <= n <= 5:
        vm.wait(f"D{n+5}")
        fill += w2_reads((n + 5) % 6, n - 1)
    if n == 9:
        for rp in range(1, 4):
            fill += [f"s_xor_b32 s{sT0}, s{sWAVE}, {rp}\ns_lshl_b32 s{sT0}, s{sT0}, 14\nv_add_u32 v{vH+rp}, s{sT0}, v{vL16}"]
    if n == 10:
        emit(mf[:7])
        wr = [f"ds_write_b128 v{vRW}, {vr(ACC2+(ct*4+rp)*4,4)} offset:{(rp-1)*4096+ct*1024}" for rp in range(1, 4) for ct in range(4)]
        merge(mf[7:], wr)
    else:
        merge(mf, fill)
    if n in (1, 3, 5, 7, 8):
        fst()
    if n == 9:
        if not NOCONV:
            dn = a.label("SOK")
            vm.wait("SP")
            a(f"v_cmp_ne_u32 vcc, s{sTAG}, v{vP}")
            a("s_nop 1")
            a("s_cmp_eq_u64 vcc, 0")
            a(f"s_cbranch_scc1 {dn}")
            poll_flags(vFL, f"s{sSF}", vP)
            a(f"{dn}:")
        a(f"s_add_u32 s{sT2}, s{sGH}, {8*4096}")
        a(f"buffer_load_dwordx4 {vr(SR,4)}, v{vSO}, s[{S_WS}:{S_WS+3}], s{sGH} offen sc1")
        a(f"buffer_load_dwordx4 {vr(SR+4,4)}, v{vSO}, s[{S_WS}:{S_WS+3}], s{sT2} offen sc1")
        vm.issue("SL", 2)
stamp("g")
a(f"s_setprio {PEPI}")
a("s_waitcnt vmcnt(0)")
a(f"ds_write_b128 v{vSW2}, {vr(SR,4)}")
a(f"ds_write_b128 v{vSW2}, {vr(SR+4,4)} offset:1024")
lds_arrive(vSYNC, 2, 159)
lds_wait(vSYNC, 2, 4, 14)
stamp("g")
PR = HFR
for rp in range(1, 4):
    for ct in range(4):
        a(f"ds_read_b128 {vr(PR+16*(rp-1)+4*ct,4)}, v{vH+rp} offset:{(rp-1)*4096+ct*1024}")
O = WR
for sidx in range(3):
    a(f"s_waitcnt lgkmcnt({8-4*sidx})")
    for ct in range(4):
        for hf in range(2):
            src = (ACC2 + ct * 16 + 2 * hf) if sidx == 0 else (O + 4 * ct + 2 * hf)
            a(f"v_pk_add_f32 {vr(O+4*ct+2*hf,2)}, {vr(src,2)}, {vr(PR+16*sidx+4*ct+2*hf,2)}")
for ct in range(4):
    a(f"ds_read_b64_tr_b16 {vr(SR+2*ct,2)}, v158 offset:{512*(ct&1)+2*RINGB*(ct>>1)}")
silu_pk(O, O + 16, 16, sNEG)
a("s_waitcnt lgkmcnt(0)")
for ct in range(4):
    for hf in range(2):
        sdw = SR + 2 * ct + hf
        xdw = XT + 2 * ct + hf
        t = O + 16 + 4 * (2 * (ct & 1) + hf)
        a(f"v_lshlrev_b32 v{t}, 16, v{sdw}")
        a(f"v_and_b32 v{t+1}, 0xffff0000, v{sdw}")
        a(f"v_lshlrev_b32 v{t+2}, 16, v{xdw}")
        a(f"v_and_b32 v{t+3}, 0xffff0000, v{xdw}")
        a(f"v_pk_fma_f32 {vr(t,2)}, {vr(t,2)}, {vr(O+4*ct+2*hf,2)}, {vr(t+2,2)}")
        a(f"v_cvt_pk_bf16_f32 v{xdw}, v{t}, v{t+1}")
    if ct & 1:
        hf = ct >> 1
        a(f"buffer_store_dwordx4 {vr(XT+4*hf,4)}, v{vXO}, s[{S_OUT}:{S_OUT+3}], s9 offen offset:{64*hf} sc1")
stamp("g")
dump_stamps("g")
a("s_endpgm")

a("L_conv:")
sCH, sP, sCB, sDT, sDS, sCW = 10, 11, 6, 7, 9, 12
a(f"s_setprio {opt('pc0', 2)}")
a("v_mov_b32 v15, 0")
a("v_lshlrev_b32 v14, 2, v0")
a(f"v_add_u32 v14, {L_SYNC}, v14")
a(f"s_cmp_lg_u32 s{sWAVE}, 4")
a("s_cbranch_scc1 L_nozero")
a("ds_write_b32 v14, v15")
a("L_nozero:")
a(f"s_lshl_b32 s{sT0}, s{sXCD}, 5")
a(f"s_add_u32 s{sT0}, s{sT0}, s{sSLOT}")
a(f"s_lshl_b32 s{sT1}, s{sT0}, 2")
a(f"s_bfe_u32 s{sT2}, s{sWAVE}, 0x10001")
a(f"s_lshl_b32 s{sCH}, s{sT0}, 1")
a(f"s_add_u32 s{sCH}, s{sCH}, s{sT2}")
a(f"s_and_b32 s{sP}, s{sWAVE}, 1")
a(f"s_and_b32 s{sCW}, s{sWAVE}, 3")
a(f"s_mul_i32 s{sCB}, s{sT2}, {CSTR}")
a(f"s_add_u32 s{sCB}, s{sCB}, {L_CONV}")
a(f"s_lshl_b32 s{sT0}, s{sCH}, 8")
a(f"s_lshl_b32 s{sT3}, s{sP}, 7")
a(f"s_add_u32 s{sT0}, s{sT0}, s{sT3}")
a("v_lshlrev_b32 v3, 1, v0")
for k in range(4):
    a(f"s_mov_b32 s{46+4*k}, {512*128*2}")
    a(f"s_mov_b32 s{47+4*k}, 0x00020000")
a("s_waitcnt lgkmcnt(0)")
if DIAG:
    a(f"s_mov_b32 s{STAMP0}, s100")
for k in range(4):
    a(f"s_mov_b32 s{44+4*k}, s{18+2*k}")
    a(f"s_and_b32 s{45+4*k}, s{19+2*k}, 0xffff")
    a(f"buffer_load_ushort v{4+k}, v3, s[{44+4*k}:{47+4*k}], s{sT0} offen")
a("s_barrier")
a(f"s_load_dword s{sDT}, s[26:27], s{sT1}")
a(f"s_load_dword s{sDS}, s[28:29], s{sT1}")
srd(S_WS, 40, WSB)
srd(S_DBG, 38, 256)
vEP, vTGc, PFD = 255, 254, 248
a(f"s_or_b32 s77, s2, s{sCW}")
a("s_cmp_lg_u32 s77, 0")
a("s_cbranch_scc1 L_noepoch")
a(f"buffer_load_dword v{vEP}, v15, s[{S_WS}:{S_WS+3}], 0 offen sc1")
a("L_noepoch:")
def post_tag():
    a("s_cmp_lg_u32 s77, 0")
    a("s_cbranch_scc1 L_noepoch2")
    a(f"v_add_u32 v14, 0x9e3779b8, v{vEP}")
    a("v_or_b32 v14, 1, v14")
    a("s_mov_b64 exec, 1")
    a(f"buffer_store_dword v14, v15, s[{S_DBG}:{S_DBG+3}], 0 offen sc1")
    a(f"buffer_store_dword v14, v15, s[{S_WS}:{S_WS+3}], 0 offen sc1")
    a("s_mov_b64 exec, -1")
    a("L_noepoch2:")
if NOCONV:
    a("s_waitcnt vmcnt(0)")
    post_tag()
    a("s_endpgm")
V, PK, DT, LOF, HIF, SEL, GA, MK = 64, 96, 112, 144, 160, 176, 208, 227
KD = 52
vKA, vUA, vTKa, vTKb, vTK2, vTK0, vKW, vSA = 231, 232, 233, 234, 235, 236, 237, 238
vXT, vXS, vSTA, vM, vQ, vPS = 242, 246, 247, 252, 253, 3
a(f"v_and_b32 v{vM}, 15, v0")
a(f"v_lshrrev_b32 v{vQ}, 4, v0")
a("v_and_b32 v10, 1, v0")
a("v_lshlrev_b32 v10, 4, v10")
a("v_mov_b32 v11, 0x3f80")
a("v_lshlrev_b32 v10, v10, v11")
a("v_lshrrev_b32 v11, 1, v0")
for g in range(8):
    for d in range(4):
        if d & 1:
            a(f"v_cndmask_b32 v{SEL+4*g+d}, 0, v10, s[74:75]")
        else:
            a(f"v_cmp_eq_u32 vcc, {4*g+d}, v11")
            a(f"v_cmp_eq_u32 s[74:75], {4*g+d+1}, v11")
            a("s_nop 0")
            a(f"v_cndmask_b32 v{SEL+4*g+d}, 0, v10, vcc")
a(f"s_lshl_b32 s{sT0}, s{sP}, 2")
a(f"s_add_u32 s{sT0}, s{sT0}, s{sCB}")
a(f"s_add_u32 s{sT0}, s{sT0}, {C_TK}")
a(f"v_lshrrev_b32 v10, 1, v{vQ}")
a("v_lshlrev_b32 v10, 7, v10")
a(f"v_and_b32 v11, 1, v{vQ}")
a("v_lshl_add_u32 v10, v11, 2, v10")
a(f"v_lshl_add_u32 v10, v{vM}, 3, v10")
a(f"v_lshl_add_u32 v{vTK0}, v10, 3, s{sT0}")
a(f"v_lshlrev_b32 v10, 6, v{vQ}")
a(f"v_lshlrev_b32 v11, 1, v{vM}")
a(f"v_cmp_gt_u32 vcc, 2, v{vQ}")
a("v_add_u32 v10, v10, v11")
a("v_add_u32 v10, 256, v10")
a("v_cndmask_b32 v11, 0, v11, vcc")
a("v_add_u32 v10, v10, v11")
a(f"v_lshl_add_u32 v{vTKa}, v10, 3, s{sT0}")
a("v_mov_b32 v11, 256")
a("v_cndmask_b32 v11, v11, 16, vcc")
a(f"v_add_u32 v{vTKb}, v{vTKa}, v11")
a(f"v_lshl_add_u32 v10, v{vQ}, 6, v{vM}")
a("v_add_u32 v10, 512, v10")
a(f"v_lshl_add_u32 v{vTK2}, v10, 3, s{sT0}")
ADDR_LATE = opt('addrlate', 1)
def addr_b():
    a(f"v_xor_b32 v10, v{vM}, v{vQ}")
    a("v_and_b32 v10, 3, v10")
    a("v_lshlrev_b32 v10, 4, v10")
    a(f"v_lshl_add_u32 v10, v{vM}, 10, v10")
    a(f"v_lshrrev_b32 v11, 2, v{vM}")
    a("v_lshl_add_u32 v10, v11, 6, v10")
    a(f"s_lshl_b32 s{sT0}, s{sCW}, 14")
    a(f"v_add_u32 v{vSA}, s{sT0}, v10")
    for i in range(1, 4):
        a(f"v_xor_b32 v{vSA+i}, {64*i}, v{vSA}")
    a(f"s_lshl_b32 s{sT1}, s{sJ1}, 3")
    a(f"v_add_u32 v10, s{sT1}, v{vQ}")
    a("v_and_b32 v12, 1, v0")
    a("v_lshlrev_b32 v12, 3, v12")
    a("v_bfe_u32 v13, v0, 2, 2")
    a("v_add_u32 v12, v12, v13")
    a("v_bfe_u32 v13, v0, 1, 1")
    a(f"v_lshl_add_u32 v13, v13, 3, s{sT0}")
    for hh in range(2):
        if hh:
            a("v_add_u32 v12, 4, v12")
        a("v_xor_b32 v11, v12, v10")
        a("v_lshl_add_u32 v11, v11, 4, v13")
        a(f"v_lshl_add_u32 v{vXT+hh}, v12, 10, v11")
        a(f"v_xor_b32 v{vXT+2+hh}, 64, v{vXT+hh}")
    a("v_lshrrev_b32 v12, 3, v0")
    a("v_lshlrev_b32 v12, 14, v12")
    a("v_and_b32 v13, 0x70, v1")
    a(f"v_add_u32 v{vXS}, v12, v13")
    a("v_bfe_u32 v12, v0, 2, 1")
    a(f"s_lshl_b32 s{sT0}, s{sCW}, 7")
    a(f"s_add_u32 s76, s{sT0}, {L_STAT}")
    a(f"v_lshl_add_u32 v{vSTA}, v12, 6, s76")
    a(f"s_lshl_b32 s{sT0}, s{sI1}, 2")
    a(f"s_add_u32 s{sT0}, s{sT0}, s{sCW}")
    a(f"s_lshl_b32 s{sT1}, s{sJ1}, 18")
    a(f"s_lshl_b32 s{sT2}, s{sT0}, 7")
    a(f"s_add_u32 s{sT1}, s{sT1}, s{sT2}")
    a(f"s_add_u32 s70, s{sT1}, {XNT}")
    a(f"s_add_u32 s79, s70, {8*16384}")
    a(f"s_lshl_b32 s{sT1}, s{sJ1}, 7")
    a(f"s_add_u32 s{sT0}, s{sT0}, s{sT1}")
    a(f"s_lshl_b32 s{sT0}, s{sT0}, 4")
    a(f"s_add_u32 s71, s{sT0}, {XF}")
if not ADDR_LATE:
    addr_b()
a(f"s_bfe_u32 s{sT2}, s{sWAVE}, 0x10001")
a(f"s_lshl_b32 s{sT2}, s{sT2}, 4")
a(f"v_add_u32 v{vPS}, s{sT2}, v2")
stamp("c")
a("s_waitcnt lgkmcnt(0)")
a(f"s_lshr_b32 s{sDT}, s{sDT}, s{sT2}")
a(f"s_lshl_b32 s{sDT}, s{sDT}, 16")
a(f"s_lshr_b32 s{sDS}, s{sDS}, s{sT2}")
a(f"s_lshl_b32 s{sDS}, s{sDS}, 16")
a(f"s_mov_b32 s{sT3}, 0x3fb8aa3b")
a(f"v_mov_b32 v8, s{sDT}")
a(f"v_mul_f32 v8, s{sT3}, v8")
a("v_exp_f32 v8, v8")
a("s_waitcnt vmcnt(0)")
stamp("c")
post_tag()
for k in range(4):
    a(f"v_lshlrev_b32 v{4+k}, 16, v{4+k}")
a("v_cvt_pk_bf16_f32 v8, v8, v8")
a("v_lshlrev_b32 v8, 16, v8")
a(f"v_mul_f32 v4, s{sT3}, v4")
a("v_exp_f32 v4, v4")
a("v_mul_f32 v5, v5, v8")
a("v_cvt_pk_bf16_f32 v4, v4, v4")
a("v_lshlrev_b32 v4, 16, v4")
a("v_mul_f32 v4, v4, v8")
a(f"v_mul_f32 v4, 0xbfb8aa3b, v4")
a("v_mul_f32 v5, 0.15915494, v5")
Y = 20
a("v_add_f32 v8, v8, v8")
a(f"v_mul_f32 v{Y}, v6, v8")
a(f"v_mul_f32 v{Y+1}, v7, v8")
Z1, Z8, Z128, Yn = 24, 22, 40, 50
for (dst, mul) in ((Z8, "0x41000000"), (Z1, None), (Z128, "0x43000000")):
    if mul is None:
        a("v_exp_f32 v10, v4")
        a("v_fract_f32 v11, v5")
    else:
        a(f"v_mul_f32 v10, {mul}, v4")
        a(f"v_mul_f32 v11, {mul}, v5")
        a("v_fract_f32 v11, v11")
        a("v_exp_f32 v10, v10")
    a("v_cos_f32 v12, v11")
    a("v_sin_f32 v13, v11")
    a(f"v_mul_f32 v{dst}, v10, v12")
    a(f"v_mul_f32 v{dst+1}, v10, v13")
ctmp = [42, 44, 46, 48]
cti = [0]


def cmul(d, x, y):
    assert d not in (x, y)
    return (f"v_mul_f32 v{d}, v{x}, v{y}\nv_mul_f32 v{d+1}, v{x}, v{y+1}\n"
            f"v_fma_f32 v{d}, -v{x+1}, v{y+1}, v{d}\nv_fmac_f32 v{d+1}, v{x+1}, v{y}")


def pcmul(d, x, y):
    t = ctmp[cti[0] % 4]; cti[0] += 1
    return (f"v_pk_mul_f32 {vr(t,2)}, {vr(x,2)}, {vr(y,2)} op_sel:[0,0] op_sel_hi:[0,1]\n"
            f"v_pk_fma_f32 {vr(d,2)}, {vr(x,2)}, {vr(y,2)}, {vr(t,2)} op_sel:[1,1,0] op_sel_hi:[1,0,1] neg_lo:[0,1,0]")


def mov2(d, x):
    return f"v_mov_b32 v{d}, v{x}\nv_mov_b32 v{d+1}, v{x+1}"


def Wp(e): return Z1 + 2 * (e - 1)


def pack(neg_im):
    ng = "-" if neg_im else ""
    for i in range(8):
        a(f"v_cvt_pk_bf16_f32 v{PK+i}, v{V+4*i}, v{V+4*i+2}")
        a(f"v_cvt_pk_bf16_f32 v{PK+8+i}, {ng}v{V+4*i+1}, {ng}v{V+4*i+3}")


def transpose_mfmas():
    L = []
    for h in range(2):
        for q0 in range(4):
            for part in range(2):
                d = DT + 8 * q0 + 4 * part
                L.append(f"v_mfma_f32_16x16x32_bf16 {vr(d,4)}, {vr(PK+8*part+4*h,4)}, {vr(SEL+4*(2*q0+h),4)}, {'0' if h == 0 else vr(d,4)}")
    return L


def frags(dst):
    for q0 in range(4):
        for i in range(4):
            a(f"v_cvt_pk_bf16_f32 v{dst+4*q0+i}, v{DT+8*q0+2*i}, v{DT+8*q0+2*i+1}")


def contract(t):
    return [f"v_mfma_f32_16x16x32_bf16 {vr(KD+4*t,4)}, {vr(HIF+4*ks,4)}, {vr(LOF+4*ks,4)}, {'0' if ks == 0 else vr(KD+4*t,4)}" for ks in range(4)]


a(f"v_mov_b32 v{V}, 1.0")
a(f"v_mov_b32 v{V+1}, 0")
a(mov2(V + 2, Z8))
a(pcmul(V + 4, Z8, Z8))
a(pcmul(Wp(2), Z1, Z1))
for j in range(3, 16):
    a(pcmul(V + 2 * j, V + 2 * (j - 2), V + 4))
    if j <= 7:
        a(pcmul(Wp(j), Wp(j - 2), Wp(2)))
a(pcmul(Yn, Y, Z128))
pack(True)
KM = opt("kmode", 1)
cm = pcmul if KM else cmul


def tr_block(extra, dst, before):
    L = list(before)
    for q0 in range(4):
        for h in range(2):
            for part in range(2):
                d = DT + 8 * q0 + 4 * part
                L.append(f"v_mfma_f32_16x16x32_bf16 {vr(d,4)}, {vr(PK+8*part+4*h,4)}, {vr(SEL+4*(2*q0+h),4)}, {'0' if h == 0 else vr(d,4)}")
    cv = [f"v_cvt_pk_bf16_f32 v{dst+4*q0+i}, v{DT+8*q0+2*i}, v{DT+8*q0+2*i+1}" for q0 in range(4) for i in range(4)]
    nb = len(before)
    for i, m in enumerate(L):
        a(m)
        k = i - nb
        if k >= 8 and cv:
            a(cv.pop(0))
        elif extra:
            a(extra.pop(0))
    emit(cv)
    emit(extra)


t0 = []
for i, yy in enumerate((Y, Yn)):
    t0.append(mov2(V + 16 * i, yy))
    t0 += [cm(V + 16 * i + 2 * e, yy, Wp(e)) for e in range(1, 8)]
t1 = [cm(V + 0, Yn, Z128), cm(V + 8, V + 0, Z128), cm(V + 16, V + 8, Z128)]
t1 += [cm(V + 2 * e, V + 0, Wp(2 * e)) for e in range(1, 4)]
t1 += [cm(V + 20, V + 16, Z128)]
t1 += [cm(V + 8 + 2 * e, V + 8, Wp(2 * e)) for e in range(1, 4)]
t1 += [cm(V + 24, V + 20, Z128), cm(V + 18, V + 16, Wp(4)), cm(V + 28, V + 24, Z128), cm(V + 22, V + 20, Wp(4)),
       cm(Yn, V + 28, Z128), cm(V + 26, V + 24, Wp(4)), cm(V + 30, V + 28, Wp(4))]
t2 = [mov2(V, Yn), cmul(Y, Z128, Z128), cmul(V + 2, Yn, Z128)]
t2 += [cmul(V + 2 * i, V + 2 * (i - 2), Y) for i in range(2, 9)]
if KM:
    emit(t0)
    tr_block([], LOF, [])
    pack(False)
    emit(t1)
    tr_block([], HIF, [])
    pack(False)
    tr_block(t2, HIF, contract(0))
    pack(False)
    tr_block([f"ds_write_b32 v{vTK0}, v{KD+rho} offset:{8*rho}" for rho in range(4)], HIF, contract(1))
    for rho in range(4):
        a(f"ds_write_b32 v{vTKb if rho >> 1 else vTKa}, v{KD+4+rho} offset:{8*(rho&1)}")
    emit(contract(2))
else:
    merge(transpose_mfmas(), t0)
    pack(False)
    frags(LOF)
    merge(transpose_mfmas(), t1)
    pack(False)
    frags(HIF)
    merge(contract(0) + transpose_mfmas(), t2)
    pack(False)
    frags(HIF)
if not KM:
    merge(contract(1) + transpose_mfmas(), [f"ds_write_b32 v{vTK0}, v{KD+rho} offset:{8*rho}" for rho in range(4)], first=2, every=3)
    for rho in range(4):
        a(f"ds_write_b32 v{vTKb if rho >> 1 else vTKa}, v{KD+4+rho} offset:{8*(rho&1)}")
    frags(HIF)
    emit(contract(2))
if ADDR_LATE:
    addr_b()
ON, SM, SQ, RW, UP, SF0 = 128, 132, 136, 140, 148, 64
for i in range(4):
    a(f"v_mov_b32 v{ON+i}, 0x3f803f80")
a("v_mov_b32 v14, 1")
a(f"s_lshl_b32 s{sT0}, s{sCW}, 2")
a(f"v_add_u32 v12, s{sT0}, v2")
for rho in range(4):
    a(f"ds_write_b32 v{vTK2}, v{KD+8+rho} offset:{128*rho}")
lds_arrive(vPS, 4, 14)
stamp("c")
a(f"s_setprio {PSTAT}")
lds_wait(12, 20, 1, 13)
stamp("c")
for ks in range(16):
    a(f"ds_read_b128 {vr(SF0+4*ks,4)}, v{vSA+(ks&3)} offset:{256*(ks>>2)}")
for ks in range(16):
    if ks % 4 == 0:
        a(f"s_waitcnt lgkmcnt({12-ks})")
    a(f"v_mfma_f32_16x16x32_bf16 {vr(SM,4)}, {vr(SF0+4*ks,4)}, {vr(ON,4)}, {'0' if ks == 0 else vr(SM,4)}")
    a(f"v_mfma_f32_16x16x32_bf16 {vr(SQ,4)}, {vr(SF0+4*ks,4)}, {vr(SF0+4*ks,4)}, {'0' if ks == 0 else vr(SQ,4)}")
for inst in range(2):
    for hh in range(2):
        a(f"ds_read_b64_tr_b16 {vr(RW+4*inst+2*hh,2)}, v{vXT+2*inst+hh}")
a(f"buffer_load_dword v{vTGc}, v15, s[{S_DBG}:{S_DBG+3}], 0 offen sc1")
a(f"v_and_b32 v10, 3, v{vM}")
a(f"v_lshl_add_u32 v11, v{vM}, 3, s76")
for r in range(1, 4):
    a(f"v_cmp_eq_u32 vcc, {r}, v10")
    a(f"v_cndmask_b32 v{SM}, v{SM}, v{SM+r}, vcc")
    a(f"v_cndmask_b32 v{SQ}, v{SQ}, v{SQ+r}, vcc")
a(f"v_mul_f32 v{SM}, 0x3b000000, v{SM}")
a(f"v_mul_f32 v{SQ}, 0x3b000000, v{SQ}")
a(f"v_fma_f32 v{SQ}, -v{SM}, v{SM}, v{SQ}")
a(f"v_max_f32 v{SQ}, 0, v{SQ}")
a(f"v_cvt_pk_bf16_f32 v{SM}, v{SM}, v{SQ}")
a(f"v_and_b32 v{SQ}, 0xffff0000, v{SM}")
a(f"v_add_f32 v{SQ}, 0x3727c5ac, v{SQ}")
a(f"v_cvt_pk_bf16_f32 v{SQ}, v{SQ}, v{SQ}")
a(f"v_lshlrev_b32 v{SQ}, 16, v{SQ}")
a(f"v_sqrt_f32 v{SQ}, v{SQ}")
a(f"v_lshlrev_b32 v{SM}, 16, v{SM}")
a(f"v_cvt_pk_bf16_f32 v{SQ}, v{SQ}, v{SQ}")
a(f"v_lshlrev_b32 v{SQ}, 16, v{SQ}")
a(f"v_rcp_f32 v{SM+2}, v{SQ}")
a(f"v_lshrrev_b32 v10, 2, v{vM}")
a(f"v_cmp_eq_u32 vcc, v10, v{vQ}")
a(f"v_mul_f32 v{SM+3}, v{SM}, v{SM+2}")
a("s_and_saveexec_b64 s[72:73], vcc")
a(f"ds_write_b64 v11, {vr(SM+2,2)}")
lds_arrive(2, 3, 14)
for k in range(4):
    a(f"ds_read_b128 {vr(SF0+4*k,4)}, v{vSTA} offset:{16*k}")
a("s_waitcnt lgkmcnt(6)")
for i in range(8):
    a(f"v_lshlrev_b32 v{UP+2*i}, 16, v{RW+i}")
    a(f"v_and_b32 v{UP+1+2*i}, 0xffff0000, v{RW+i}")
a("s_waitcnt lgkmcnt(0)")
for inst in range(2):
    for i in range(8):
        a(f"v_fma_f32 v{UP+8*inst+i}, v{UP+8*inst+i}, v{SF0+2*i}, -v{SF0+1+2*i}")
    for i in range(4 * inst, 4 * inst + 4):
        a(f"v_cvt_pk_bf16_f32 v{RW+i}, v{UP+2*i}, v{UP+1+2*i}")
    a(f"buffer_store_dwordx4 {vr(RW+4*inst,4)}, v{vXS}, s[{S_WS}:{S_WS+3}], s{79 if inst else 70} offen sc1")
a(f"s_setprio {PCONV}")
stamp("c")
a(f"v_lshlrev_b32 v10, 3, v{vQ}")
a(f"v_sub_u32 v10, v{vM}, v10")
a(f"s_mul_i32 s{sT0}, s{sP}, 100")
a(f"s_add_u32 s{sT0}, s{sT0}, 16")
a(f"v_add_u32 v10, s{sT0}, v10")
a("v_mov_b32 v12, 0xffff")
a("v_mov_b32 v13, 0xffff0000")
for d in range(4):
    a(f"v_cmp_le_i32 vcc, {2*d}, v10")
    a(f"v_cmp_le_i32 s[72:73], {2*d+1}, v10")
    a(f"v_cndmask_b32 v{MK+d}, 0, v12, vcc")
    a("v_cndmask_b32 v11, 0, v13, s[72:73]")
    a(f"v_or_b32 v{MK+d}, v{MK+d}, v11")
a(f"v_and_b32 v10, 3, v{vM}")
a(f"v_mul_u32_u24 v10, {KCS}, v10")
a(f"v_lshrrev_b32 v11, 2, v{vM}")
a("v_lshlrev_b32 v11, 3, v11")
a("v_sub_u32 v10, v10, v11")
a(f"v_lshl_add_u32 v10, v{vQ}, 4, v10")
a(f"s_lshl_b32 s{sT0}, s{sP}, 8")
a(f"s_sub_u32 s{sT0}, s{sCB}, s{sT0}")
a(f"s_add_u32 s{sT1}, s{sT0}, 24")
a(f"v_add_u32 v{vKA}, s{sT1}, v10")
a(f"v_lshlrev_b32 v10, 5, v{vM}")
a(f"v_lshl_add_u32 v10, v{vQ}, 4, v10")
a(f"s_add_u32 s{sT1}, s{sT0}, {C_UL}")
a(f"v_add_u32 v{vUA}, s{sT1}, v10")
a(f"s_add_u32 s{sT0}, s{sCB}, {C_UL}")
a(f"v_add_u32 v10, s{sT0}, v1")
for i in range(4):
    a(f"v_mov_b32 v{16+i}, 0")
a("v_cmp_gt_u32 vcc, 30, v0")
a("s_and_saveexec_b64 s[72:73], vcc")
a("ds_write_b128 v10, v[16:19]")
a("s_mov_b64 exec, -1")
a(f"s_lshl_b32 s{sT0}, s{sP}, 6")
a(f"v_add_u32 v12, s{sT0}, v0")
a(f"v_lshl_add_u32 v{vKW}, v12, 5, s{sCB}")
a("v_lshlrev_b32 v13, 4, v12")
a("v_sub_u32 v13, 0x7ff, v13")
a("v_cvt_f32_u32 v16, v13")
a(f"s_add_u32 s{sT1}, s{sCB}, {C_TK}")
a(f"v_lshl_add_u32 v17, v13, 3, s{sT1}")
a(f"s_add_u32 s{sT0}, s{sT1}, {8*127}")
a(f"v_mov_b32 v18, s{sT0}")
a(f"s_sub_u32 s{sT0}, s{sT1}, {8*0x4280}")
for s in range(0, 19, 2):
    a(f"v_subrev_f32 v10, {float(s)}, v16" if s else "v_mov_b32 v10, v16")
    a(f"v_subrev_f32 v11, {float(s+1)}, v16")
    a("v_cvt_pk_bf16_f32 v10, v10, v11")
    for k in range(2):
        if s + k > 18:
            continue
        a("v_and_b32 v11, 0x7fff, v10" if k == 0 else "v_bfe_u32 v11, v10, 16, 15")
        a(f"v_lshl_add_u32 v11, v11, 3, s{sT0}")
        a(f"v_subrev_u32 v12, {8*(s+k)}, v17")
        a(f"v_med3_i32 v12, v12, s{sT1}, v18")
        a(f"v_max_i32 v{GA+s+k}, v11, v12")
a("s_waitcnt vmcnt(0)")
get_tag(vTGc, 15)
publish("s71", 14, 15)
stamp("c")
a(f"s_lshl_b32 s{sT0}, s{sXCD}, 11")
a(f"s_add_u32 s74, s{sT0}, {XF}")
a(f"s_lshr_b32 s{sT0}, s{sCH}, 2")
a(f"s_lshl_b32 s{sT0}, s{sT0}, 14")
a(f"s_and_b32 s{sT1}, s{sCH}, 2")
a(f"s_lshl_b32 s{sT1}, s{sT1}, 4")
a(f"s_add_u32 s{sT0}, s{sT0}, s{sT1}")
a(f"s_lshl_b32 s{sT1}, s{sCW}, 12")
a(f"s_add_u32 s{sT0}, s{sT0}, s{sT1}")
a(f"s_add_u32 s75, s{sT0}, {XNT}")
a(f"s_lshl_b32 s{sT1}, s{sCW}, 9")
a(f"s_add_u32 s74, s74, s{sT1}")
a("v_and_b32 v7, 0x1ff, v1")
a("v_lshrrev_b32 v10, 1, v0")
a("v_and_b32 v11, 1, v0")
a("v_lshlrev_b32 v9, 6, v10")
a("v_lshl_add_u32 v9, v11, 4, v9")
a(f"v_mul_u32_u24 v11, {CSTR}, v11")
a("v_lshl_add_u32 v10, v10, 4, v11")
a(f"s_lshl_b32 s{sT0}, s{sCW}, 10")
a(f"s_add_u32 s{sT0}, s{sT0}, {L_CONV+C_UL+480}")
a(f"v_add_u32 v8, s{sT0}, v10")
GV, KP = 64, 112
lds_wait(vPS, 4, 2, 13)
for s in range(19):
    a(f"ds_read_b64 {vr(GV+2*s,2)}, v{GA+s}")
a("s_waitcnt lgkmcnt(0)")
for s in range(19):
    a(f"v_add_f32 v{GV+2*s}, v{GV+2*s}, v{GV+2*s+1}")
for kap in range(4):
    for d in range(8):
        s0 = 3 - kap + 2 * d
        a(f"v_cvt_pk_bf16_f32 v{KP+8*kap+d}, v{GV+2*s0}, v{GV+2*(s0+1)}")
def k_copies():
    for kap in range(4):
        for hq in range(2):
            a(f"ds_write_b128 v{vKW}, {vr(KP+8*kap+4*hq,4)} offset:{kap*KCS+16*hq}")
a(f"s_lshl_b32 s{sT0}, s{sCW}, 2")
a(f"v_add_u32 v12, s{sT0}, v2")
a("v_mov_b32 v14, 1")
srd(44, 34, 512 * 1376 * 2)
a(f"s_lshl_b32 s{sT0}, s{sSLOT}, 2")
a(f"s_add_u32 s{sT0}, s{sT0}, s{sCW}")
a(f"s_mul_i32 s{sT0}, s{sT0}, 43")
a(f"s_lshr_b32 s{sT0}, s{sT0}, 2")
a(f"s_lshl_b32 s{sT0}, s{sT0}, 10")
a(f"s_and_b32 s{sT1}, s{sXCD}, 1")
a(f"s_lshl_b32 s{sT1}, s{sT1}, 9")
a(f"s_add_u32 s78, s{sT0}, s{sT1}")
a("v_lshrrev_b32 v10, 5, v0")
a("v_and_b32 v11, 0x1f0, v1")
a("v_lshl_add_u32 v10, v10, 10, v11")
stamp("c")
def u_loads():
    for i in range(2):
        a(f"buffer_load_dwordx4 {vr(16+4*i,4)}, v9, s[{S_WS}:{S_WS+3}], s75 offen offset:{2048*i} sc1")
def touch():
    for k in range(6):
        if k and k % 2 == 0:
            a("s_add_u32 s78, s78, 4096")
        a(f"buffer_load_dwordx4 {vr(PFD,4)}, v10, s[44:47], s78 offen offset:{2048*(k%2)}")
UM = opt("umode", 1)
if UM == 0:
    poll_flags(7, "s74", 13, sleep=4)
    u_loads()
if UM == 2:
    lds_wait(2, 31, 4, 13)
    poll_flags(7, "s74", 13, sleep=4)
lds_wait(2, 30, 4, 13)
if UM == 1:
    a(f"buffer_load_dword v13, v7, s[{S_WS}:{S_WS+3}], s74 offen sc1")
if UM == 2:
    u_loads()
touch()
if UM == 1:
    dn = a.label("XOK")
    a("s_waitcnt vmcnt(6)")
    a(f"v_cmp_ne_u32 vcc, s{sTAG}, v13")
    a("s_nop 1")
    a("s_cmp_eq_u64 vcc, 0")
    a(f"s_cbranch_scc1 {dn}")
    poll_flags(7, "s74", 13, sleep=2)
    a(f"{dn}:")
    u_loads()
stamp("c")
k_copies()
a(f"s_waitcnt vmcnt({0 if UM == 1 else 6})")
for i in range(2):
    a(f"ds_write_b128 v8, {vr(16+4*i,4)} offset:{512*i}")
lds_arrive(2, 12, 14)
a(f"s_setprio {PCM}")
lds_wait(2, 12, 4, 13)
stamp("c")
if opt("gate", 1):
    lds_wait(12, 16, 1, 13)
stamp("c")
CA = 16
FR = [48, 112]


def conv_reads(rho, b):
    f = FR[b]
    L = []
    for s in range(8):
        L.append(f"ds_read_b128 {vr(f+32+4*s,4)}, v{vUA} offset:{512*s+64*(7-rho)}")
        for hh in range(2):
            L.append(f"ds_read_b64 {vr(f+4*s+2*hh,2)}, v{vKA} offset:{64*(63-8*s-rho)+8*hh}")
    return L


emit(conv_reads(0, 0))
for rho in range(4):
    f = FR[rho & 1]
    a("s_waitcnt lgkmcnt(0)")
    if rho == 0:
        for d in range(4):
            a(f"v_and_b32 v{f+d}, v{f+d}, v{MK+d}")
    mf = []
    seen = set()
    for s in range(8):
        for w in range(8 - s):
            t = s + w
            c = "0" if (rho == 0 and t not in seen) else vr(CA + 4 * t, 4)
            seen.add(t)
            mf.append(f"v_mfma_f32_16x16x32_bf16 {vr(CA+4*t,4)}, {vr(f+4*s,4)}, {vr(f+32+4*w,4)}, {c}")
    if rho < 3:
        merge(mf, conv_reads(rho + 1, (rho + 1) & 1))
    else:
        tail = [f"s_add_u32 s{sT0}, s{sCB}, {C_TK}", f"s_lshl_b32 s{sT1}, s{sP}, 12", f"s_add_u32 s{sT2}, s{sT0}, s{sT1}",
                f"v_add_u32 v12, s{sT2}, v1", f"s_xor_b32 s{sT1}, s{sT1}, 4096", f"s_add_u32 s{sT2}, s{sT0}, s{sT1}",
                f"v_add_u32 v11, s{sT2}, v1",
                f"v_lshlrev_b32 v10, 5, v{vM}", f"v_lshl_add_u32 v10, v{vQ}, 3, v10",
                f"s_lshl_b32 s{sT0}, s{sP}, 11", f"s_add_u32 s{sT0}, s{sT0}, s{sCB}", f"s_add_u32 s{sT0}, s{sT0}, {C_UL+480}",
                f"v_add_u32 v10, s{sT0}, v10"]
        tail += [f"ds_read_b64 {vr(48+2*i,2)}, v10 offset:{512*i}" for i in range(4)]
        tail += [f"s_lshl_b32 s{sT0}, s{sCH}, 12", f"s_lshl_b32 s{sT1}, s{sP}, 11", f"s_add_u32 s{sT0}, s{sT0}, s{sT1}",
                 f"s_add_u32 s70, s{sT0}, {ST}",
                 f"s_lshl_b32 s{sT0}, s{sXCD}, 1", f"s_add_u32 s{sT0}, s{sT0}, s{sP}", f"s_lshl_b32 s{sT0}, s{sT0}, 10",
                 f"s_and_b32 s{sT1}, s{sCH}, 63", f"s_lshl_b32 s{sT1}, s{sT1}, 4", f"s_add_u32 s{sT0}, s{sT0}, s{sT1}",
                 f"s_add_u32 s71, s{sT0}, {SF}", "v_mov_b32 v14, 1"]
        merge(mf, tail)
stamp("c")
a(f"s_cmp_eq_u32 s{sP}, 0")
a("s_cbranch_scc0 L_xp1")
for i in range(4):
    a(f"ds_write_b128 v12, {vr(CA+16+4*i,4)} offset:{1024*i}")
lds_arrive(vPS, 6, 14)
a("s_branch L_xdone")
a("L_xp1:")
a("s_nop 7")
for i in range(4):
    a(f"ds_write_b128 v12, {vr(CA+4*i,4)} offset:{1024*i}")
lds_arrive(vPS, 6, 14)
for i in range(16):
    a(f"v_mov_b32 v{CA+i}, v{CA+16+i}")
a("L_xdone:")
a("s_waitcnt lgkmcnt(5)")
for i in range(4):
    for hf in range(2):
        a(f"v_lshlrev_b32 v{72+4*i+2*hf}, 16, v{48+2*i+hf}")
        a(f"v_and_b32 v{72+4*i+2*hf+1}, 0xffff0000, v{48+2*i+hf}")
for i in range(16):
    a(f"v_fma_f32 v{CA+i}, v{72+i}, s{sDS}, v{CA+i}")
lds_wait(vPS, 6, 2, 13)
for i in range(4):
    a(f"ds_read_b128 {vr(48+4*i,4)}, v11 offset:{1024*i}")
for pr in range(2):
    a(f"s_waitcnt lgkmcnt({2-2*pr})")
    for i in range(8 * pr, 8 * pr + 8):
        a(f"v_add_f32 v{CA+i}, v{CA+i}, v{48+i}")
    for i in range(4 * pr, 4 * pr + 4):
        a(f"v_cvt_pk_bf16_f32 v{64+i}, v{CA+2*i}, v{CA+2*i+1}")
    for hf in range(2):
        a(f"v_permlane16_swap_b32 v{64+4*pr+hf}, v{64+4*pr+2+hf}")
    a(f"buffer_store_dwordx4 {vr(64+4*pr,4)}, v1, s[{S_WS}:{S_WS+3}], s70 offen offset:{1024*pr} sc1")
a("s_waitcnt vmcnt(0)")
publish("s71", 14, 15)
stamp("c")
dump_stamps("c")
a("L_end:")
a("s_endpgm")
a("L_code_end:")
a.raw('.section .rodata,"a"\n.p2align 6')
a.raw(kernel_desc(KN, 256, 102, 256))
open(OUT, "w").write(a.text())
print("nops inserted:", a.nnop, "instrs:", sum(1 for i in a.items if not isinstance(i, str)), "lds", LDS_BYTES)
```

```python
import sys
from asmlib import *

DIAG = "--diag" in sys.argv
NOCONV = "--noconv" in sys.argv
CYC = "--cyc" in sys.argv
MAP48 = "--map48" in sys.argv
OUT = [x for x in sys.argv[1:] if not x.startswith("--")][0]


def opt(name, default):
    for x in sys.argv:
        if x.startswith(f"--{name}="):
            return int(x.split("=")[1])
    return default


PCONV, PSTAT, PG1, PEPI, PCM = opt("pconv", 0), opt("pstat", 2), opt("pg1", 1), opt("pepi", 3), opt("pcm", 2)

XF, SF, HF = 0x1000, 0x5000, 0x9000
XNT, ST, HB = 0x20000, 0x220000, 0x420000
STAMP, WSB, OOB = 0x1000000, 0x10000000, 0x40000000
L_RING, RINGB = 65536, 9216
L_CONV = L_RING + 4 * RINGB
KCS = 4160
C_TK = 4 * KCS
C_UL = C_TK + 8192
CSTR = C_UL + 4608
L_SYNC = L_CONV + 2 * CSTR
L_STAT = L_SYNC + 256
LDS_BYTES = L_STAT + 512
W1RS = 2752
SPIN = 1 << 18

a = Asm()
sWAVE, sI1, sJ1, sI2, sJ2, sTAG = 3, 4, 5, 6, 7, 8
sG, sK, sRING, sGH, sPEND, sQ = 10, 11, 12, 13, 14, 15
S_X, S_W1, S_W2, S_OUT, S_WS, S_DBG = 44, 48, 52, 56, 60, 64
sT0, sT1, sT2, sT3 = 42, 43, 68, 69
sKS = 70
sXCD, sSLOT, sSPIN = 81, 82, 83
sHF, sHH = 0, 1
STAMP0 = 84
nstamp = {"g": 0, "c": 0}


def srd_l(d, base, nbytes):
    return [f"s_mov_b32 s{d}, s{base}", f"s_and_b32 s{d+1}, s{base+1}, 0xffff",
            f"s_mov_b32 s{d+2}, {nbytes}", f"s_mov_b32 s{d+3}, 0x00020000"]


def emit(L):
    for t in L:
        a(t)


def srd(d, base, nbytes):
    emit(srd_l(d, base, nbytes))


WST = "--wst" in sys.argv
_phase = [0]
def fst():
    if WST:
        _phase[0] = 1
        stamp("g", True)
def stamp(role, fine=False):
    if not DIAG:
        return
    if WST and role == "g" and not fine and nstamp["g"] >= 1 and not _phase[0]:
        return
    k = nstamp[role]; nstamp[role] += 1
    assert k < 16
    a("s_memtime s[100:101]" if CYC else "s_memrealtime s[100:101]")
    a("s_waitcnt lgkmcnt(0)")
    a(f"s_mov_b32 s{STAMP0+k}, s100")


def dump_stamps(role):
    if not DIAG:
        return
    if "--dbg" in sys.argv:
        wv = opt("dbgwave", 0)
        if (role == "g") != (wv < 4):
            return
        lab = a.label("DB")
        a(f"s_cmp_lg_u32 s2, {opt('dbgwg', 77)}")
        a(f"s_cbranch_scc1 {lab}")
        a(f"s_cmp_lg_u32 s{sWAVE}, {wv}")
        a(f"s_cbranch_scc1 {lab}")
        a("v_mov_b32 v14, 0")
        for k in range(1, nstamp[role]):
            a(f"s_sub_u32 s{STAMP0+k}, s{STAMP0+k}, s{STAMP0}")
            a(f"v_mov_b32 v15, s{STAMP0+k}")
            a(f"buffer_store_dword v15, v14, s[{S_DBG}:{S_DBG+3}], 0 offen offset:{4*k}")
        a("s_waitcnt vmcnt(0)")
        a(f"{lab}:")
        return
    a(f"s_lshl_b32 s{sT0}, s2, 3")
    a(f"s_add_u32 s{sT0}, s{sT0}, s{sWAVE}")
    a(f"s_lshl_b32 s{sT0}, s{sT0}, 6")
    a(f"s_add_u32 s{sT0}, s{sT0}, {STAMP}")
    a("v_mov_b32 v14, 0")
    for k in range(nstamp[role]):
        a(f"v_mov_b32 v15, s{STAMP0+k}")
        a(f"buffer_store_dword v15, v14, s[{S_WS}:{S_WS+3}], s{sT0} offen offset:{4*k}")
    a("s_waitcnt vmcnt(0)")


class VM:
    def __init__(self):
        self.q = []
    def issue(self, tag, n=1):
        self.q += [tag] * n
    def wait(self, tag):
        if tag not in self.q:
            return
        idx = max(i for i, t in enumerate(self.q) if t == tag)
        a(f"s_waitcnt vmcnt({min(len(self.q) - 1 - idx, 63)})")
        self.q = self.q[idx + 1:]
    def drain(self):
        self.q = []


def lds_arrive(vsync, word, vone):
    a("s_mov_b64 exec, 1")
    a(f"ds_add_u32 v{vsync}, v{vone} offset:{4*word}")
    a("s_mov_b64 exec, -1")


def lds_wait(vsync, word, n, vtmp):
    lp, dn = a.label("LW"), a.label("LWD")
    a(f"s_mov_b32 s{sSPIN}, 0")
    a(f"{lp}:")
    a(f"ds_read_b32 v{vtmp}, v{vsync} offset:{4*word}")
    a(f"s_add_u32 s{sSPIN}, s{sSPIN}, 1")
    a("s_waitcnt lgkmcnt(0)")
    a(f"v_readfirstlane_b32 s{sT0}, v{vtmp}")
    a(f"s_cmp_gt_u32 s{sSPIN}, {SPIN*8}")
    a(f"s_cbranch_scc1 {dn}")
    a(f"s_cmp_ge_u32 s{sT0}, {n}")
    a(f"s_cbranch_scc1 {dn}")
    a(f"s_sleep {opt('lsleep', 1)}")
    a(f"s_branch {lp}")
    a(f"{dn}:")


def poll_flags(voff, soff, vtmp, sleep=1):
    lp, dn = a.label("PF"), a.label("PFD")
    a(f"s_mov_b32 s{sSPIN}, 0")
    a(f"{lp}:")
    a(f"buffer_load_dword v{vtmp}, v{voff}, s[{S_WS}:{S_WS+3}], {soff} offen sc1")
    a(f"s_add_u32 s{sSPIN}, s{sSPIN}, 1")
    a("s_waitcnt vmcnt(0)")
    a(f"v_cmp_ne_u32 vcc, s{sTAG}, v{vtmp}")
    a(f"s_cmp_gt_u32 s{sSPIN}, {SPIN}")
    a(f"s_cbranch_scc1 {dn}")
    a("s_cmp_eq_u64 vcc, 0")
    a(f"s_cbranch_scc1 {dn}")
    a(f"s_sleep {sleep}")
    a(f"s_branch {lp}")
    a(f"{dn}:")


def get_tag(vtmp, vzero):
    lp, dn = a.label("GT"), a.label("GTD")
    a(f"s_mov_b32 s{sSPIN}, 0")
    a(f"{lp}:")
    a(f"v_readfirstlane_b32 s{sTAG}, v{vtmp}")
    a(f"s_add_u32 s{sSPIN}, s{sSPIN}, 1")
    a(f"s_cmp_gt_u32 s{sSPIN}, {SPIN}")
    a(f"s_cbranch_scc1 {dn}")
    a(f"s_cmp_lg_u32 s{sTAG}, 0")
    a(f"s_cbranch_scc1 {dn}")
    a("s_sleep 1")
    a(f"buffer_load_dword v{vtmp}, v{vzero}, s[{S_DBG}:{S_DBG+3}], 0 offen sc1")
    a("s_waitcnt vmcnt(0)")
    a(f"s_branch {lp}")
    a(f"{dn}:")


def publish(soff, vtmp, vzero):
    a(f"v_mov_b32 v{vtmp}, s{sTAG}")
    a("s_mov_b64 exec, 1")
    a(f"buffer_store_dword v{vtmp}, v{vzero}, s[{S_WS}:{S_WS+3}], {soff} offen sc1")
    a("s_mov_b64 exec, -1")


def merge(main, fill, first=0, every=1):
    fill = list(fill)
    for i, m in enumerate(main):
        a(m)
        if i >= first and (i - first) % every == 0 and fill:
            a(fill.pop(0))
    for f in fill:
        a(f)


def silu_pk(src, tmp, n, sneg, drip=lambda k: None):
    for i in range(0, n, 2):
        a(f"v_pk_mul_f32 {vr(tmp+i,2)}, {vr(src+i,2)}, s[{sneg}:{sneg+1}]")
    for i in range(n):
        a(f"v_exp_f32 v{tmp+i}, v{tmp+i}")
    drip(2)
    for i in range(0, n, 2):
        a(f"v_pk_add_f32 {vr(tmp+i,2)}, {vr(tmp+i,2)}, 1.0 op_sel_hi:[1,0]")
    for i in range(n):
        a(f"v_rcp_f32 v{tmp+i}, v{tmp+i}")
    for i in range(0, n, 2):
        a(f"v_pk_mul_f32 {vr(src+i,2)}, {vr(src+i,2)}, {vr(tmp+i,2)}")


def klist_code(dst, count, srot, t0, stbl, t1):
    L = []
    for n in range(count):
        L += [f"s_add_u32 s{t0}, s{srot}, {n}", f"s_and_b32 s{t0}, s{t0}, 7", f"s_mul_i32 s{t0}, s{t0}, 43",
              f"s_add_u32 s{t1}, s{t0}, 35", f"s_lshr_b32 s{t0}, s{t0}, 3", f"s_lshr_b32 s{t1}, s{t1}, 3",
              f"s_add_u32 s{t0}, s{t0}, s{stbl}", f"s_min_u32 s{dst+n}, s{t0}, s{t1}"]
    return L


a.raw(open("recurrent_scan__ssm_conv_s4d__dense_activation_silu__prompt.s.ref").read().split("; Override")[0].rstrip())
a.raw(f"; @launch grid=(256,1,1) block=(512,1,1) lds={LDS_BYTES}")
a.raw('.amdgcn_target "amdgcn-amd-amdhsa--gfx950"')
a.raw(".text")
a.raw(f".globl {KN}\n.p2align 8\n.type {KN},@function\n{KN}:")
a("s_cmp_ge_u32 s2, 256")
a("s_cbranch_scc1 L_end")
a("s_load_dwordx16 s[16:31], s[0:1], 0")
a("s_load_dwordx8 s[32:39], s[0:1], 64")
a("s_load_dwordx2 s[40:41], s[0:1], 96")
if DIAG:
    a("s_memtime s[100:101]" if CYC else "s_memrealtime s[100:101]")
    nstamp["g"] = nstamp["c"] = 1
a("s_getpc_b64 s[64:65]")
a("L_pc:")
a("s_and_b32 s65, s65, 0xffff")
a("s_mov_b32 s66, L_code_end-L_pc")
a("s_mov_b32 s67, 0x00020000")
a("v_lshlrev_b32 v1, 7, v0")
a("buffer_load_dword v254, v1, s[64:67], 0 offen")
a("v_lshrrev_b32 v1, 6, v0")
a("v_and_b32 v0, 63, v0")
a(f"v_readfirstlane_b32 s{sWAVE}, v1")
a("v_lshlrev_b32 v1, 4, v0")
a(f"s_and_b32 s{sXCD}, s2, 7")
a(f"s_lshr_b32 s{sSLOT}, s2, 3")
if MAP48:
    a(f"s_lshl_b32 s{sT0}, s{sXCD}, 2")
    a(f"s_and_b32 s{sI1}, s{sSLOT}, 3")
    a(f"s_add_u32 s{sI1}, s{sI1}, s{sT0}")
    a(f"s_lshr_b32 s{sJ1}, s{sSLOT}, 2")
else:
    a(f"s_lshr_b32 s{sT0}, s{sXCD}, 1")
    a(f"s_lshl_b32 s{sT0}, s{sT0}, 3")
    a(f"s_and_b32 s{sI1}, s{sSLOT}, 7")
    a(f"s_add_u32 s{sI1}, s{sI1}, s{sT0}")
    a(f"s_and_b32 s{sT0}, s{sXCD}, 1")
    a(f"s_lshl_b32 s{sT0}, s{sT0}, 2")
    a(f"s_lshr_b32 s{sJ1}, s{sSLOT}, 3")
    a(f"s_add_u32 s{sJ1}, s{sJ1}, s{sT0}")
a(f"v_mov_b32 v2, {L_SYNC}")
a(f"s_cmp_ge_u32 s{sWAVE}, 4")
a("s_cbranch_scc1 L_conv")

vL16, vSYNC = 1, 2
vX, vD0, vD1, vD2, vA0, vT0, vT1, vT2, vW2, vB0, vB1 = 3, 4, 5, 6, 7, 8, 9, 10, 11, 12, 13
ACC1, CS, F0, F1, TMP, WR = 16, 64, 76, 104, 132, 160
FB = [F0, F1]
ONES, vA, vFA, vFB = TMP, TMP + 4, TMP + 5, TMP + 6
vTG = TMP + 27
vm = VM()
vm.issue("PF")
a("v_lshrrev_b32 v14, 4, v0")
a("v_and_b32 v14, 2, v14")
a("v_xor_b32 v14, v14, v0")
a("v_and_b32 v14, 3, v14")
a("v_lshrrev_b32 v15, 2, v0")
a(f"v_mul_u32_u24 v{vD0}, {W1RS}, v15")
a(f"v_lshl_add_u32 v{vD0}, v14, 4, v{vD0}")
a(f"v_add_u32 v{vD1}, {16*W1RS-1024}, v{vD0}")
a("v_bfe_u32 v14, v0, 1, 2")
a("v_lshrrev_b32 v15, 5, v0")
a("v_lshl_add_u32 v14, v15, 2, v14")
a("v_bfe_u32 v15, v0, 3, 2")
a("v_lshl_add_u32 v14, v15, 3, v14")
a(f"v_mul_u32_u24 v14, {W1RS}, v14")
a("v_and_b32 v15, 1, v0")
a(f"v_lshl_add_u32 v{vD2}, v15, 4, v14")
a(f"s_mul_i32 s{sT0}, s{sJ1}, 43")
a(f"s_add_u32 s{sT1}, s{sT0}, 35")
a(f"s_lshr_b32 s{sT0}, s{sT0}, 3")
a(f"s_lshr_b32 s{sT1}, s{sT1}, 3")
a(f"s_sub_u32 s{sT1}, s{sT1}, s{sT0}")
a(f"s_lshl_b32 s{sT2}, s{sWAVE}, 3")
a(f"s_lshr_b32 s{sT2}, 0x05030200, s{sT2}")
a(f"s_and_b32 s{sT2}, s{sT2}, 7")
a(f"s_min_u32 s{sT2}, s{sT2}, s{sT1}")
a(f"s_add_u32 s{sHF}, s{sT0}, s{sT2}")
a(f"s_lshl_b32 s{sG}, s{sHF}, 6")
a(f"s_lshr_b32 s{sT2}, s{sWAVE}, 1")
a(f"s_mul_i32 s{sT2}, s{sT2}, 3")
a(f"s_add_u32 s{sT2}, s{sT2}, 1")
a(f"s_add_u32 s{sHH}, s{sT0}, s{sT2}")
a(f"s_cmp_lt_u32 s{sT2}, s{sT1}")
a(f"s_cselect_b32 s9, 0, {OOB}")
a(f"s_lshl_b32 s{sGH}, s{sHH}, 1")
a(f"s_and_b32 s{sT2}, s{sWAVE}, 1")
a(f"s_add_u32 s{sGH}, s{sGH}, s{sT2}")
a(f"s_lshl_b32 s{sGH}, s{sGH}, 5")
a(f"s_add_u32 s{sGH}, s{sGH}, s9")
if MAP48:
    a(f"s_and_b32 s{sT0}, s{sSLOT}, 3")
    a(f"s_lshl_b32 s{sT0}, s{sT0}, 1")
else:
    a(f"s_and_b32 s{sT0}, s{sSLOT}, 7")
a(f"s_mul_i32 s{sK}, s{sT0}, {2*32*W1RS}")
sKX = sI2
a(f"s_lshl_b32 s{sKX}, s{sT0}, 7")
a(f"s_mul_i32 s{sRING}, s{sWAVE}, {RINGB}")
a(f"s_add_u32 s{sRING}, s{sRING}, {L_RING}")


def w1_refill(slot, tag):
    vm.issue(tag, 3)
    return [
        f"s_add_u32 m0, s{sRING}, {slot*3072}\ns_add_u32 s{sT1}, s{sG}, s{sK}\n"
        f"buffer_load_dwordx4 v{vD0}, s[{S_W1}:{S_W1+3}], s{sT1} offen lds",
        f"s_add_u32 s{sT2}, s{sGH}, s{sK}\n"
        f"buffer_load_dwordx4 v{vD1}, s[{S_W1}:{S_W1+3}], s{sT1} offen offset:1024 lds",
        f"s_add_u32 m0, s{sRING}, {slot*3072+2048}\ns_add_u32 s{sK}, s{sK}, {32*W1RS}\n"
        f"buffer_load_dwordx4 v{vD2}, s[{S_W1}:{S_W1+3}], s{sT2} offen lds\n"
        f"s_cmp_eq_u32 s{sK}, {512*W1RS}\ns_cselect_b32 s{sK}, 0, s{sK}",
    ]


a("v_and_b32 v14, 15, v0")
a(f"v_lshrrev_b32 v{vFA}, 4, v0")
a(f"v_xor_b32 v15, v14, v{vFA}")
a("v_and_b32 v15, 3, v15")
a("v_lshlrev_b32 v15, 4, v15")
a("v_lshl_add_u32 v15, v14, 10, v15")
a("v_lshrrev_b32 v14, 2, v14")
a(f"v_lshl_add_u32 v{vA0}, v14, 6, v15")
a(f"v_lshl_add_u32 v15, v{vFA}, 3, v14")
a("v_lshlrev_b32 v15, 6, v15")
a(f"v_and_b32 v{vT0}, 1, v{vFA}")
a(f"v_lshl_add_u32 v15, v{vT0}, 5, v15")
a(f"v_and_b32 v{vT0}, 3, v0")
a(f"v_lshl_add_u32 v15, v{vT0}, 3, v15")
a(f"v_add_u32 v{vT0}, s{sRING}, v15")
a(f"v_xor_b32 v{vT1}, 32, v{vT0}")
a(f"v_lshlrev_b32 v{vT2}, 3, v0")
a(f"v_add_u32 v{vT2}, s{sRING}, v{vT2}")
for i in range(4):
    a(f"v_mov_b32 v{ONES+i}, 0x3f803f80")
sXR, sXB = 72, 73
a(f"s_lshl_b32 s{sQ}, s{sWAVE}, 14")
a(f"s_lshl_b32 s{sXB}, s{sI1}, 16")
a(f"s_lshl_b32 s{sXR}, s{sJ1}, 12")
XO = WR
for k in range(4):
    a(f"s_add_u32 s{sT1}, s{sJ1}, {k}")
    a(f"s_and_b32 s{sT1}, s{sT1}, 3")
    a(f"s_lshl_b32 s{sT3}, s{sT1}, 6")
    a(f"v_xor_b32 v{XO+4*k}, s{sT3}, v{vL16}")
    for r in range(1, 4):
        a(f"v_xor_b32 v{XO+4*k+r}, {16*r}, v{XO+4*k}")
    a(f"s_lshl_b32 s{sT1}, s{sT1}, 12")
    a(f"s_add_u32 s{74+k}, s{sT1}, s{sQ}")
a("s_mov_b32 s46, 2097152")
a("s_mov_b32 s47, 0x00020000")
a(f"s_mov_b32 s50, {512*1376*2}")
a("s_mov_b32 s51, 0x00020000")
a("s_waitcnt lgkmcnt(0)")
if DIAG:
    a(f"s_mov_b32 s{STAMP0}, s100")
a("s_barrier")
a("s_mov_b32 s44, s16")
a("s_and_b32 s45, s17, 0xffff")
a("s_mov_b32 s48, s32")
a("s_and_b32 s49, s33, 0xffff")
W1FIRST = opt("w1first", 0)
def x_group(k):
    a(f"s_mov_b32 m0, s{74+k}")
    a(f"s_add_u32 s{sT1}, s{74+k}, s{sXB}")
    for r in range(4):
        a(f"buffer_load_dwordx4 v{XO+4*k+r}, s[{S_X}:{S_X+3}], s{sT1} offen offset:{1024*r} lds")
    vm.issue("X", 4)
SF0, SM, SQ, RW, UP = 176, 240, 244, 248, 16
gSA, gXT, gXS, gSTA, gM, g0, g1, g2, g3 = 32, 36, 40, 41, 42, 43, 44, 45, 46
sXN, sXN2, sXF = 26, 27, 30
vPW = TMP + 8
x_group(0)
x_group(1)
a("s_setprio 3")
srd(S_WS, 40, WSB)
a(f"v_add_u32 v{gSA}, s{sQ}, v{vA0}")
for i in range(1, 4):
    a(f"v_xor_b32 v{gSA+i}, {64*i}, v{gSA}")
a(f"s_lshl_b32 s{sT1}, s{sJ1}, 3")
a(f"v_add_u32 v{g0}, s{sT1}, v{vFA}")
a(f"v_and_b32 v{g2}, 1, v0")
a(f"v_lshlrev_b32 v{g2}, 3, v{g2}")
a(f"v_bfe_u32 v{g3}, v0, 2, 2")
a(f"v_add_u32 v{g2}, v{g2}, v{g3}")
a(f"v_bfe_u32 v{g3}, v0, 1, 1")
a(f"v_lshl_add_u32 v{g3}, v{g3}, 3, s{sQ}")
for hh in range(2):
    if hh:
        a(f"v_add_u32 v{g2}, 4, v{g2}")
    a(f"v_xor_b32 v{g1}, v{g2}, v{g0}")
    a(f"v_lshl_add_u32 v{g1}, v{g1}, 4, v{g3}")
    a(f"v_lshl_add_u32 v{gXT+hh}, v{g2}, 10, v{g1}")
    a(f"v_xor_b32 v{gXT+2+hh}, 64, v{gXT+hh}")
a(f"v_lshrrev_b32 v{g2}, 3, v0")
a(f"v_lshlrev_b32 v{g2}, 14, v{g2}")
a(f"v_and_b32 v{g3}, 0x70, v1")
a(f"v_add_u32 v{gXS}, v{g2}, v{g3}")
a(f"v_bfe_u32 v{g2}, v0, 2, 1")
a(f"s_lshl_b32 s{sT0}, s{sWAVE}, 7")
a(f"s_add_u32 s{sT0}, s{sT0}, {L_STAT}")
a(f"v_lshl_add_u32 v{gSTA}, v{g2}, 6, s{sT0}")
a(f"v_and_b32 v{gM}, 15, v0")
a(f"v_lshl_add_u32 v{g1}, v{gM}, 3, s{sT0}")
a(f"v_and_b32 v{g0}, 3, v0")
a(f"v_lshrrev_b32 v{gM}, 2, v{gM}")
a(f"s_lshl_b32 s{sT0}, s{sI1}, 2")
a(f"s_add_u32 s{sT0}, s{sT0}, s{sWAVE}")
a(f"s_lshl_b32 s{sT1}, s{sJ1}, 18")
a(f"s_lshl_b32 s{sT2}, s{sT0}, 7")
a(f"s_add_u32 s{sT1}, s{sT1}, s{sT2}")
a(f"s_add_u32 s{sXN}, s{sT1}, {XNT}")
a(f"s_add_u32 s{sXN2}, s{sXN}, {8*16384}")
a(f"s_lshl_b32 s{sT1}, s{sJ1}, 7")
a(f"s_add_u32 s{sT0}, s{sT0}, s{sT1}")
a(f"s_lshl_b32 s{sT0}, s{sT0}, 4")
a(f"s_add_u32 s{sXF}, s{sT0}, {XF}")
a("v_mov_b32 v14, 1")
a(f"s_lshl_b32 s{sT0}, s{sWAVE}, 2")
a(f"v_add_u32 v{vPW}, s{sT0}, v{vSYNC}")
a("s_setprio 0")
x_group(2)
x_group(3)
NPRE = opt("npre", 3)
for sl in range(NPRE):
    emit(w1_refill(sl, f"W{sl}"))
stamp("g")
a("s_setprio 3")
vm.wait("X")
lds_arrive(vSYNC, 0, 14)
stamp("g")
for ks in range(16):
    a(f"ds_read_b128 {vr(SF0+4*ks,4)}, v{gSA+(ks&3)} offset:{256*(ks>>2)}")
for ks in range(16):
    if ks % 4 == 0:
        a(f"s_waitcnt lgkmcnt({12-ks})")
    a(f"v_mfma_f32_16x16x32_bf16 {vr(SM,4)}, {vr(SF0+4*ks,4)}, {vr(ONES,4)}, {'0' if ks == 0 else vr(SM,4)}")
    a(f"v_mfma_f32_16x16x32_bf16 {vr(SQ,4)}, {vr(SF0+4*ks,4)}, {vr(SF0+4*ks,4)}, {'0' if ks == 0 else vr(SQ,4)}")
for inst in range(2):
    for hh in range(2):
        a(f"ds_read_b64_tr_b16 {vr(RW+4*inst+2*hh,2)}, v{gXT+2*inst+hh}")
for sl in range(NPRE, 3):
    emit(w1_refill(sl, f"W{sl}"))
for r in range(1, 4):
    a(f"v_cmp_eq_u32 vcc, {r}, v{g0}")
    a(f"v_cndmask_b32 v{SM}, v{SM}, v{SM+r}, vcc")
    a(f"v_cndmask_b32 v{SQ}, v{SQ}, v{SQ+r}, vcc")
a(f"v_mul_f32 v{SM}, 0x3b000000, v{SM}")
a(f"v_mul_f32 v{SQ}, 0x3b000000, v{SQ}")
a(f"v_fma_f32 v{SQ}, -v{SM}, v{SM}, v{SQ}")
a(f"v_max_f32 v{SQ}, 0, v{SQ}")
a(f"v_cvt_pk_bf16_f32 v{SM}, v{SM}, v{SQ}")
a(f"v_and_b32 v{SQ}, 0xffff0000, v{SM}")
a(f"v_add_f32 v{SQ}, 0x3727c5ac, v{SQ}")
a(f"v_cvt_pk_bf16_f32 v{SQ}, v{SQ}, v{SQ}")
a(f"v_lshlrev_b32 v{SQ}, 16, v{SQ}")
a(f"v_sqrt_f32 v{SQ}, v{SQ}")
a(f"v_lshlrev_b32 v{SM}, 16, v{SM}")
a(f"v_cvt_pk_bf16_f32 v{SQ}, v{SQ}, v{SQ}")
a(f"v_lshlrev_b32 v{SQ}, 16, v{SQ}")
a(f"v_rcp_f32 v{SM+2}, v{SQ}")
a(f"v_cmp_eq_u32 vcc, v{gM}, v{vFA}")
a(f"v_mul_f32 v{SM+3}, v{SM}, v{SM+2}")
a("s_and_saveexec_b64 s[28:29], vcc")
a(f"ds_write_b64 v{g1}, {vr(SM+2,2)}")
lds_arrive(vSYNC, 3, 14)
for k in range(4):
    a(f"ds_read_b128 {vr(SF0+4*k,4)}, v{gSTA} offset:{16*k}")
a("s_waitcnt lgkmcnt(6)")
for i in range(8):
    a(f"v_lshlrev_b32 v{UP+2*i}, 16, v{RW+i}")
    a(f"v_and_b32 v{UP+1+2*i}, 0xffff0000, v{RW+i}")
a("s_waitcnt lgkmcnt(0)")
for inst in range(2):
    for i in range(8):
        a(f"v_fma_f32 v{UP+8*inst+i}, v{UP+8*inst+i}, v{SF0+2*i}, -v{SF0+1+2*i}")
    for i in range(4 * inst, 4 * inst + 4):
        a(f"v_cvt_pk_bf16_f32 v{RW+i}, v{UP+2*i}, v{UP+1+2*i}")
    a(f"buffer_store_dwordx4 {vr(RW+4*inst,4)}, v{gXS}, s[{S_WS}:{S_WS+3}], s{sXN2 if inst else sXN} offen sc1")
vm.issue("XS", 2)

u0, u1, u2 = 34, 35, 36
late = []
sOWN = 29
late += [f"s_mov_b32 s{sOWN}, s{sHF}"]
late += srd_l(S_DBG, 38, 256) + srd_l(S_W2, 34, 512 * 1376 * 2) + srd_l(S_OUT, 36, 2048 * 512 * 2)
late += [
         f"s_mov_b32 s{sJ2}, s{sJ1}",
         f"s_mul_i32 s{u0}, s{sI1}, 43", f"s_add_u32 s{sHF}, s{sHF}, s{u0}", f"s_lshl_b32 s{sHF}, s{sHF}, 12",
         f"s_add_u32 s{sHF}, s{sHF}, {HB}", f"s_add_u32 s{sHH}, s{sHH}, s{u0}", f"s_lshl_b32 s{sHH}, s{sHH}, 12",
         f"s_add_u32 s{sHH}, s{sHH}, s9", f"s_and_b32 s{u1}, s{sWAVE}, 1", f"s_lshl_b32 s{u1}, s{u1}, 11",
         f"s_add_u32 s{u1}, s{u1}, {HB}", f"s_add_u32 s{sHH}, s{sHH}, s{u1}",
         f"s_lshl_b32 s{u0}, s{sI1}, 3", f"s_add_u32 s{u0}, s{u0}, s{sJ1}", f"s_lshl_b32 s{u0}, s{u0}, 2",
         f"s_add_u32 s{u0}, s{u0}, s{sWAVE}", f"s_lshl_b32 s{u0}, s{u0}, 4", f"s_add_u32 s{sPEND}, s{u0}, {HF}",
         f"v_bfe_u32 v{vFB}, v0, 2, 2", f"v_lshl_add_u32 v{vB0}, v{vFA}, 2, v{vFB}", f"v_lshlrev_b32 v{vB0}, 7, v{vB0}",
         f"v_lshrrev_b32 v{vFB}, 1, v{vFB}", f"v_lshl_add_u32 v{vB0}, v{vFB}, 6, v{vB0}", f"v_and_b32 v{vFB}, 3, v0",
         f"v_lshl_add_u32 v{vB0}, v{vFB}, 4, v{vB0}",
         f"v_add_u32 v{vX}, s{sRING}, v{vB0}", f"v_add_u32 v{vB0}, s{sQ}, v{vB0}", f"v_xor_b32 v{vB1}, 64, v{vB0}",
         f"v_lshrrev_b32 v{vW2}, 2, v0", f"v_and_b32 v{vW2}, 4, v{vW2}", f"v_xor_b32 v{vW2}, v{vW2}, v0",
         f"v_and_b32 v{vW2}, 7, v{vW2}", f"v_lshlrev_b32 v{vW2}, 4, v{vW2}", f"v_lshrrev_b32 v{vFB}, 3, v0",
         f"v_lshl_add_u32 v{vW2}, v{vFB}, 10, v{vW2}",
         f"s_lshl_b32 s{u1}, s{sJ2}, 7", f"v_add_u32 v{vW2}, s{u1}, v{vW2}",
         f"v_and_b32 v{vFB}, 15, v0", f"v_lshlrev_b32 v{vFB}, 3, v{vFB}", f"v_add_u32 v{vFB}, {L_STAT}, v{vFB}",
         f"s_mov_b32 s32, 0xbfb8aa3b", f"s_mov_b32 s33, 0xbfb8aa3b",
         f"s_add_u32 s{u0}, s{sJ2}, 1",
         f"s_lshl_b32 s{u2}, s{sWAVE}, 3", f"s_lshr_b32 s{u2}, 0x05030200, s{u2}", f"s_and_b32 s{u2}, s{u2}, 7"]
late += [f"s_mov_b32 s{sKS}, s{sOWN}", f"s_and_b32 s28, s{sJ2}, 3"]
for n in range(7):
    late += [f"s_add_u32 s{u1}, s28, {n}\ns_sub_u32 s37, s{u1}, 7\ns_cmp_ge_u32 s{u1}, 7\ns_cselect_b32 s{u1}, s37, s{u1}",
             f"s_add_u32 s{u1}, s{u1}, s{u0}", f"s_and_b32 s{u1}, s{u1}, 7", f"s_mul_i32 s{u1}, s{u1}, 43",
             f"s_add_u32 s37, s{u1}, 35", f"s_lshr_b32 s{u1}, s{u1}, 3", f"s_lshr_b32 s37, s37, 3",
             f"s_add_u32 s{u1}, s{u1}, s{u2}", f"s_min_u32 s{sKS+1+n}, s{u1}, s37"]
for m in range(2):
    late += [f"s_add_u32 s{u1}, s{u0}, s{sWAVE}", f"s_add_u32 s{u1}, s{u1}, {4*m}", f"s_and_b32 s{u1}, s{u1}, 7",
             f"s_mul_i32 s{u1}, s{u1}, 43", f"s_lshr_b32 s{u1}, s{u1}, 3", f"s_add_u32 s{sKS+8+m}, s{u1}, 1"]
late += [f"s_lshl_b32 s{u1}, s{sWAVE}, 4", f"s_add_u32 s{u1}, s{u1}, 14", f"s_min_u32 s{u1}, s{u1}, 41",
         f"s_cmp_eq_u32 s{sWAVE}, 3\ns_cselect_b32 s{sKS+10}, 0x10000, s{u1}"]
sNEG = 32
lds_wait(vSYNC, 0, 4, 15)
stamp("g")


def g1_reads(b, slot):
    f = FB[b]
    L = [f"v_xor_b32 v{vA}, s{sKX}, v{vA0}\n"
         f"ds_read_b64_tr_b16 {vr(f,2)}, v{vT0} offset:{slot*3072}",
         f"ds_read_b64_tr_b16 {vr(f+2,2)}, v{vT0} offset:{slot*3072+256}",
         f"ds_read_b128 {vr(f+12,4)}, v{vA}",
         f"ds_read_b128 {vr(f+16,4)}, v{vA} offset:16384"]
    for hh in range(2):
        L.append(f"ds_read_b64_tr_b16 {vr(f+4+2*hh,2)}, v{vT1} offset:{slot*3072+256*hh}")
    L.append(f"ds_read_b128 {vr(f+20,4)}, v{vA} offset:32768")
    L.append(f"ds_read_b128 {vr(f+24,4)}, v{vA} offset:49152\ns_add_u32 s{sKX}, s{sKX}, 64\ns_and_b32 s{sKX}, s{sKX}, 0x3c0")
    for hh in range(2):
        L.append(f"ds_read_b64_tr_b16 {vr(f+8+2*hh,2)}, v{vT2} offset:{slot*3072+2048+512*hh}")
    return L


a(f"s_setprio {PG1}")
vm.wait("W0")
emit(g1_reads(0, 0))
XSTEP = 3
for n in range(16):
    f = FB[n & 1]
    mf = []
    for ct in range(3):
        for rt in range(4):
            ac = ACC1 + (ct * 4 + rt) * 4
            mf.append(f"v_mfma_f32_16x16x32_bf16 {vr(ac,4)}, {vr(f+4*ct,4)}, {vr(f+12+4*rt,4)}, {'0' if n == 0 else vr(ac,4)}")
        mf.append(f"v_mfma_f32_16x16x32_bf16 {vr(CS+4*ct,4)}, {vr(f+4*ct,4)}, {vr(ONES,4)}, {'0' if n == 0 else vr(CS+4*ct,4)}")
    a("s_waitcnt lgkmcnt(0)")
    head = w1_refill(n % 3, f"W{n+3}") if n + 3 < 16 else []
    merge(mf[:3], head)
    if n == XSTEP - 1:
        a(f"ds_read_b32 v{vTG}, v{vPW} offset:128")
    if n == XSTEP:
        assert "XS" not in vm.q
        ok = a.label("TOK")
        a(f"v_readfirstlane_b32 s{sTAG}, v{vTG}")
        a(f"s_cmp_lg_u32 s{sTAG}, 0")
        a(f"s_cbranch_scc1 {ok}")
        lds_wait(vPW, 32, 1, vTG)
        a(f"s_mov_b32 s{sTAG}, s{sT0}")
        a(f"{ok}:")
        a("v_mov_b32 v15, 0")
        publish(f"s{sXF}", vTG, 15)
        vm.issue("XFL")
    if n == opt("tstep", 12):
        lds_arrive(vSYNC, 30, 14)
    if n == opt("pstep", 9) and opt("umode", 1) == 2:
        lds_arrive(vSYNC, 31, 14)
    fill = []
    if n + 1 < 16:
        vm.wait(f"W{n+1}")
        fill = g1_reads((n + 1) & 1, (n + 1) % 3)
    for i, m in enumerate(mf[3:]):
        a(m)
        if fill:
            a(fill.pop(0))
        for _ in range(1 if n < 8 else 2):
            if late and n >= 1:
                t = late.pop(0)
                a(t)
                if "buffer_load" in t:
                    vm.issue("TG")
    if n in (3, 7, 11):
        stamp("g")
assert not late, len(late)
stamp("g")


def area_base(ar):
    return (sRING, 4096 * ar) if ar < 2 else (sQ, 4096 * (ar - 2))


def w2_dma(n, ar):
    sb, off = area_base(ar)
    L = [f"s_add_u32 m0, s{sb}, {off}\ns_lshl_b32 s{sT1}, s{sKS+n}, 15\n"
         f"buffer_load_dwordx4 v{vW2}, s[{S_W2}:{S_W2+3}], s{sT1} offen lds"]
    for u in range(1, 4):
        L.append(f"s_add_u32 s{sT2}, s{sT1}, {7168*u}\n"
                 f"buffer_load_dwordx4 v{vW2}, s[{S_W2}:{S_W2+3}], s{sT2} offen offset:{1024*u} lds")
    vm.issue(f"D{n}", 4)
    return L


vBR0, vBR1, vBQ0, vBQ1 = vX, vD0, vB0, vB1
def w2_reads(ws, ar):
    w = WR + 16 * ws
    b0, b1 = (vBR0, vBR1) if ar < 2 else (vBQ0, vBQ1)
    off = area_base(ar)[1]
    return [f"ds_read_b64_tr_b16 {vr(w+4*ct+2*hh,2)}, v{b1 if ct >> 1 else b0} offset:{off+8*(ct&1)+2048*hh}"
            for ct in range(4) for hh in range(2)]


a(f"s_setprio {PEPI}")
STR = F0
early = []
if not NOCONV:
    lds_wait(vSYNC, 3, 4, 14)
for rt in range(4):
    a(f"ds_read_b64 {vr(STR+2*rt,2)}, v{vFB} offset:{128*rt}")
XT = 148
a(f"s_lshl_b32 s{sT0}, s{sJ1}, 7")
a(f"s_add_u32 s{sT0}, s{sT0}, s{sQ}")
a(f"v_xor_b32 v{vA}, s{sT0}, v{vA0}")
a(f"v_xor_b32 v{vFA}, 64, v{vA}")
a(f"ds_read_b128 {vr(XT,4)}, v{vA}")
a(f"ds_read_b128 {vr(XT+4,4)}, v{vFA}")
a("v_mov_b32 v14, 1")
lds_arrive(vSYNC, 1, 14)
a(f"v_xor_b32 v{vBR1}, 64, v{vBR0}")
a("s_waitcnt lgkmcnt(0)")
T, PKR = F0 + 8, F0 + 24
HOWN = 240
for rt in range(4):
    rs = STR + 2 * rt
    for ct in range(3):
        for hf in range(2):
            ac = ACC1 + (ct * 4 + rt) * 4 + 2 * hf
            a(f"v_pk_mul_f32 {vr(ac,2)}, {vr(ac,2)}, {vr(rs,2)} op_sel_hi:[1,0]")
            a(f"v_pk_fma_f32 {vr(PKR+8+4*ct+2*hf,2)}, {vr(CS+4*ct+2*hf,2)}, {vr(rs,2)}, {vr(ac,2)} op_sel:[0,1,0] op_sel_hi:[1,1,1] neg_lo:[0,1,0] neg_hi:[0,1,0]")
    if early:
        a(early.pop(0))
    silu_pk(PKR + 8, T, 12, sNEG)
    if early:
        a(early.pop(0))
    pk = HOWN + 4 * rt
    hq = PKR + 28 + (0 if rt < 2 else 12)
    hq = 120 if rt < 2 else 124
    for i in range(4):
        a(f"v_cvt_pk_bf16_f32 v{pk+i}, v{PKR+8+2*i}, v{PKR+8+2*i+1}")
    for i in range(2):
        a(f"v_cvt_pk_bf16_f32 v{hq+2*(rt&1)+i}, v{PKR+16+2*i}, v{PKR+16+2*i+1}")
    a(f"buffer_store_dwordx4 {vr(pk,4)}, v{vL16}, s[{S_WS}:{S_WS+3}], s{sHF} offen offset:{1024*rt} sc1")
    if rt & 1:
        a(f"buffer_store_dwordx4 {vr(hq,4)}, v{vL16}, s[{S_WS}:{S_WS+3}], s{sHH} offen offset:{1024*(rt>>1)} sc1")
    DUP = opt("dup", 0)
    if DUP:
        fl = ["", "", "nt", "sc0"][DUP]
        a(f"buffer_store_dwordx4 {vr(pk,4)}, v{vL16}, s[{S_WS}:{S_WS+3}], s{sHF} offen offset:{1024*rt} {fl}")
        if rt & 1:
            a(f"buffer_store_dwordx4 {vr(hq,4)}, v{vL16}, s[{S_WS}:{S_WS+3}], s{sHH} offen offset:{1024*(rt>>1)} {fl}")
assert not early
vm.issue("S", 6)
a("v_mov_b32 v14, 1")
lds_arrive(vPW, 16, 14)
stamp("g")
fst_on = True
fst()
lds_wait(vSYNC, 1, 4, 14)
FF = opt("flagfirst", 0)
if not FF:
    emit(w2_dma(0, 0) + w2_dma(1, 1))
fst()
ACC2, HFR = 16, 80
SR = 128
vH, vXO, vSO, vFL, vP = 5, 9, 10, 14, 15
a(f"s_mov_b32 s{sI2}, s{sI1}")
for rp in range(4):
    a(f"s_xor_b32 s{sT0}, s{sWAVE}, {rp}")
    a(f"s_lshl_b32 s{sT0}, s{sT0}, 10")
    a(f"v_add_u32 v{vH+rp}, s{sT0}, v{vL16}")
a(f"s_lshl_b32 s{sG}, s{sI2}, 9")
a(f"s_add_u32 s{sG}, s{sG}, {HF}")
a(f"s_mul_i32 s{sK}, s{sI2}, {43*4096}")
a(f"s_add_u32 s{sK}, s{sK}, {HB}")
sSF = sHF
a("v_and_b32 v14, 15, v0")
a("v_lshrrev_b32 v15, 4, v0")
a("v_lshlrev_b32 v15, 4, v15")
a(f"v_lshl_add_u32 v{vXO}, v14, 10, v15")
a(f"s_lshl_b32 s9, s{sI2}, 16")
a(f"s_add_u32 s9, s9, s{sQ}")
a(f"s_lshl_b32 s{sT1}, s{sJ2}, 7")
a(f"s_add_u32 s9, s9, s{sT1}")
a("v_lshrrev_b32 v14, 3, v0")
a("v_bfe_u32 v15, v0, 2, 1")
a("v_lshlrev_b32 v15, 9, v15")
a(f"v_lshl_add_u32 v{vSO}, v14, 12, v15")
a("v_and_b32 v14, 3, v0")
a(f"v_lshl_add_u32 v{vSO}, v14, 4, v{vSO}")
a(f"s_lshr_b32 s{sT1}, s{sI2}, 3")
a(f"s_lshl_b32 s{sT1}, s{sT1}, 10")
a(f"s_bfe_u32 s{sT2}, s{sI2}, 0x10002")
a(f"s_lshl_b32 s{sT2}, s{sT2}, 8")
a(f"s_add_u32 s{sT1}, s{sT1}, s{sT2}")
a(f"s_and_b32 s{sT0}, s{sI2}, 3")
a(f"s_lshl_b32 s{sT0}, s{sT0}, 6")
a(f"s_add_u32 s{sT1}, s{sT1}, s{sT0}")
a(f"s_lshl_b32 s{sT0}, s{sJ2}, 18")
a(f"s_add_u32 s{sT1}, s{sT1}, s{sT0}")
a(f"s_lshl_b32 s{sT0}, s{sWAVE}, 16")
a(f"s_add_u32 s{sT1}, s{sT1}, s{sT0}")
a(f"s_add_u32 s{sGH}, s{sT1}, {ST}")
a(f"s_lshl_b32 s{sT0}, s{sJ2}, 1")
a(f"s_lshr_b32 s{sT1}, s{sI2}, 4")
a(f"s_add_u32 s{sT0}, s{sT0}, s{sT1}")
a(f"s_lshl_b32 s{sT0}, s{sT0}, 10")
a(f"s_lshl_b32 s{sT1}, s{sWAVE}, 8")
a(f"s_add_u32 s{sT0}, s{sT0}, s{sT1}")
a(f"s_add_u32 s{sSF}, s{sT0}, {SF}")
a("v_mov_b32 v15, 0")
vm.wait("S")
publish(f"s{sPEND}", 14, 15)
vm.issue("F")
stamp("g")
a(f"s_setprio {PG1}")
for n in range(0 if FF else 2, 6):
    emit(w2_dma(n, n))
a(f"v_and_b32 v{vFL}, 0x1ff, v{vL16}")
fst()
def h_loads(n):
    hs = n % 4
    L = []
    for rp in range(4):
        pre = f"s_lshl_b32 s{sT1}, s{sKS+n}, 12\ns_add_u32 s{sT1}, s{sT1}, s{sK}\n" if rp == 0 else ""
        if n == 8 and rp == 0:
            pre += (f"s_lshl_b32 s{sT0}, s{sWAVE}, 1\ns_lshr_b32 s{sT2}, s{sWAVE}, 1\ns_or_b32 s{sT0}, s{sT0}, s{sT2}\n"
                    f"s_and_b32 s{sT0}, s{sT0}, 3\ns_lshl_b32 s{sT0}, s{sT0}, 10\nv_add_u32 v{vH}, s{sT0}, v{vL16}\n")
            for i in range(1, 4):
                pre += f"v_xor_b32 v{vH+i}, {1024*i}, v{vH}\n"
        src = vH + rp if n < 8 else vH + 2 * (rp & 1) + (rp >> 1)
        L.append(pre + f"buffer_load_dwordx4 {vr(HFR+16*hs+4*rp,4)}, v{src}, s[{S_WS}:{S_WS+3}], s{sT1} offen sc1")
    vm.issue(f"H{n}", 4)
    return L


def h_fix(n):
    b = HFR + 16 * (n % 4)
    od, dn = a.label("HO"), a.label("HD")
    a(f"s_bitcmp1_b32 s{sWAVE}, 0")
    a(f"s_cbranch_scc1 {od}")
    for pp in range(2):
        for i in range(2):
            a(f"v_swap_b32 v{b+8*pp+2+i}, v{b+8*pp+4+i}")
    a(f"s_branch {dn}")
    a(f"{od}:")
    for pp in range(2):
        for i in range(2):
            a(f"v_swap_b32 v{b+8*pp+i}, v{b+8*pp+6+i}")
    a(f"{dn}:")
    a("s_nop 1")


PPOS, HPOS = opt("ppos", 3), opt("hpos", 5)
for n in range(6):
    vm.wait(f"D{n}")
    emit(w2_reads(n, n))
    if n >= 1:
        a("s_waitcnt lgkmcnt(8)")
        emit(w2_dma(5 + n, n - 1))
    if n == 1:
        labs = [a.label("OW") for _ in range(5)]
        for v in range(1, 4):
            a(f"s_cmp_eq_u32 s{sWAVE}, {v}")
            a(f"s_cbranch_scc1 {labs[v]}")
        for v in range(4):
            a(f"{labs[v]}:")
            for rt in range(4):
                for ct in range(4):
                    ac = ACC2 + (ct * 4 + (rt ^ v)) * 4
                    a(f"v_mfma_f32_16x16x32_bf16 {vr(ac,4)}, {vr(WR+4*ct,4)}, {vr(HOWN+4*rt,4)}, 0")
            if v < 3:
                a(f"s_branch {labs[4]}")
        a(f"{labs[4]}:")
    if n == PPOS:
        a(f"buffer_load_dword v{vP}, v{vFL}, s[{S_WS}:{S_WS+3}], s{sG} offen sc1")
        vm.issue("HP")
    if n == HPOS:
        stamp("g")
        dn = a.label("HOK")
        vm.wait("HP")
        a(f"v_cmp_ne_u32 vcc, s{sTAG}, v{vP}")
        a("s_nop 1")
        a("s_cmp_eq_u64 vcc, 0")
        a(f"s_cbranch_scc1 {dn}")
        poll_flags(vFL, f"s{sG}", vP)
        a(f"{dn}:")
        stamp("g")
        for k in range(1, 4):
            emit(h_loads(k))
a(f"v_and_b32 v{vFL}, 0xff, v{vL16}")
vRW, vSW2 = 156, 157
a(f"v_add_u32 v{vRW}, s{sQ}, v{vL16}")
a(f"v_lshrrev_b32 v{vSW2}, 3, v0")
a(f"v_lshlrev_b32 v{vSW2}, 7, v{vSW2}")
a("v_and_b32 v158, 3, v0")
a(f"v_lshl_add_u32 v{vSW2}, v158, 5, v{vSW2}")
a("v_bfe_u32 v158, v0, 2, 1")
a(f"v_lshl_add_u32 v{vSW2}, v158, 4, v{vSW2}")
a(f"v_add_u32 v{vSW2}, s{sRING}, v{vSW2}")
a("v_lshrrev_b32 v158, 5, v0")
a(f"v_mul_u32_u24 v158, {RINGB}, v158")
a("v_bfe_u32 v159, v0, 4, 1")
a("v_lshl_add_u32 v158, v159, 10, v158")
a("v_bfe_u32 v159, v0, 2, 2")
a("v_lshl_add_u32 v158, v159, 7, v158")
a("v_and_b32 v159, 3, v0")
a("v_lshl_add_u32 v158, v159, 3, v158")
a(f"s_lshl_b32 s{sT0}, s{sWAVE}, 5")
a(f"s_add_u32 s{sT0}, s{sT0}, {L_RING}")
a(f"v_add_u32 v158, s{sT0}, v158")
a("v_mov_b32 v159, 1")
for n in range(1, 11):
    ws, hs = n % 6, n % 4
    mf = []
    for rp in (1, 2, 3, 0):
        for ct in range(4):
            ac = ACC2 + (ct * 4 + rp) * 4
            mf.append(f"v_mfma_f32_16x16x32_bf16 {vr(ac,4)}, {vr(WR+16*ws+4*ct,4)}, {vr(HFR+16*hs+4*rp,4)}, {vr(ac,4)}")
    vm.wait(f"H{n}")
    if n >= 8:
        h_fix(n)
    if n == 1 or n >= 6:
        a("s_waitcnt lgkmcnt(0)")
    if 1 <= n <= 5:
        vm.wait(f"D{n+5}")
    fill = h_loads(n + 3) if n + 3 < 11 else []
    if n == 8 and not NOCONV:
        fill = [f"buffer_load_dword v{vP}, v{vFL}, s[{S_WS}:{S_WS+3}], s{sSF} offen sc1"]
        vm.issue("SP")
    if 1 <= n <= 5:
        vm.wait(f"D{n+5}")
        fill += w2_reads((n + 5) % 6, n - 1)
    if n == 9:
        for rp in range(1, 4):
            fill += [f"s_xor_b32 s{sT0}, s{sWAVE}, {rp}\ns_lshl_b32 s{sT0}, s{sT0}, 14\nv_add_u32 v{vH+rp}, s{sT0}, v{vL16}"]
    if n == 10:
        emit(mf[:7])
        wr = [f"ds_write_b128 v{vRW}, {vr(ACC2+(ct*4+rp)*4,4)} offset:{(rp-1)*4096+ct*1024}" for rp in range(1, 4) for ct in range(4)]
        merge(mf[7:], wr)
    else:
        merge(mf, fill)
    if n in (1, 3, 5, 7, 8):
        fst()
    if n == 9:
        if not NOCONV:
            dn = a.label("SOK")
            vm.wait("SP")
            a(f"v_cmp_ne_u32 vcc, s{sTAG}, v{vP}")
            a("s_nop 1")
            a("s_cmp_eq_u64 vcc, 0")
            a(f"s_cbranch_scc1 {dn}")
            poll_flags(vFL, f"s{sSF}", vP)
            a(f"{dn}:")
        a(f"s_add_u32 s{sT2}, s{sGH}, {8*4096}")
        a(f"buffer_load_dwordx4 {vr(SR,4)}, v{vSO}, s[{S_WS}:{S_WS+3}], s{sGH} offen sc1")
        a(f"buffer_load_dwordx4 {vr(SR+4,4)}, v{vSO}, s[{S_WS}:{S_WS+3}], s{sT2} offen sc1")
        vm.issue("SL", 2)
stamp("g")
a(f"s_setprio {PEPI}")
a("s_waitcnt vmcnt(0)")
a(f"ds_write_b128 v{vSW2}, {vr(SR,4)}")
a(f"ds_write_b128 v{vSW2}, {vr(SR+4,4)} offset:1024")
lds_arrive(vSYNC, 2, 159)
lds_wait(vSYNC, 2, 4, 14)
stamp("g")
PR = HFR
for rp in range(1, 4):
    for ct in range(4):
        a(f"ds_read_b128 {vr(PR+16*(rp-1)+4*ct,4)}, v{vH+rp} offset:{(rp-1)*4096+ct*1024}")
O = WR
for sidx in range(3):
    a(f"s_waitcnt lgkmcnt({8-4*sidx})")
    for ct in range(4):
        for hf in range(2):
            src = (ACC2 + ct * 16 + 2 * hf) if sidx == 0 else (O + 4 * ct + 2 * hf)
            a(f"v_pk_add_f32 {vr(O+4*ct+2*hf,2)}, {vr(src,2)}, {vr(PR+16*sidx+4*ct+2*hf,2)}")
for ct in range(4):
    a(f"ds_read_b64_tr_b16 {vr(SR+2*ct,2)}, v158 offset:{512*(ct&1)+2*RINGB*(ct>>1)}")
silu_pk(O, O + 16, 16, sNEG)
a("s_waitcnt lgkmcnt(0)")
for ct in range(4):
    for hf in range(2):
        sdw = SR + 2 * ct + hf
        xdw = XT + 2 * ct + hf
        t = O + 16 + 4 * (2 * (ct & 1) + hf)
        a(f"v_lshlrev_b32 v{t}, 16, v{sdw}")
        a(f"v_and_b32 v{t+1}, 0xffff0000, v{sdw}")
        a(f"v_lshlrev_b32 v{t+2}, 16, v{xdw}")
        a(f"v_and_b32 v{t+3}, 0xffff0000, v{xdw}")
        a(f"v_pk_fma_f32 {vr(t,2)}, {vr(t,2)}, {vr(O+4*ct+2*hf,2)}, {vr(t+2,2)}")
        a(f"v_cvt_pk_bf16_f32 v{xdw}, v{t}, v{t+1}")
    if ct & 1:
        hf = ct >> 1
        a(f"buffer_store_dwordx4 {vr(XT+4*hf,4)}, v{vXO}, s[{S_OUT}:{S_OUT+3}], s9 offen offset:{64*hf} sc1")
stamp("g")
dump_stamps("g")
a("s_endpgm")

a("L_conv:")
sCH, sP, sCB, sDT, sDS, sCW = 10, 11, 6, 7, 9, 12
a(f"s_setprio {opt('pc0', 2)}")
a("v_mov_b32 v15, 0")
a("v_lshlrev_b32 v14, 2, v0")
a(f"v_add_u32 v14, {L_SYNC}, v14")
a(f"s_cmp_lg_u32 s{sWAVE}, 4")
a("s_cbranch_scc1 L_nozero")
a("ds_write_b32 v14, v15")
a("L_nozero:")
a(f"s_lshl_b32 s{sT0}, s{sXCD}, 5")
a(f"s_add_u32 s{sT0}, s{sT0}, s{sSLOT}")
a(f"s_lshl_b32 s{sT1}, s{sT0}, 2")
a(f"s_bfe_u32 s{sT2}, s{sWAVE}, 0x10001")
a(f"s_lshl_b32 s{sCH}, s{sT0}, 1")
a(f"s_add_u32 s{sCH}, s{sCH}, s{sT2}")
a(f"s_and_b32 s{sP}, s{sWAVE}, 1")
a(f"s_and_b32 s{sCW}, s{sWAVE}, 3")
a(f"s_mul_i32 s{sCB}, s{sT2}, {CSTR}")
a(f"s_add_u32 s{sCB}, s{sCB}, {L_CONV}")
a(f"s_lshl_b32 s{sT0}, s{sCH}, 8")
a(f"s_lshl_b32 s{sT3}, s{sP}, 7")
a(f"s_add_u32 s{sT0}, s{sT0}, s{sT3}")
a("v_lshlrev_b32 v3, 1, v0")
for k in range(4):
    a(f"s_mov_b32 s{46+4*k}, {512*128*2}")
    a(f"s_mov_b32 s{47+4*k}, 0x00020000")
a("s_waitcnt lgkmcnt(0)")
if DIAG:
    a(f"s_mov_b32 s{STAMP0}, s100")
for k in range(4):
    a(f"s_mov_b32 s{44+4*k}, s{18+2*k}")
    a(f"s_and_b32 s{45+4*k}, s{19+2*k}, 0xffff")
    a(f"buffer_load_ushort v{4+k}, v3, s[{44+4*k}:{47+4*k}], s{sT0} offen")
a("s_barrier")
a(f"s_load_dword s{sDT}, s[26:27], s{sT1}")
a(f"s_load_dword s{sDS}, s[28:29], s{sT1}")
srd(S_WS, 40, WSB)
srd(S_DBG, 38, 256)
vEP, vTGc, PFD = 255, 254, 248
a(f"s_or_b32 s77, s2, s{sCW}")
a("s_cmp_lg_u32 s77, 0")
a("s_cbranch_scc1 L_noepoch")
a(f"buffer_load_dword v{vEP}, v15, s[{S_WS}:{S_WS+3}], 0 offen sc1")
a("L_noepoch:")
def post_tag():
    a("s_cmp_lg_u32 s77, 0")
    a("s_cbranch_scc1 L_noepoch2")
    a(f"v_add_u32 v14, 0x9e3779b8, v{vEP}")
    a("v_or_b32 v14, 1, v14")
    a("s_mov_b64 exec, 1")
    a(f"buffer_store_dword v14, v15, s[{S_DBG}:{S_DBG+3}], 0 offen sc1")
    a(f"buffer_store_dword v14, v15, s[{S_WS}:{S_WS+3}], 0 offen sc1")
    a("s_mov_b64 exec, -1")
    a("L_noepoch2:")
if NOCONV:
    a("s_waitcnt vmcnt(0)")
    post_tag()
    a("s_endpgm")
V, PK, DT, LOF, HIF, SEL, GA, MK = 64, 96, 112, 144, 160, 176, 208, 227
KD = 52
vKA, vUA, vTKa, vTKb, vTK2, vTK0, vKW, vSA = 231, 232, 233, 234, 235, 236, 237, 238
vXT, vXS, vSTA, vM, vQ, vPS = 242, 246, 247, 252, 253, 3
a(f"v_and_b32 v{vM}, 15, v0")
a(f"v_lshrrev_b32 v{vQ}, 4, v0")
a("v_and_b32 v10, 1, v0")
a("v_lshlrev_b32 v10, 4, v10")
a("v_mov_b32 v11, 0x3f80")
a("v_lshlrev_b32 v10, v10, v11")
a("v_lshrrev_b32 v11, 1, v0")
for g in range(8):
    for d in range(4):
        if d & 1:
            a(f"v_cndmask_b32 v{SEL+4*g+d}, 0, v10, s[74:75]")
        else:
            a(f"v_cmp_eq_u32 vcc, {4*g+d}, v11")
            a(f"v_cmp_eq_u32 s[74:75], {4*g+d+1}, v11")
            a("s_nop 0")
            a(f"v_cndmask_b32 v{SEL+4*g+d}, 0, v10, vcc")
a(f"s_lshl_b32 s{sT0}, s{sP}, 2")
a(f"s_add_u32 s{sT0}, s{sT0}, s{sCB}")
a(f"s_add_u32 s{sT0}, s{sT0}, {C_TK}")
a(f"v_lshrrev_b32 v10, 1, v{vQ}")
a("v_lshlrev_b32 v10, 7, v10")
a(f"v_and_b32 v11, 1, v{vQ}")
a("v_lshl_add_u32 v10, v11, 2, v10")
a(f"v_lshl_add_u32 v10, v{vM}, 3, v10")
a(f"v_lshl_add_u32 v{vTK0}, v10, 3, s{sT0}")
a(f"v_lshlrev_b32 v10, 6, v{vQ}")
a(f"v_lshlrev_b32 v11, 1, v{vM}")
a(f"v_cmp_gt_u32 vcc, 2, v{vQ}")
a("v_add_u32 v10, v10, v11")
a("v_add_u32 v10, 256, v10")
a("v_cndmask_b32 v11, 0, v11, vcc")
a("v_add_u32 v10, v10, v11")
a(f"v_lshl_add_u32 v{vTKa}, v10, 3, s{sT0}")
a("v_mov_b32 v11, 256")
a("v_cndmask_b32 v11, v11, 16, vcc")
a(f"v_add_u32 v{vTKb}, v{vTKa}, v11")
a(f"v_lshl_add_u32 v10, v{vQ}, 6, v{vM}")
a("v_add_u32 v10, 512, v10")
a(f"v_lshl_add_u32 v{vTK2}, v10, 3, s{sT0}")
a(f"s_bfe_u32 s{sT2}, s{sWAVE}, 0x10001")
a(f"s_lshl_b32 s{sT2}, s{sT2}, 4")
a(f"v_add_u32 v{vPS}, s{sT2}, v2")
stamp("c")
a("s_waitcnt lgkmcnt(0)")
a(f"s_lshr_b32 s{sDT}, s{sDT}, s{sT2}")
a(f"s_lshl_b32 s{sDT}, s{sDT}, 16")
a(f"s_lshr_b32 s{sDS}, s{sDS}, s{sT2}")
a(f"s_lshl_b32 s{sDS}, s{sDS}, 16")
a(f"s_mov_b32 s{sT3}, 0x3fb8aa3b")
a(f"v_mov_b32 v8, s{sDT}")
a(f"v_mul_f32 v8, s{sT3}, v8")
a("v_exp_f32 v8, v8")
a("s_waitcnt vmcnt(0)")
stamp("c")
post_tag()
for k in range(4):
    a(f"v_lshlrev_b32 v{4+k}, 16, v{4+k}")
a("v_cvt_pk_bf16_f32 v8, v8, v8")
a("v_lshlrev_b32 v8, 16, v8")
a(f"v_mul_f32 v4, s{sT3}, v4")
a("v_exp_f32 v4, v4")
a("v_mul_f32 v5, v5, v8")
a("v_cvt_pk_bf16_f32 v4, v4, v4")
a("v_lshlrev_b32 v4, 16, v4")
a("v_mul_f32 v4, v4, v8")
a(f"v_mul_f32 v4, 0xbfb8aa3b, v4")
a("v_mul_f32 v5, 0.15915494, v5")
Y = 20
a("v_add_f32 v8, v8, v8")
a(f"v_mul_f32 v{Y}, v6, v8")
a(f"v_mul_f32 v{Y+1}, v7, v8")
Z1, Z8, Z128, Yn = 24, 22, 40, 50
for (dst, mul) in ((Z8, "0x41000000"), (Z1, None), (Z128, "0x43000000")):
    if mul is None:
        a("v_exp_f32 v10, v4")
        a("v_fract_f32 v11, v5")
    else:
        a(f"v_mul_f32 v10, {mul}, v4")
        a(f"v_mul_f32 v11, {mul}, v5")
        a("v_fract_f32 v11, v11")
        a("v_exp_f32 v10, v10")
    a("v_cos_f32 v12, v11")
    a("v_sin_f32 v13, v11")
    a(f"v_mul_f32 v{dst}, v10, v12")
    a(f"v_mul_f32 v{dst+1}, v10, v13")
ctmp = [42, 44, 46, 48]
cti = [0]


def cmul(d, x, y):
    assert d not in (x, y)
    return (f"v_mul_f32 v{d}, v{x}, v{y}\nv_mul_f32 v{d+1}, v{x}, v{y+1}\n"
            f"v_fma_f32 v{d}, -v{x+1}, v{y+1}, v{d}\nv_fmac_f32 v{d+1}, v{x+1}, v{y}")


def pcmul(d, x, y):
    t = ctmp[cti[0] % 4]; cti[0] += 1
    return (f"v_pk_mul_f32 {vr(t,2)}, {vr(x,2)}, {vr(y,2)} op_sel:[0,0] op_sel_hi:[0,1]\n"
            f"v_pk_fma_f32 {vr(d,2)}, {vr(x,2)}, {vr(y,2)}, {vr(t,2)} op_sel:[1,1,0] op_sel_hi:[1,0,1] neg_lo:[0,1,0]")


def mov2(d, x):
    return f"v_mov_b32 v{d}, v{x}\nv_mov_b32 v{d+1}, v{x+1}"


def Wp(e): return Z1 + 2 * (e - 1)


def pack(neg_im):
    ng = "-" if neg_im else ""
    for i in range(8):
        a(f"v_cvt_pk_bf16_f32 v{PK+i}, v{V+4*i}, v{V+4*i+2}")
        a(f"v_cvt_pk_bf16_f32 v{PK+8+i}, {ng}v{V+4*i+1}, {ng}v{V+4*i+3}")


def transpose_mfmas():
    L = []
    for h in range(2):
        for q0 in range(4):
            for part in range(2):
                d = DT + 8 * q0 + 4 * part
                L.append(f"v_mfma_f32_16x16x32_bf16 {vr(d,4)}, {vr(PK+8*part+4*h,4)}, {vr(SEL+4*(2*q0+h),4)}, {'0' if h == 0 else vr(d,4)}")
    return L


def frags(dst):
    for q0 in range(4):
        for i in range(4):
            a(f"v_cvt_pk_bf16_f32 v{dst+4*q0+i}, v{DT+8*q0+2*i}, v{DT+8*q0+2*i+1}")


def contract(t):
    return [f"v_mfma_f32_16x16x32_bf16 {vr(KD+4*t,4)}, {vr(HIF+4*ks,4)}, {vr(LOF+4*ks,4)}, {'0' if ks == 0 else vr(KD+4*t,4)}" for ks in range(4)]


a(f"v_mov_b32 v{V}, 1.0")
a(f"v_mov_b32 v{V+1}, 0")
a(mov2(V + 2, Z8))
a(pcmul(V + 4, Z8, Z8))
a(pcmul(Wp(2), Z1, Z1))
for j in range(3, 16):
    a(pcmul(V + 2 * j, V + 2 * (j - 2), V + 4))
    if j <= 7:
        a(pcmul(Wp(j), Wp(j - 2), Wp(2)))
a(pcmul(Yn, Y, Z128))
pack(True)
KM = opt("kmode", 1)
cm = pcmul if KM else cmul


def tr_block(extra, dst, before):
    L = list(before)
    for q0 in range(4):
        for h in range(2):
            for part in range(2):
                d = DT + 8 * q0 + 4 * part
                L.append(f"v_mfma_f32_16x16x32_bf16 {vr(d,4)}, {vr(PK+8*part+4*h,4)}, {vr(SEL+4*(2*q0+h),4)}, {'0' if h == 0 else vr(d,4)}")
    cv = [f"v_cvt_pk_bf16_f32 v{dst+4*q0+i}, v{DT+8*q0+2*i}, v{DT+8*q0+2*i+1}" for q0 in range(4) for i in range(4)]
    nb = len(before)
    for i, m in enumerate(L):
        a(m)
        k = i - nb
        if k >= 8 and cv:
            a(cv.pop(0))
        elif extra:
            a(extra.pop(0))
    emit(cv)
    emit(extra)


t0 = []
for i, yy in enumerate((Y, Yn)):
    t0.append(mov2(V + 16 * i, yy))
    t0 += [cm(V + 16 * i + 2 * e, yy, Wp(e)) for e in range(1, 8)]
t1 = [cm(V + 0, Yn, Z128), cm(V + 8, V + 0, Z128), cm(V + 16, V + 8, Z128)]
t1 += [cm(V + 2 * e, V + 0, Wp(2 * e)) for e in range(1, 4)]
t1 += [cm(V + 20, V + 16, Z128)]
t1 += [cm(V + 8 + 2 * e, V + 8, Wp(2 * e)) for e in range(1, 4)]
t1 += [cm(V + 24, V + 20, Z128), cm(V + 18, V + 16, Wp(4)), cm(V + 28, V + 24, Z128), cm(V + 22, V + 20, Wp(4)),
       cm(Yn, V + 28, Z128), cm(V + 26, V + 24, Wp(4)), cm(V + 30, V + 28, Wp(4))]
t2 = [mov2(V, Yn), cmul(Y, Z128, Z128), cmul(V + 2, Yn, Z128)]
t2 += [cmul(V + 2 * i, V + 2 * (i - 2), Y) for i in range(2, 9)]
if KM:
    emit(t0)
    tr_block([], LOF, [])
    pack(False)
    emit(t1)
    tr_block([], HIF, [])
    pack(False)
    a(f"buffer_load_dword v{vTGc}, v15, s[{S_DBG}:{S_DBG+3}], 0 offen sc1")
    tr_block(t2, HIF, contract(0))
    pack(False)
    tr_block([f"ds_write_b32 v{vTK0}, v{KD+rho} offset:{8*rho}" for rho in range(4)], HIF, contract(1))
    for rho in range(4):
        a(f"ds_write_b32 v{vTKb if rho >> 1 else vTKa}, v{KD+4+rho} offset:{8*(rho&1)}")
    emit(contract(2))
else:
    merge(transpose_mfmas(), t0)
    pack(False)
    frags(LOF)
    merge(transpose_mfmas(), t1)
    pack(False)
    frags(HIF)
    merge(contract(0) + transpose_mfmas(), t2)
    pack(False)
    frags(HIF)
if not KM:
    merge(contract(1) + transpose_mfmas(), [f"ds_write_b32 v{vTK0}, v{KD+rho} offset:{8*rho}" for rho in range(4)], first=2, every=3)
    for rho in range(4):
        a(f"ds_write_b32 v{vTKb if rho >> 1 else vTKa}, v{KD+4+rho} offset:{8*(rho&1)}")
    frags(HIF)
    emit(contract(2))
a("v_mov_b32 v14, 1")
a(f"s_lshl_b32 s{sT0}, s{sCW}, 2")
a(f"v_add_u32 v12, s{sT0}, v2")
for rho in range(4):
    a(f"ds_write_b32 v{vTK2}, v{KD+8+rho} offset:{128*rho}")
lds_arrive(vPS, 4, 14)
a("s_waitcnt vmcnt(0)")
get_tag(vTGc, 15)
a(f"v_mov_b32 v13, s{sTAG}")
a("s_mov_b64 exec, 1")
a("ds_write_b32 v12, v13 offset:128")
a("s_mov_b64 exec, -1")
a(f"s_setprio {PCONV}")
stamp("c")
a(f"v_lshlrev_b32 v10, 3, v{vQ}")
a(f"v_sub_u32 v10, v{vM}, v10")
a(f"s_mul_i32 s{sT0}, s{sP}, 100")
a(f"s_add_u32 s{sT0}, s{sT0}, 16")
a(f"v_add_u32 v10, s{sT0}, v10")
a("v_mov_b32 v12, 0xffff")
a("v_mov_b32 v13, 0xffff0000")
for d in range(4):
    a(f"v_cmp_le_i32 vcc, {2*d}, v10")
    a(f"v_cmp_le_i32 s[72:73], {2*d+1}, v10")
    a(f"v_cndmask_b32 v{MK+d}, 0, v12, vcc")
    a("v_cndmask_b32 v11, 0, v13, s[72:73]")
    a(f"v_or_b32 v{MK+d}, v{MK+d}, v11")
a(f"v_and_b32 v10, 3, v{vM}")
a(f"v_mul_u32_u24 v10, {KCS}, v10")
a(f"v_lshrrev_b32 v11, 2, v{vM}")
a("v_lshlrev_b32 v11, 3, v11")
a("v_sub_u32 v10, v10, v11")
a(f"v_lshl_add_u32 v10, v{vQ}, 4, v10")
a(f"s_lshl_b32 s{sT0}, s{sP}, 8")
a(f"s_sub_u32 s{sT0}, s{sCB}, s{sT0}")
a(f"s_add_u32 s{sT1}, s{sT0}, 24")
a(f"v_add_u32 v{vKA}, s{sT1}, v10")
a(f"v_lshlrev_b32 v10, 5, v{vM}")
a(f"v_lshl_add_u32 v10, v{vQ}, 4, v10")
a(f"s_add_u32 s{sT1}, s{sT0}, {C_UL}")
a(f"v_add_u32 v{vUA}, s{sT1}, v10")
a(f"s_add_u32 s{sT0}, s{sCB}, {C_UL}")
a(f"v_add_u32 v10, s{sT0}, v1")
for i in range(4):
    a(f"v_mov_b32 v{16+i}, 0")
a("v_cmp_gt_u32 vcc, 30, v0")
a("s_and_saveexec_b64 s[72:73], vcc")
a("ds_write_b128 v10, v[16:19]")
a("s_mov_b64 exec, -1")
a(f"s_lshl_b32 s{sT0}, s{sP}, 6")
a(f"v_add_u32 v12, s{sT0}, v0")
a(f"v_lshl_add_u32 v{vKW}, v12, 5, s{sCB}")
a("v_lshlrev_b32 v13, 4, v12")
a("v_sub_u32 v13, 0x7ff, v13")
a("v_cvt_f32_u32 v16, v13")
a(f"s_add_u32 s{sT1}, s{sCB}, {C_TK}")
a(f"v_lshl_add_u32 v17, v13, 3, s{sT1}")
a(f"s_add_u32 s{sT0}, s{sT1}, {8*127}")
a(f"v_mov_b32 v18, s{sT0}")
a(f"s_sub_u32 s{sT0}, s{sT1}, {8*0x4280}")
for s in range(0, 19, 2):
    a(f"v_subrev_f32 v10, {float(s)}, v16" if s else "v_mov_b32 v10, v16")
    a(f"v_subrev_f32 v11, {float(s+1)}, v16")
    a("v_cvt_pk_bf16_f32 v10, v10, v11")
    for k in range(2):
        if s + k > 18:
            continue
        a("v_and_b32 v11, 0x7fff, v10" if k == 0 else "v_bfe_u32 v11, v10, 16, 15")
        a(f"v_lshl_add_u32 v11, v11, 3, s{sT0}")
        a(f"v_subrev_u32 v12, {8*(s+k)}, v17")
        a(f"v_med3_i32 v12, v12, s{sT1}, v18")
        a(f"v_max_i32 v{GA+s+k}, v11, v12")
stamp("c")
a(f"s_lshl_b32 s{sT0}, s{sXCD}, 11")
a(f"s_add_u32 s74, s{sT0}, {XF}")
a(f"s_lshr_b32 s{sT0}, s{sCH}, 2")
a(f"s_lshl_b32 s{sT0}, s{sT0}, 14")
a(f"s_and_b32 s{sT1}, s{sCH}, 2")
a(f"s_lshl_b32 s{sT1}, s{sT1}, 4")
a(f"s_add_u32 s{sT0}, s{sT0}, s{sT1}")
a(f"s_lshl_b32 s{sT1}, s{sCW}, 12")
a(f"s_add_u32 s{sT0}, s{sT0}, s{sT1}")
a(f"s_add_u32 s75, s{sT0}, {XNT}")
a(f"s_lshl_b32 s{sT1}, s{sCW}, 9")
a(f"s_add_u32 s74, s74, s{sT1}")
a("v_and_b32 v7, 0x1ff, v1")
a("v_lshrrev_b32 v10, 1, v0")
a("v_and_b32 v11, 1, v0")
a("v_lshlrev_b32 v9, 6, v10")
a("v_lshl_add_u32 v9, v11, 4, v9")
a(f"v_mul_u32_u24 v11, {CSTR}, v11")
a("v_lshl_add_u32 v10, v10, 4, v11")
a(f"s_lshl_b32 s{sT0}, s{sCW}, 10")
a(f"s_add_u32 s{sT0}, s{sT0}, {L_CONV+C_UL+480}")
a(f"v_add_u32 v8, s{sT0}, v10")
GV, KP = 64, 112
lds_wait(vPS, 4, 2, 13)
for s in range(19):
    a(f"ds_read_b64 {vr(GV+2*s,2)}, v{GA+s}")
a("s_waitcnt lgkmcnt(0)")
for s in range(19):
    a(f"v_add_f32 v{GV+2*s}, v{GV+2*s}, v{GV+2*s+1}")
for kap in range(4):
    for d in range(8):
        s0 = 3 - kap + 2 * d
        a(f"v_cvt_pk_bf16_f32 v{KP+8*kap+d}, v{GV+2*s0}, v{GV+2*(s0+1)}")
def k_copies():
    for kap in range(4):
        for hq in range(2):
            a(f"ds_write_b128 v{vKW}, {vr(KP+8*kap+4*hq,4)} offset:{kap*KCS+16*hq}")
a(f"s_lshl_b32 s{sT0}, s{sCW}, 2")
a(f"v_add_u32 v12, s{sT0}, v2")
a("v_mov_b32 v14, 1")
srd(44, 34, 512 * 1376 * 2)
a(f"s_lshl_b32 s{sT0}, s{sSLOT}, 2")
a(f"s_add_u32 s{sT0}, s{sT0}, s{sCW}")
a(f"s_mul_i32 s{sT0}, s{sT0}, 43")
a(f"s_lshr_b32 s{sT0}, s{sT0}, 2")
a(f"s_lshl_b32 s{sT0}, s{sT0}, 10")
a(f"s_and_b32 s{sT1}, s{sXCD}, 1")
a(f"s_lshl_b32 s{sT1}, s{sT1}, 9")
a(f"s_add_u32 s78, s{sT0}, s{sT1}")
a("v_lshrrev_b32 v10, 5, v0")
a("v_and_b32 v11, 0x1f0, v1")
a("v_lshl_add_u32 v10, v10, 10, v11")
stamp("c")
def u_loads():
    for i in range(2):
        a(f"buffer_load_dwordx4 {vr(16+4*i,4)}, v9, s[{S_WS}:{S_WS+3}], s75 offen offset:{2048*i} sc1")
def touch():
    for k in range(6):
        if k and k % 2 == 0:
            a("s_add_u32 s78, s78, 4096")
        a(f"buffer_load_dwordx4 {vr(PFD,4)}, v10, s[44:47], s78 offen offset:{2048*(k%2)}")
UM = opt("umode", 1)
if UM == 0:
    poll_flags(7, "s74", 13, sleep=4)
    u_loads()
if UM == 2:
    lds_wait(2, 31, 4, 13)
    poll_flags(7, "s74", 13, sleep=4)
lds_wait(2, 30, 4, 13)
if UM == 1:
    a(f"buffer_load_dword v13, v7, s[{S_WS}:{S_WS+3}], s74 offen sc1")
if UM == 2:
    u_loads()
touch()
if UM == 1:
    dn = a.label("XOK")
    a("s_waitcnt vmcnt(6)")
    a(f"v_cmp_ne_u32 vcc, s{sTAG}, v13")
    a("s_nop 1")
    a("s_cmp_eq_u64 vcc, 0")
    a(f"s_cbranch_scc1 {dn}")
    poll_flags(7, "s74", 13, sleep=2)
    a(f"{dn}:")
    u_loads()
stamp("c")
k_copies()
a(f"s_waitcnt vmcnt({0 if UM == 1 else 6})")
for i in range(2):
    a(f"ds_write_b128 v8, {vr(16+4*i,4)} offset:{512*i}")
lds_arrive(2, 12, 14)
a(f"s_setprio {PCM}")
lds_wait(2, 12, 4, 13)
stamp("c")
if opt("gate", 1):
    lds_wait(12, 16, 1, 13)
stamp("c")
CA = 16
FR = [48, 112]


def conv_reads(rho, b):
    f = FR[b]
    L = []
    for s in range(8):
        L.append(f"ds_read_b128 {vr(f+32+4*s,4)}, v{vUA} offset:{512*s+64*(7-rho)}")
        for hh in range(2):
            L.append(f"ds_read_b64 {vr(f+4*s+2*hh,2)}, v{vKA} offset:{64*(63-8*s-rho)+8*hh}")
    return L


emit(conv_reads(0, 0))
for rho in range(4):
    f = FR[rho & 1]
    a("s_waitcnt lgkmcnt(0)")
    if rho == 0:
        for d in range(4):
            a(f"v_and_b32 v{f+d}, v{f+d}, v{MK+d}")
    mf = []
    seen = set()
    for s in range(8):
        for w in range(8 - s):
            t = s + w
            c = "0" if (rho == 0 and t not in seen) else vr(CA + 4 * t, 4)
            seen.add(t)
            mf.append(f"v_mfma_f32_16x16x32_bf16 {vr(CA+4*t,4)}, {vr(f+4*s,4)}, {vr(f+32+4*w,4)}, {c}")
    if rho < 3:
        merge(mf, conv_reads(rho + 1, (rho + 1) & 1))
    else:
        tail = [f"s_add_u32 s{sT0}, s{sCB}, {C_TK}", f"s_lshl_b32 s{sT1}, s{sP}, 12", f"s_add_u32 s{sT2}, s{sT0}, s{sT1}",
                f"v_add_u32 v12, s{sT2}, v1", f"s_xor_b32 s{sT1}, s{sT1}, 4096", f"s_add_u32 s{sT2}, s{sT0}, s{sT1}",
                f"v_add_u32 v11, s{sT2}, v1",
                f"v_lshlrev_b32 v10, 5, v{vM}", f"v_lshl_add_u32 v10, v{vQ}, 3, v10",
                f"s_lshl_b32 s{sT0}, s{sP}, 11", f"s_add_u32 s{sT0}, s{sT0}, s{sCB}", f"s_add_u32 s{sT0}, s{sT0}, {C_UL+480}",
                f"v_add_u32 v10, s{sT0}, v10"]
        tail += [f"ds_read_b64 {vr(48+2*i,2)}, v10 offset:{512*i}" for i in range(4)]
        tail += [f"s_lshl_b32 s{sT0}, s{sCH}, 12", f"s_lshl_b32 s{sT1}, s{sP}, 11", f"s_add_u32 s{sT0}, s{sT0}, s{sT1}",
                 f"s_add_u32 s70, s{sT0}, {ST}",
                 f"s_lshl_b32 s{sT0}, s{sXCD}, 1", f"s_add_u32 s{sT0}, s{sT0}, s{sP}", f"s_lshl_b32 s{sT0}, s{sT0}, 10",
                 f"s_and_b32 s{sT1}, s{sCH}, 63", f"s_lshl_b32 s{sT1}, s{sT1}, 4", f"s_add_u32 s{sT0}, s{sT0}, s{sT1}",
                 f"s_add_u32 s71, s{sT0}, {SF}", "v_mov_b32 v14, 1"]
        merge(mf, tail)
stamp("c")
a(f"s_cmp_eq_u32 s{sP}, 0")
a("s_cbranch_scc0 L_xp1")
for i in range(4):
    a(f"ds_write_b128 v12, {vr(CA+16+4*i,4)} offset:{1024*i}")
lds_arrive(vPS, 6, 14)
a("s_branch L_xdone")
a("L_xp1:")
a("s_nop 7")
for i in range(4):
    a(f"ds_write_b128 v12, {vr(CA+4*i,4)} offset:{1024*i}")
lds_arrive(vPS, 6, 14)
for i in range(16):
    a(f"v_mov_b32 v{CA+i}, v{CA+16+i}")
a("L_xdone:")
a("s_waitcnt lgkmcnt(5)")
for i in range(4):
    for hf in range(2):
        a(f"v_lshlrev_b32 v{72+4*i+2*hf}, 16, v{48+2*i+hf}")
        a(f"v_and_b32 v{72+4*i+2*hf+1}, 0xffff0000, v{48+2*i+hf}")
for i in range(16):
    a(f"v_fma_f32 v{CA+i}, v{72+i}, s{sDS}, v{CA+i}")
lds_wait(vPS, 6, 2, 13)
for i in range(4):
    a(f"ds_read_b128 {vr(48+4*i,4)}, v11 offset:{1024*i}")
for pr in range(2):
    a(f"s_waitcnt lgkmcnt({2-2*pr})")
    for i in range(8 * pr, 8 * pr + 8):
        a(f"v_add_f32 v{CA+i}, v{CA+i}, v{48+i}")
    for i in range(4 * pr, 4 * pr + 4):
        a(f"v_cvt_pk_bf16_f32 v{64+i}, v{CA+2*i}, v{CA+2*i+1}")
    for hf in range(2):
        a(f"v_permlane16_swap_b32 v{64+4*pr+hf}, v{64+4*pr+2+hf}")
    a(f"buffer_store_dwordx4 {vr(64+4*pr,4)}, v1, s[{S_WS}:{S_WS+3}], s70 offen offset:{1024*pr} sc1")
a("s_waitcnt vmcnt(0)")
publish("s71", 14, 15)
stamp("c")
dump_stamps("c")
a("L_end:")
a("s_endpgm")
a("L_code_end:")
a.raw('.section .rodata,"a"\n.p2align 6')
a.raw(kernel_desc(KN, 256, 102, 256))
open(OUT, "w").write(a.text())
print("nops inserted:", a.nnop, "instrs:", sum(1 for i in a.items if not isinstance(i, str)), "lds", LDS_BYTES)
```
